```python
import torch

def _softmax(x, axis=-1):
    return torch.softmax(x, dim=axis)
def _gelu(x):
    return torch.nn.functional.gelu(x, approximate="tanh")
def _silu(x):
    return torch.nn.functional.silu(x)
def _sigmoid(x):
    return torch.sigmoid(x)
def _layernorm(x, axis=-1, eps=1e-5):
    m = x.mean(dim=axis, keepdim=True)
    v = x.var(dim=axis, keepdim=True, unbiased=False)
    return (x - m) / torch.sqrt(v + eps)
def _scatter_add(tgt, idx, src, axis=0):
    return tgt.clone().index_add_(axis, idx, src)
def _segment_sum(src, seg, n):
    out = torch.zeros((n,) + src.shape[1:], dtype=src.dtype)
    return out.index_add_(0, seg, src)
def _pad(x, pw):
    flat = tuple(v for pair in reversed(pw) for v in pair)
    return torch.nn.functional.pad(x, flat)

kernel_name = 'gather_scatter__cheap_equivariant_egnn__graph'

def setup_inputs():

    _w = (lambda a: (lambda t: t.to(torch.bfloat16) if t.is_floating_point() else t)(torch.as_tensor(a)))
    N, deg, D, De = 25000, 32, 64, max(16, 1)
    E = N * deg
    return {
        "h": _w((lambda *s: torch.randn(*s, dtype=torch.bfloat16) * 0.2)(N, D)),
        "pos": _w((lambda *s: torch.randn(*s, dtype=torch.bfloat16) * 0.8)(N, 3)),
        "e_attr": _w((lambda *s: torch.randn(*s, dtype=torch.bfloat16) * 0.8)(E, De)),
        "src": _w((lambda lo, hi, *s: torch.randint(lo, hi, s))(0, N, E).to(torch.int64)),
        "dst": _w((lambda lo, hi, *s: torch.randint(lo, hi, s))(0, N, E).to(torch.int64)),
        "w_e": _w(0.1 * (lambda *s: torch.randn(*s, dtype=torch.bfloat16) * 0.8)(2 * D + 1 + De, D)),
        "w_x": _w(0.1 * (lambda *s: torch.randn(*s, dtype=torch.bfloat16) * 0.2)(D, 1)),
        "w_h": _w(0.1 * (lambda *s: torch.randn(*s, dtype=torch.bfloat16) * 0.2)(2 * D, D)),
    }

def reference(h, pos, e_attr, src, dst, w_e, w_x, w_h):
    N, D = h.shape[0], h.shape[1]
    diff = pos[dst] - pos[src]
    dist2 = torch.sum(diff * diff, axis=-1, keepdims=True)
    e_in = torch.concatenate([h[dst], h[src], dist2, e_attr], axis=-1)
    m_ij = _silu(e_in @ w_e)
    coord_scale = m_ij @ w_x
    pos_new = pos + _segment_sum(diff * coord_scale, dst, N)
    m_i = _segment_sum(m_ij, dst, N)
    h_new = h + _silu(torch.concatenate([h, m_i], axis=-1) @ w_h)
    return h_new, pos_new
```

```python
import re

TRANS = ('v_exp_f32','v_log_f32','v_rcp_f32','v_rsq_f32','v_sqrt_f32','v_sin_f32','v_cos_f32','v_rcp_iflag_f32','v_exp_f16','v_rcp_f16')
DPPKEYS = ('row_shr','row_shl','row_ror','quad_perm','row_bcast','row_mirror','row_half_mirror','wave_shr','wave_shl','row_newbcast')

def split_ops(s):
    out=[];depth=0;cur=''
    for ch in s:
        if ch in '[(': depth+=1
        if ch in '])': depth-=1
        if ch==',' and depth==0: out.append(cur.strip());cur=''
        else: cur+=ch
    if cur.strip(): out.append(cur.strip())
    return out

def regs_of(op):
    op=op.strip()
    tok=op.split()[0] if op else ''
    tok=tok.strip('-|')
    tok=re.sub(r'^abs\((.*)\)$',r'\1',tok)
    m=re.fullmatch(r'([vsa])(\d+)',tok)
    if m: return {(m.group(1),int(m.group(2)))}
    m=re.fullmatch(r'([vsa])\[(\d+):(\d+)\]',tok)
    if m: return {(m.group(1),i) for i in range(int(m.group(2)),int(m.group(3))+1)}
    if tok in('vcc','vcc_lo','vcc_hi'): return {('vcc',0)}
    if tok in('exec','exec_lo','exec_hi'): return {('exec',0)}
    if tok=='m0': return {('m0',0)}
    return set()

class I:
    def __init__(s,text):
        s.text=text
        t=text.split(';')[0].strip()
        s.label=None;s.mn='';s.ops=[]
        if t.endswith(':'): s.label=t[:-1]; return
        if not t or t.startswith('.'): return
        p=t.split(None,1); s.mn=p[0]
        s.ops=split_ops(p[1]) if len(p)>1 else []
        mn=s.mn
        for suf in('_e32','_e64','_dpp','_sdwa'):
            if mn.endswith(suf): mn=mn[:-len(suf)]
        s.base=mn
        s.mfma=mn.startswith('v_mfma')
        s.valu=mn.startswith('v_') and not s.mfma
        s.trans=mn in TRANS
        s.dpp=any(k in t for k in DPPKEYS)
        s.ds=mn.startswith('ds_')
        s.vmem=mn.startswith(('buffer_','global_'))
        s.salu=mn.startswith('s_')
        s.lds_dma=s.vmem and (re.search(r'\blds\b',t) is not None)
        R=[regs_of(o) for o in s.ops]
        d=set();u=set()
        if s.mfma:
            d=R[0]; s.A=R[1]; s.B=R[2]; s.C=R[3]; u=R[1]|R[2]|R[3]
            s.passes=8 if '32x32' in mn else 4
            if mn.endswith('x2_f32'): s.passes=16
        elif s.valu:
            if mn.startswith('v_cmp'):
                d=R[0]; u=set().union(*R[1:])
            elif mn in('v_permlane32_swap_b32','v_permlane16_swap_b32','v_swap_b32'):
                d=R[0]|R[1]; u=R[0]|R[1]
            elif mn in('v_add_co_u32','v_sub_co_u32','v_addc_co_u32','v_subb_co_u32','v_subrev_co_u32'):
                d=R[0]|R[1]; u=set().union(*R[2:])
            elif mn=='v_nop': pass
            else:
                d=R[0]; u=set().union(*R[1:]) if len(R)>1 else set()
                if mn in('v_fmac_f32','v_writelane_b32','v_pk_fmac_f16') or s.dpp: u|=R[0]
                if mn=='v_cndmask_b32' and len(R)==3: u|={('vcc',0)}
        elif s.ds:
            if mn.startswith('ds_read') or '_rtn' in mn or 'permute' in mn or mn.startswith('ds_swizzle'):
                d=R[0]; u=set().union(*R[1:]) if len(R)>1 else set()
            else: u=set().union(*R)
        elif s.vmem:
            if '_load' in mn and not s.lds_dma:
                d=R[0]; u=set().union(*R[1:])
            else: u=set().union(*R)
            s.wide_store=('store' in mn) and ('x3' in mn or 'x4' in mn)
            if s.wide_store: s.data=R[0] if mn.startswith('buffer') else R[1]
        elif s.salu:
            if mn.startswith(('s_cmp','s_cbranch','s_branch','s_waitcnt','s_nop','s_barrier','s_endpgm','s_setprio','s_sleep','s_bitcmp')):
                u=set().union(*R) if R else set()
            else:
                d=R[0] if R else set(); u=set().union(*R[1:]) if len(R)>1 else set()
                if 'saveexec' in mn: d=d|{('exec',0)}
        s.d=d;s.u=u
    def states(s):
        if not s.mn: return 0
        if s.mn=='s_nop': return int(s.ops[0],0)+1
        return 1

def need(p,c):
    n=0
    V=lambda S:{r for r in S if r[0] in 'va' and r[0]!='vcc'}
    S_=lambda S:{r for r in S if r[0] in('s','vcc')}
    if p.valu:
        pv=V(p.d); ps=S_(p.d)
        if c.mfma and pv&c.u: n=max(n,2)
        if p.trans and (c.valu or c.mfma) and pv&c.u: n=max(n,1)
        if c.valu and c.base in('v_readlane_b32','v_readfirstlane_b32') and pv&c.u: n=max(n,1)
        if c.valu and c.dpp and pv&c.u: n=max(n,2)
        if c.valu and c.base.startswith('v_permlane') and pv&c.u: n=max(n,2)
        if ps:
            if c.valu and ps&c.u:
                n=max(n,4 if c.base in('v_readlane_b32','v_writelane_b32') else 2)
            if c.vmem and ps&c.u: n=max(n,5)
            if c.salu and ps&c.u: n=max(n,1)
        if ('exec',0) in p.d:
            if c.valu and c.dpp: n=max(n,5)
            if c.mfma or (c.valu and c.base.startswith(('v_readlane','v_readfirstlane','v_writelane','v_permlane'))): n=max(n,4)
    if p.mfma:
        k={4:0,8:1,16:2}[p.passes]
        if c.mfma:
            if p.d&(c.A|c.B): n=max(n,(8,12,20)[k])
            if p.d&c.C:
                if not(p.d==c.C and p.passes==c.passes): n=max(n,(6,10,18)[k])
            elif p.d&c.d and not (p.d==c.d): n=max(n,(6,10,18)[k])
        elif (c.valu or c.ds or c.vmem) and p.d&(c.u|c.d): n=max(n,(8,12,20)[k])
        if c.valu and p.C&c.d: n=max(n,(3,7,15)[k])
    if p.salu and ('m0',0) in p.d and (getattr(c,'lds_dma',False) or (c.ds and 'addtid' in c.mn)): n=max(n,1)
    if p.vmem and getattr(p,'wide_store',False) and p.data&c.d and (c.valu or c.mfma): n=max(n,2)
    return n

def fix_hazards(lines,verbose=False):
    ins=[I(l) for l in lines]
    total=0
    while True:
        labels={x.label:i for i,x in enumerate(ins) if x.label}
        jumps={}
        for i,x in enumerate(ins):
            if x.mn.startswith(('s_cbranch','s_branch')): jumps.setdefault(labels[x.ops[0]],[]).append(i)
        def preds(i):
            r=[]
            if i>0 and ins[i-1].mn not in('s_branch','s_endpgm'): r.append(i-1)
            if ins[i].label: r+=jumps.get(i,[])
            return r
        changed=False
        for i,c in enumerate(ins):
            if not c.mn or c.mn=='s_nop': continue
            worst=0
            stack=[(j,0) for j in preds(i)]; seen={}
            while stack:
                j,dist=stack.pop()
                if dist>=20: continue
                if seen.get(j,99)<=dist: continue
                seen[j]=dist
                p=ins[j]
                if p.mn:
                    w=need(p,c)-dist
                    if w>worst: worst=w; why=p
                for q in preds(j): stack.append((q,dist+p.states()))
            if worst>0:
                if verbose: print(f"; nop {worst} before [{c.text.strip()}] after [{why.text.strip()}]")
                k=i
                new=[]
                w=worst
                while w>0:
                    m=min(w,16); new.append(I(f"  s_nop {m-1}")); w-=m
                ins[k:k]=new; total+=worst; changed=True
                break
        if not changed: break
    return [x.text for x in ins],total

class Asm:
    def __init__(s): s.l=[]
    def __call__(s,t):
        for x in t.strip('\n').split('\n'):
            x=x.strip()
            if not x: continue
            s.l.append(x if x.endswith(':') else '  '+x)
    def get(s,verbose=False):
        l,t=fix_hazards(s.l,verbose)
        return l,t
def vr(a,n=1): return f"v{a}" if n==1 else f"v[{a}:{a+n-1}]"
def sr(a,n=1): return f"s{a}" if n==1 else f"s[{a}:{a+n-1}]"
```

```python
import struct
N=25000; E=800000; CH=3128; NBK=256; NB=98
BANDSH=11
WS_TAB=0x1400000; WS_REC=0x40000; WS_BT=0x680000; WS_P16=0xA00000; WS_WT=0xA80000; WS_ST=0xB00000; WS_SLOT=0xC00000; WS_P6=0xA90000
WT_W1T=0; WT_W3T=8192; WT_WHT=10240; WT_WDT=26624; WT_WXT=26880; WT_SIZE=27136
f2u=lambda x: struct.unpack('<I',struct.pack('<f',x))[0]
LOG2E_NEG=f2u(-1.4426950408889634)
LN2_NEG=f2u(-0.6931471805599453)
```

```python
from asmlib import *
from cfg import *

def srd(a, s, base_lo, off=None, size=None, w1or=0):
    if off is None:
        a(f"s_mov_b32 s{s}, s{base_lo}\ns_mov_b32 s{s+1}, s{base_lo+1}")
    else:
        a(f"s_add_u32 s{s}, s{base_lo}, {off}\ns_addc_u32 s{s+1}, s{base_lo+1}, 0")
    if w1or: a(f"s_or_b32 s{s+1}, s{s+1}, {w1or:#x}")
    a(f"s_mov_b32 s{s+2}, {size}\ns_mov_b32 s{s+3}, 0x20000")

def wave_scan(a, v):
    for sh in (1,2,4,8):
        a(f"v_add_u32_dpp v{v}, v{v}, v{v} row_shr:{sh} row_mask:0xf bank_mask:0xf bound_ctrl:1")
    a(f"v_add_u32_dpp v{v}, v{v}, v{v} row_bcast:15 row_mask:0xa bank_mask:0xf")
    a(f"v_add_u32_dpp v{v}, v{v}, v{v} row_bcast:31 row_mask:0xc bank_mask:0xf")

CNT=0; BASE=1024; W2L=2048; BOUT=10240; RECS=26624; K1_LDS=RECS+CH*8

def gen_k1(opt):
    a=Asm()
    ST=opt.get('k1_store','sc1'); LD=opt.get('k1_load','nt')
    sH,sPOSP,sSRC,sDST,sWE,sWX,sWH,sWS=4,6,8,10,12,14,16,18
    rDST,rSRC,rH,rPOS,rWE,rREC,rTAB,rBT,rP16,rX,rY=20,24,28,32,36,40,44,48,52,56,60
    sW,sN,sNN,sT0,sT1,sT2,sT3=64,65,66,67,68,69,70
    sL=72
    sVAL=74
    a(f"""
    s_cmp_ge_u32 s2, {NBK}
    s_cbranch_scc1 K1_END
    s_load_dwordx4 s[4:7], s[0:1], 0
    s_load_dwordx4 s[8:11], s[0:1], 24
    s_load_dwordx4 s[12:15], s[0:1], 40
    s_load_dwordx2 s[16:17], s[0:1], 56
    s_load_dwordx2 s[18:19], s[0:1], 80
    v_lshrrev_b32 v1, 6, v0
    v_and_b32 v2, 63, v0
    v_readfirstlane_b32 s{sW}, v1
    v_lshlrev_b32 v3, 4, v0
    s_mul_i32 s{sT0}, s2, {CH}
    s_sub_u32 s{sN}, {E}, s{sT0}
    s_min_u32 s{sN}, s{sN}, {CH}
    s_mul_i32 s{sT1}, s2, {NB}
    s_sub_u32 s{sNN}, {N}, s{sT1}
    s_min_u32 s{sNN}, s{sNN}, {NB}
    s_mov_b32 s{sL}, {LOG2E_NEG:#x}
    s_mov_b32 s{sL+1}, {LOG2E_NEG:#x}
    s_lshl_b32 s{sT2}, s{sT0}, 2
    s_lshl_b32 s{sT3}, s{sN}, 2
    s_waitcnt lgkmcnt(0)
    """)
    srd(a,rDST,sDST,f"s{sT2}",f"s{sT3}")
    srd(a,rSRC,sSRC,f"s{sT2}",f"s{sT3}")
    srd(a,rWE,sWE,None,145*128)
    a(f"""
    s_cmp_ge_u32 s{sW}, 8
    s_cbranch_scc1 K1_NODMA
    s_lshl_b32 s{sT2}, s{sW}, 10
    s_add_u32 m0, s{sT2}, {W2L}
    v_add_u32 v4, {64*128}, v3
    buffer_load_dwordx4 v4, s[{rWE}:{rWE+3}], 0 offen lds
    K1_NODMA:
    buffer_load_dwordx4 v[8:11], v3, s[{rDST}:{rDST+3}], 0 offen {LD}
    buffer_load_dwordx4 v[12:15], v3, s[{rSRC}:{rSRC+3}], 0 offen {LD}
    """)
    a(f"s_lshl_b32 s{sT2}, s{sT1}, 7\ns_lshl_b32 s{sT3}, s{sNN}, 7")
    srd(a,rH,sH,f"s{sT2}",f"s{sT3}")
    a(f"s_add_u32 s{sT2}, s{sT2}, {WS_BT:#x}")
    srd(a,rBT,sWS,f"s{sT2}",f"s{sT3}")
    a(f"s_mul_i32 s{sT2}, s{sT1}, 6\ns_mul_i32 s{sT3}, s{sNN}, 6")
    srd(a,rPOS,sPOSP,f"s{sT2}",f"s{sT3}")
    a(f"s_lshl_b32 s{sT2}, s{sT1}, 4\ns_add_u32 s{sT2}, s{sT2}, {WS_P16:#x}\ns_lshl_b32 s{sT3}, s{sNN}, 4")
    srd(a,rP16,sWS,f"s{sT2}",f"s{sT3}")
    a(f"s_lshl_b32 s{sT2}, s{sT0}, 3\ns_add_u32 s{sT2}, s{sT2}, {WS_REC:#x}\ns_lshl_b32 s{sT3}, s{sN}, 3")
    srd(a,rREC,sWS,f"s{sT2}",f"s{sT3}")
    a(f"s_lshl_b32 s{sT2}, s2, 10\ns_add_u32 s{sT2}, s{sT2}, {WS_TAB:#x}")
    srd(a,rTAB,sWS,f"s{sT2}",1024)
    HB=32
    a(f"""
    s_cmp_lt_u32 s{sW}, 12
    s_cbranch_scc1 K1_NOH
    s_sub_u32 s{sT2}, 15, s{sW}
    s_lshl_b32 s{sT2}, s{sT2}, 12
    v_and_b32 v5, 31, v2
    v_lshrrev_b32 v6, 5, v2
    v_lshlrev_b32 v7, 7, v5
    v_lshl_add_u32 v7, v6, 4, v7
    v_add_u32 v7, s{sT2}, v7
    """)
    for s in range(4): a(f"buffer_load_dwordx4 v[{HB+4*s}:{HB+4*s+3}], v7, s[{rH}:{rH+3}], 0 offen offset:{32*s}")
    a(f"""
    s_cmp_eq_u32 s{sW}, 12
    s_cbranch_scc1 K1_NOH
    s_cmp_eq_u32 s{sW}, 15
    s_cbranch_scc1 K1_PREP
    v_subrev_u32 v16, {13*64}, v0
    v_mul_u32_u24 v17, 6, v16
    buffer_load_ushort v48, v17, s[{rPOS}:{rPOS+3}], 0 offen
    buffer_load_ushort v49, v17, s[{rPOS}:{rPOS+3}], 0 offen offset:2
    buffer_load_ushort v50, v17, s[{rPOS}:{rPOS+3}], 0 offen offset:4
    v_lshlrev_b32 v16, 4, v16
    s_branch K1_NOH
    K1_PREP:
    s_cmp_ge_u32 s2, 26
    s_cbranch_scc1 K1_PREP2
    """)
    a(f"""
    s_cmp_ge_u32 s2, 10
    s_cbranch_scc1 K1_PWH
    s_lshr_b32 s{sT2}, s2, 1
    s_lshl_b32 s{sT2}, s{sT2}, 4
    s_cmp_ge_u32 s2, 8
    s_cselect_b32 s{sT2}, 129, s{sT2}
    s_and_b32 s{sT3}, s2, 1
    s_lshl_b32 s{sT3}, s{sT3}, 6
    s_lshl_b32 s{sT2}, s{sT2}, 7
    s_add_u32 s{sT2}, s{sT2}, s{sT3}
    v_lshlrev_b32 v17, 10, v6
    v_lshl_add_u32 v17, v5, 1, v17
    v_add_u32 v17, s{sT2}, v17
    s_mov_b32 s{rX}, s{sWE}
    s_mov_b32 s{rX+1}, s{sWE+1}
    s_mov_b32 s{rX+2}, {145*128}
    s_branch K1_PLD
    K1_PWH:
    s_sub_u32 s{sT2}, s2, 10
    s_and_b32 s{sT3}, s{sT2}, 3
    s_lshr_b32 s{sT2}, s{sT2}, 2
    s_lshl_b32 s{sT2}, s{sT2}, 12
    s_lshl_b32 s{sT3}, s{sT3}, 1
    s_add_u32 s{sT2}, s{sT2}, s{sT3}
    v_lshrrev_b32 v17, 4, v2
    v_lshlrev_b32 v17, 10, v17
    v_and_b32 v18, 15, v2
    v_lshl_add_u32 v17, v18, 3, v17
    v_add_u32 v17, s{sT2}, v17
    s_mov_b32 s{rX}, s{sWH}
    s_mov_b32 s{rX+1}, s{sWH+1}
    s_mov_b32 s{rX+2}, {128*128}
    K1_PLD:
    s_mov_b32 s{rX+3}, 0x20000
    """)
    for j in range(8): a(f"buffer_load_ushort v{48+j}, v17, s[{rX}:{rX+3}], 0 offen offset:{128*j}")
    a(f"""
    s_branch K1_NOH
    K1_PREP2:
    s_cmp_lg_u32 s2, 26
    s_cbranch_scc1 K1_NOH
    """)
    srd(a,rX,sWX,None,128)
    a(f"""
    v_lshlrev_b32 v17, 1, v2
    v_add_u32 v17, {128*128}, v17
    buffer_load_ushort v48, v17, s[{rWE}:{rWE+3}], 0 offen
    v_and_b32 v18, 3, v2
    v_bfe_u32 v19, v2, 2, 2
    v_lshl_add_u32 v18, v19, 3, v18
    v_lshl_add_u32 v18, v6, 2, v18
    v_bfe_u32 v19, v2, 4, 1
    v_lshl_add_u32 v18, v19, 5, v18
    v_lshlrev_b32 v18, 1, v18
    buffer_load_ushort v49, v18, s[{rX}:{rX+3}], 0 offen
    K1_NOH:
    """)
    a(f"""
    v_mov_b32 v20, 0
    s_cmp_ge_u32 s{sW}, 4
    s_cbranch_scc1 K1_NOZ
    v_lshlrev_b32 v21, 2, v0
    ds_write_b32 v21, v20 offset:{CNT}
    K1_NOZ:
    s_lshr_b32 s{sT2}, s{sN}, 2
    v_cmp_gt_u32 s[{sVAL}:{sVAL+1}], s{sT2}, v0
    s_cmp_ge_u32 s{sW}, 8
    s_cbranch_scc1 K1_B1
    s_waitcnt vmcnt(2)
    K1_B1:
    s_waitcnt lgkmcnt(0)
    s_barrier
    s_cmp_ge_u32 s{sW}, 13
    s_cbranch_scc1 K1_NOSORT1
    s_cmp_eq_u32 s{sW}, 12
    s_cbranch_scc1 K1_W12
    s_waitcnt vmcnt(0)
    K1_W12:
    s_waitcnt vmcnt(4)
    """)
    for j in range(4):
        d=8+j; s=12+j
        a(f"""
        v_mul_u32_u24 v20, 42800, v{d}
        v_lshrrev_b32 v20, 21, v20
        v_mul_u32_u24 v21, 49, v20
        v_sub_u32 v21, v{d}, v21
        v_mul_u32_u24 v22, 43, v21
        v_lshrrev_b32 v22, 8, v22
        v_min_u32 v22, 7, v22
        v_mul_u32_u24 v23, 6, v22
        v_sub_u32 v21, v21, v23
        v_and_b32 v23, 1, v20
        v_add_u32 v22, v22, v23
        v_and_b32 v22, 7, v22
        v_lshl_or_b32 v22, v23, 3, v22
        v_lshlrev_b32 v{d}, 1, v20
        v_and_b32 v{d}, 0x3fc, v{d}
        v_lshrrev_b32 v23, {BANDSH}, v{s}
        v_lshl_or_b32 v23, v22, 4, v23
        v_lshl_or_b32 v21, v{s}, 7, v21
        v_lshl_or_b32 v{s}, v23, 24, v21
        """)
    a(f"v_mov_b32 v20, 1\ns_mov_b64 exec, s[{sVAL}:{sVAL+1}]")
    for j in range(4): a(f"ds_add_rtn_u32 v{24+j}, v{8+j}, v20 offset:{CNT}")
    a(f"""
    s_mov_b64 exec, -1
    s_waitcnt lgkmcnt(0)
    K1_NOSORT1:
    s_barrier
    s_cmp_ge_u32 s{sW}, 13
    s_cbranch_scc1 K1_NOSORT2
    v_lshlrev_b32 v21, 4, v2
    ds_read_b128 v[28:31], v21 offset:{CNT}
    s_waitcnt lgkmcnt(0)
    v_add_u32 v29, v28, v29
    v_add_u32 v30, v29, v30
    v_add_u32 v31, v30, v31
    v_mov_b32 v20, v31
    """)
    wave_scan(a,20)
    a(f"""
    v_sub_u32 v16, v20, v31
    v_add_u32 v17, v16, v28
    v_add_u32 v18, v16, v29
    v_add_u32 v19, v16, v30
    ds_write_b128 v21, v[16:19] offset:{BASE}
    """)
    for j in range(4): a(f"ds_read_b32 v{8+j}, v{8+j} offset:{BASE}")
    a(f"""
    s_cmp_lg_u32 s{sW}, 0
    s_cbranch_scc1 K1_NOTAB
    v_lshl_or_b32 v28, v17, 16, v16
    v_lshl_or_b32 v29, v18, 16, v17
    v_lshl_or_b32 v30, v19, 16, v18
    v_lshl_or_b32 v31, v20, 16, v19
    buffer_store_dwordx4 v[28:31], v21, s[{rTAB}:{rTAB+3}], 0 offen {ST}
    K1_NOTAB:
    s_lshl_b32 s{sT2}, s{sT0}, 5
    v_lshlrev_b32 v22, 7, v0
    v_add_u32 v22, s{sT2}, v22
    s_waitcnt lgkmcnt(0)
    s_mov_b64 exec, s[{sVAL}:{sVAL+1}]
    """)
    for j in range(4):
        a(f"""
        v_add_lshl_u32 v{8+j}, v{8+j}, v{24+j}, 3
        v_mov_b32 v{52+2*j}, v{12+j}
        v_add_u32 v{53+2*j}, {32*j}, v22
        ds_write_b64 v{8+j}, v[{52+2*j}:{53+2*j}] offset:{RECS}
        """)
    a(f"""
    s_mov_b64 exec, -1
    K1_NOSORT2:
    s_cmp_lt_u32 s{sW}, 12
    s_cbranch_scc1 K1_NOGEMM
    """)
    a(f"""
    v_bfe_u32 v16, v2, 2, 2
    v_lshl_add_u32 v16, v6, 3, v16
    v_lshlrev_b32 v16, 7, v16
    v_and_b32 v17, 1, v2
    v_lshl_add_u32 v16, v17, 5, v16
    v_bfe_u32 v17, v2, 4, 1
    v_lshl_add_u32 v16, v17, 4, v16
    v_bfe_u32 v17, v2, 1, 1
    v_lshl_add_u32 v16, v17, 3, v16
    """)
    WA=64
    for p in range(2):
        for s in range(4):
            for jj in range(2):
                a(f"ds_read_b64_tr_b16 v[{WA+16*p+4*s+2*jj}:{WA+16*p+4*s+2*jj+1}], v16 offset:{W2L+s*2048+jj*512+64*p}")
    a("s_waitcnt vmcnt(0) lgkmcnt(8)")
    DD=96
    for p in range(2):
        if p==1: a("s_waitcnt lgkmcnt(0)")
        for s in range(4):
            c = "0" if s==0 else vr(DD+16*p,16)
            a(f"v_mfma_f32_32x32x16_bf16 {vr(DD+16*p,16)}, {vr(WA+16*p+4*s,4)}, {vr(HB+4*s,4)}, {c}")
    a(f"""
    s_cmp_eq_u32 s{sW}, 12
    s_cbranch_scc1 K1_SIDE_DONE
    s_cmp_eq_u32 s{sW}, 15
    s_cbranch_scc1 K1_SIDE_PREP
    v_subrev_u32 v16, {13*64}, v0
    v_lshlrev_b32 v16, 4, v16
    v_lshlrev_b32 v48, 16, v48
    v_lshlrev_b32 v49, 16, v49
    v_lshlrev_b32 v50, 16, v50
    v_mov_b32 v51, 0
    buffer_store_dwordx4 v[48:51], v16, s[{rP16}:{rP16+3}], 0 offen {ST}
    s_branch K1_SIDE_DONE
    K1_SIDE_PREP:
    s_cmp_gt_u32 s2, 26
    s_cbranch_scc1 K1_SIDE_DONE
    """)
    srd(a,rY,sWS,f"{WS_WT:#x}",WT_SIZE)
    a(f"""
    s_cmp_eq_u32 s2, 26
    s_cbranch_scc1 K1_SIDE_WD
    s_lshr_b32 s{sT2}, s2, 1
    s_cmp_eq_u32 s{sT2}, 4
    s_cbranch_scc1 K1_SIDE_W3
    """)
    for i in range(4): a(f"v_lshl_or_b32 v{56+i}, v{49+2*i}, 16, v{48+2*i}")
    a("s_branch K1_SIDE_ST\nK1_SIDE_W3:")
    for j in range(8): a(f"v_lshlrev_b32 v{48+j}, 16, v{48+j}\nv_mul_f32 v{48+j}, s{sL}, v{48+j}")
    for i in range(4): a(f"v_cvt_pk_bf16_f32 v{56+i}, v{48+2*i}, v{49+2*i}")
    a(f"""
    K1_SIDE_ST:
    s_lshl_b32 s{sT2}, s2, 10
    v_lshl_add_u32 v16, v2, 4, s{sT2}
    buffer_store_dwordx4 v[56:59], v16, s[{rY}:{rY+3}], 0 offen {ST}
    s_branch K1_SIDE_DONE
    K1_SIDE_WD:
    v_lshlrev_b32 v48, 16, v48
    v_mul_f32 v48, s{sL}, v48
    v_cvt_pk_bf16_f32 v50, v48, v48
    v_and_b32 v51, 0xffff0000, v50
    v_sub_f32 v51, v48, v51
    v_cvt_pk_bf16_f32 v50, v48, v51
    v_lshlrev_b32 v49, 16, v49
    v_mul_f32 v49, {LN2_NEG:#x}, v49
    v_lshlrev_b32 v16, 2, v2
    """)
    a(f"""
    v_add_u32 v16, {WT_WDT}, v16
    buffer_store_dword v50, v16, s[{rY}:{rY+3}], 0 offen {ST}
    buffer_store_dword v49, v16, s[{rY}:{rY+3}], 0 offen offset:{WT_WXT-WT_WDT} {ST}
    K1_SIDE_DONE:
    """)
    for p in range(2):
        for i in range(8): a(f"v_pk_mul_f32 {vr(DD+16*p+2*i,2)}, {vr(DD+16*p+2*i,2)}, s[{sL}:{sL+1}]")
        for i in range(8): a(f"v_cvt_pk_bf16_f32 v{WA+8*p+i}, v{DD+16*p+2*i}, v{DD+16*p+2*i+1}")
    a(f"""
    s_sub_u32 s{sT2}, 15, s{sW}
    s_lshl_b32 s{sT2}, s{sT2}, 12
    v_lshlrev_b32 v16, 7, v5
    v_add_u32 v16, s{sT2}, v16
    v_and_b32 v17, 7, v5
    v_lshlrev_b32 v18, 1, v6
    """)
    for p in range(2):
        for i in range(2):
            a(f"""
            v_add_u32 v19, {4*p+i}, v18
            v_xor_b32 v19, v19, v17
            v_lshl_add_u32 v19, v19, 4, v16
            ds_write_b128 v19, {vr(WA+8*p+4*i,4)} offset:{BOUT}
            """)
    a(f"""
    K1_NOGEMM:
    s_waitcnt lgkmcnt(0)
    s_barrier
    ds_read_b128 v[8:11], v3 offset:{RECS}
    ds_read_b128 v[16:19], v3 offset:{BOUT}
    v_add_u32 v4, 16384, v3
    v_min_u32 v5, {CH*8-16}, v4
    ds_read_b128 v[12:15], v5 offset:{RECS}
    v_bfe_u32 v6, v0, 3, 3
    v_lshlrev_b32 v6, 4, v6
    v_xor_b32 v6, v6, v3
    s_waitcnt lgkmcnt(2)
    buffer_store_dwordx4 v[8:11], v3, s[{rREC}:{rREC+3}], 0 offen {ST}
    s_waitcnt lgkmcnt(1)
    buffer_store_dwordx4 v[16:19], v6, s[{rBT}:{rBT+3}], 0 offen {ST}
    s_waitcnt lgkmcnt(0)
    buffer_store_dwordx4 v[12:15], v4, s[{rREC}:{rREC+3}], 0 offen {ST}
    K1_END:
    s_endpgm
    """)
    return a
```

```python
from asmlib import *
from cfg import *
from k1 import srd, wave_scan

CNT=0; BASE=1024; MAXC=2048; WXL=2304; PDT=4096; L0=8192; L1=24576; SX=40960; BST=73728; BSTW=4352
K2_LDS=BST+16*BSTW
LCAP=4096
D1=0; D2=32; W3=64; AG=72; ID=80; EE=88; T0=96; T1=100; EA=104; OH=108; PS=112; TMP=115
cDMA=116; aTR=117; aSXR=118; aL4=119; aLE=120; aSXW=121; cPD=122; cHH=123; W0E=124; SXA=125; aEA=126; TID=127
sH,sEAP,sOUT,sWS=4,6,8,10
rTAB,rREC,rBT,rEA,rP16,rH,rWT,rOUT,rOUTP=12,16,20,24,28,32,36,40,44
sW,sNode0,sCnt,sLayer,sBlo,sBhi,sMaxc,sNT,sT0,sT1,sT2,sT3=48,49,50,51,52,53,54,55,56,57,58,59
sM0=60; sHI=64; sONE=66; sMASK=68; sFirst=69; sK=70; sQ3=72; sTot=74; sGb=75; sV=76

def mf(d,a_,b,c=None):
    return f"v_mfma_f32_32x32x16_bf16 {vr(d,16)}, {vr(a_,4)}, {vr(b,4)}, {'0' if c is None else vr(c,16)}"
def exp4(p,b,h): return "\n".join(f"v_exp_f32 v{EE+4*h+i}, v{D1+16*p+8*b+4*h+i}" for i in range(4))
def rcp4(h): return "\n".join(f"v_rcp_f32 v{EE+4*h+i}, v{EE+4*h+i}" for i in range(4))
def padd(): return "\n".join(f"v_pk_add_f32 {vr(EE+2*i,2)}, {vr(EE+2*i,2)}, s[{sONE}:{sONE+1}]" for i in range(4))
def pmulcvt(p,b):
    y=D1+16*p+8*b
    return "\n".join([f"v_pk_mul_f32 {vr(EE+2*i,2)}, {vr(y+2*i,2)}, {vr(EE+2*i,2)}" for i in range(4)]+
                     [f"v_cvt_pk_bf16_f32 v{y+i}, v{EE+2*i}, v{EE+2*i+1}" for i in range(4)])
def bst_reads(p):
    return "\n".join(f"ds_read_b64_tr_b16 {vr((T0,T1)[s]+2*jj,2)}, v{aTR} offset:{s*2176+jj*256+64*p}" for s in range(2) for jj in range(2))
def sx_reads():
    return "\n".join(f"ds_read_b64_tr_b16 {vr((T0,T1)[s]+2*jj,2)}, v{aSXR} offset:{s*1024+jj*512}" for s in range(2) for jj in range(2))
def idx_reads():
    return f"ds_read_b128 {vr(OH,4)}, v{aL4}\nds_read_b32 v{W0E}, v{aLE}\nds_read_b32 v{aEA}, v{aLE} offset:{L1-L0}"
def issue_loads(opt):
    EP=opt.get('ea_pol','')
    s="\n".join(f"v_and_or_b32 v{OH+i}, v{OH+i}, s{sMASK}, v{cDMA}" for i in range(4))
    s+=f"\nv_add_u32 v{aEA}, v{aEA}, v{cHH}\nv_bfe_u32 v{TMP}, v{W0E}, 3, 19\n"
    s+=f"buffer_load_dwordx4 {vr(EA,4)}, v{aEA}, s[{rEA}:{rEA+3}], 0 offen {EP}\n"
    for i in range(4):
        s+=f"s_mov_b32 m0, s{sM0+i}\n"
        if i==0: s+=f"v_and_b32 v{W0E}, 7, v{W0E}\n"
        s+=f"buffer_load_dwordx4 v{OH+i}, s[{rBT}:{rBT+3}], 0 offen lds\n"
    s+=f"s_mov_b64 exec, s[{sHI}:{sHI+1}]\nbuffer_load_dwordx3 {vr(PS,3)}, v{TMP}, s[{rP16}:{rP16+3}], 0 offen\ns_mov_b64 exec, -1\n"
    return s
def oh_read():
    return f"v_lshl_add_u32 v{TMP}, v{W0E}, 4, v{cPD}\nds_read_b128 {vr(OH,4)}, v{TMP}\nv_add_u32 v{aL4}, 128, v{aL4}\nv_add_u32 v{aLE}, 128, v{aLE}"
def edge():
    return f"""s_mov_b64 exec, s[{sHI}:{sHI+1}]
    v_sub_f32 v{OH}, v{OH}, v{PS}
    v_sub_f32 v{OH+1}, v{OH+1}, v{PS+1}
    v_sub_f32 v{OH+2}, v{OH+2}, v{PS+2}
    v_mul_f32 v{PS}, v{OH}, v{OH}
    v_fmac_f32 v{PS}, v{OH+1}, v{OH+1}
    v_fmac_f32 v{PS}, v{OH+2}, v{OH+2}
    v_cvt_pk_bf16_f32 v{OH}, 1.0, v{OH}
    v_cvt_pk_bf16_f32 v{OH+1}, v{OH+1}, v{OH+2}
    v_cvt_pk_bf16_f32 v{OH+2}, v{PS}, v{PS}
    s_mov_b64 exec, -1"""
def sx_zero(): return f"ds_write2_b32 v{SXA}, v{OH+3}, v{OH+3} offset0:0 offset1:1"
def g2(p,s): return mf(D2+16*p, D1+16*p+8*s, (T0,T1)[s], D2+16*p)

def phaseX(a,opt,last):
    d=D1+16
    a("s_waitcnt lgkmcnt(2)"); a(g2(1,0)); a(exp4(0,0,0))
    a("s_waitcnt lgkmcnt(0)"); a(g2(1,1)); a(exp4(0,0,1))
    a(f"s_mov_b64 exec, s[{sHI}:{sHI+1}]"); a(sx_zero())
    a(f"v_lshl_add_u32 v{SXA}, v{W0E}, 3, v{aSXW}\nds_write_b64 v{SXA}, {vr(OH,2)}\ns_mov_b64 exec, -1")
    a(bst_reads(1)); a(padd())
    a(mf(d,OH,AG+4)); a(rcp4(0)); a(mf(d,EA,W3+4,d))
    if not last: a(idx_reads())
    a(rcp4(1)); a(pmulcvt(0,0))
    a(f"s_waitcnt lgkmcnt({2 if last else 5})"); a(mf(d,ID,T0,d)); a(exp4(0,1,0))
    a(f"s_waitcnt lgkmcnt({0 if last else 3})"); a(mf(d,ID+4,T1,d)); a(exp4(0,1,1))
    if not last:
        a("s_waitcnt lgkmcnt(0)"); a(issue_loads(opt))
    a(padd()); a(rcp4(0))
    if not last: a(oh_read())
    a(sx_reads())
    a(rcp4(1)); a(pmulcvt(0,1))

def phaseY(a,opt,last):
    d=D1
    a("s_waitcnt lgkmcnt(2)"); a(g2(0,0)); a(exp4(1,0,0))
    a("s_waitcnt lgkmcnt(0)"); a(g2(0,1)); a(exp4(1,0,1))
    if not last:
        a("s_waitcnt vmcnt(0)"); a(bst_reads(0)); a(edge())
    a(padd())
    if not last: a(mf(d,EA,W3))
    a(rcp4(0))
    if not last: a("s_waitcnt lgkmcnt(2)"); a(mf(d,ID,T0,d))
    a(rcp4(1)); a(pmulcvt(1,0))
    if not last: a("s_waitcnt lgkmcnt(0)"); a(mf(d,ID+4,T1,d))
    a(exp4(1,1,0))
    if not last: a(mf(d,OH,AG,d))
    a(exp4(1,1,1))
    a(sx_reads())
    a(padd()); a(rcp4(0)); a(rcp4(1)); a(pmulcvt(1,1))

def rec_loads(a):
    a(f"""
    v_and_b32 v88, 0xffff, v3
    v_lshrrev_b32 v89, 16, v3
    v_sub_u32 v92, v89, v88
    s_lshl_b32 s{sT0}, s{sLayer}, 5
    v_and_b32 v90, 3, v{TID}
    v_lshl_add_u32 v88, v90, 1, v88
    v_add_u32 v88, s{sT0}, v88
    v_sub_u32 v89, v89, v88
    s_cmp_ge_u32 s{sW}, s{sBlo}
    s_cselect_b32 s{sT0}, -1, 0
    s_cmp_lt_u32 s{sW}, s{sBhi}
    s_cselect_b32 s{sT0}, s{sT0}, 0
    v_and_b32 v89, s{sT0}, v89
    v_lshrrev_b32 v90, 2, v{TID}
    v_mul_u32_u24 v90, {CH}, v90
    v_add_lshl_u32 v88, v88, v90, 3
    v_bfrev_b32 v91, -2
    """)
    for j in range(4):
        a(f"v_cmp_lt_i32 s[{sV+4*j}:{sV+4*j+1}], {8*j}, v89\nv_cmp_lt_i32 s[{sV+4*j+2}:{sV+4*j+3}], {8*j+1}, v89")
    for j in range(4):
        a(f"v_cndmask_b32 v90, v91, v88, s[{sV+4*j}:{sV+4*j+1}]\nbuffer_load_dwordx4 {vr(4*j,4)}, v90, s[{rREC}:{rREC+3}], 0 offen offset:{64*j}")

def gen_k2(opt):
    a=Asm()
    PF=opt.get('pf_b',1)
    a(f"""
    s_cmp_ge_u32 s2, {NBK}
    s_cbranch_scc1 K2_END
    s_load_dwordx2 s[4:5], s[0:1], 0
    s_load_dwordx2 s[6:7], s[0:1], 16
    s_load_dwordx2 s[8:9], s[0:1], 64
    s_load_dwordx2 s[10:11], s[0:1], 80
    v_mov_b32 v{TID}, v0
    v_lshrrev_b32 v1, 6, v0
    v_lshrrev_b32 v2, 2, v0
    v_readfirstlane_b32 s{sW}, v1
    v_and_b32 v1, 63, v0
    s_lshl_b32 s{sT0}, s2, 2
    v_lshl_add_u32 v2, v2, 10, s{sT0}
    s_lshr_b32 s{sT1}, s{sW}, 3
    s_sub_u32 s{sT2}, s{sW}, s{sT1}
    s_and_b32 s{sT2}, s{sT2}, 7
    s_cmp_eq_u32 s{sT2}, 7
    s_cselect_b32 s{sCnt}, 7, 6
    s_mul_i32 s{sT1}, s{sT1}, 49
    s_mul_i32 s{sT2}, s{sT2}, 6
    s_add_u32 s{sT1}, s{sT1}, s{sT2}
    s_mul_i32 s{sNode0}, s2, {NB}
    s_add_u32 s{sNode0}, s{sNode0}, s{sT1}
    s_sub_i32 s{sT1}, {N}, s{sNode0}
    s_max_i32 s{sT1}, s{sT1}, 0
    s_min_u32 s{sCnt}, s{sCnt}, s{sT1}
    s_min_u32 s{sNode0}, s{sNode0}, {N}
    s_mov_b32 s{sLayer}, 0
    s_mov_b32 s{sBlo}, 0
    s_mov_b32 s{sBhi}, 16
    s_mov_b32 s{sFirst}, 1
    s_mov_b32 s{sHI}, 0
    s_mov_b32 s{sHI+1}, -1
    s_mov_b32 s{sONE}, 1.0
    s_mov_b32 s{sONE+1}, 1.0
    s_mov_b32 s{sMASK}, 0x3fff80
    s_mov_b32 s{sQ3}, 0x88888888
    s_mov_b32 s{sQ3+1}, 0x88888888
    s_mul_i32 s{sM0}, s{sW}, {BSTW}
    s_add_u32 s{sM0}, s{sM0}, {BST}
    s_add_u32 s{sM0+1}, s{sM0}, 1088
    s_add_u32 s{sM0+2}, s{sM0}, 2176
    s_add_u32 s{sM0+3}, s{sM0}, 3264
    s_waitcnt lgkmcnt(0)
    """)
    srd(a,rTAB,sWS,f"{WS_TAB:#x}",NBK*1024)
    a(f"buffer_load_dword v3, v2, s[{rTAB}:{rTAB+3}], 0 offen")
    srd(a,rP16,sWS,f"{WS_P16:#x}",N*16)
    srd(a,rWT,sWS,f"{WS_WT:#x}",WT_SIZE)
    a(f"""
    v_add_lshl_u32 v4, s{sNode0}, v1, 4
    v_bfrev_b32 v5, -2
    v_cmp_gt_u32 vcc, 8, v1
    v_cndmask_b32 v4, v5, v4, vcc
    buffer_load_dwordx4 v[96:99], v4, s[{rP16}:{rP16+3}], 0 offen
    v_lshlrev_b32 v4, 2, v1
    s_mov_b32 s{sT0}, {WT_WXT}
    buffer_load_dword v100, v4, s[{rWT}:{rWT+3}], s{sT0} offen
    """)
    srd(a,rREC,sWS,f"{WS_REC:#x}",NBK*CH*8)
    srd(a,rBT,sWS,f"{WS_BT:#x}",N*128)
    srd(a,rEA,sEAP,None,E*32)
    a(f"s_lshl_b32 s{sT0}, s{sNode0}, 7\ns_lshl_b32 s{sT1}, s{sCnt}, 7")
    srd(a,rH,sH,f"s{sT0}",f"s{sT1}")
    srd(a,rOUT,sOUT,f"s{sT0}",f"s{sT1}")
    a(f"s_mul_i32 s{sT0}, s{sNode0}, 6\ns_add_u32 s{sT0}, s{sT0}, {N*128}\ns_mul_i32 s{sT1}, s{sCnt}, 6")
    srd(a,rOUTP,sOUT,f"s{sT0}",f"s{sT1}")
    a(f"""
    v_mov_b32 v8, 0
    v_mov_b32 v9, 0
    v_mov_b32 v10, 0
    v_mov_b32 v11, 0
    s_lshl_b32 s{sT0}, s{sW}, 11
    s_add_u32 s{sT0}, s{sT0}, {SX}
    v_lshl_add_u32 v4, v1, 4, s{sT0}
    ds_write_b128 v4, v[8:11]
    ds_write_b128 v4, v[8:11] offset:1024
    v_lshlrev_b32 v4, 2, v0
    s_cmp_gt_u32 s{sW}, 8
    s_cbranch_scc1 K2_NOZ
    ds_write_b32 v4, v8 offset:{CNT}
    K2_NOZ:
    """)
    a(f"""
    v_and_b32 v4, 31, v1
    v_lshrrev_b32 v5, 5, v1
    v_bfe_u32 v6, v1, 4, 1
    v_bfe_u32 v7, v1, 2, 2
    v_and_b32 v8, 3, v1
    v_and_b32 v{cDMA}, 7, v1
    v_lshlrev_b32 v{cDMA}, 4, v{cDMA}
    v_lshlrev_b32 v{cHH}, 4, v5
    v_lshl_add_u32 v{aSXW}, v4, 6, s{sT0}
    v_lshl_add_u32 v9, v5, 2, v7
    v_lshl_add_u32 v{aSXR}, v9, 6, s{sT0}
    v_lshl_add_u32 v9, v6, 2, v8
    v_lshl_add_u32 v{aSXR}, v9, 3, v{aSXR}
    v_lshrrev_b32 v9, 1, v7
    v_mul_u32_u24 v{aTR}, 1088, v9
    v_and_b32 v9, 1, v7
    v_lshl_add_u32 v9, v5, 2, v9
    v_lshl_add_u32 v{aTR}, v9, 7, v{aTR}
    v_lshl_add_u32 v{aTR}, v6, 5, v{aTR}
    v_lshl_add_u32 v{aTR}, v8, 3, v{aTR}
    v_add_u32 v{aTR}, s{sM0}, v{aTR}
    s_lshl_b32 s{sT1}, s{sW}, 8
    s_add_u32 s{sT1}, s{sT1}, {PDT+128}
    v_lshlrev_b32 v9, 7, v5
    v_sub_u32 v{cPD}, s{sT1}, v9
    """)
    a(f"""
    v_bfe_u32 v9, v4, 1, 1
    v_bfe_u32 v10, v4, 3, 1
    v_lshl_add_u32 v9, v9, 1, v10
    v_and_b32 v10, 1, v4
    v_lshl_add_u32 v9, v9, 1, v10
    v_xor_b32 v10, v5, v6
    v_lshl_add_u32 v9, v10, 3, v9
    v_bfe_u32 v10, v4, 2, 1
    v_lshlrev_b32 v10, 4, v10
    v_mov_b32 v11, 0x3f80
    v_lshlrev_b32 v10, v10, v11
    """)
    for i in range(8):
        a(f"v_cmp_eq_u32 vcc, {i}, v9\nv_cndmask_b32 v{ID+i}, 0, v10, vcc")
    a("s_waitcnt vmcnt(2)")
    rec_loads(a)
    if PF:
        a(f"""
        s_lshr_b32 s{sT0}, s2, 3
        s_mul_i32 s{sT0}, s{sT0}, {782*128}
        v_lshlrev_b32 v90, 7, v{TID}
        v_cmp_gt_u32 vcc, 782, v{TID}
        v_cndmask_b32 v90, v91, v90, vcc
        buffer_load_dword v95, v90, s[{rBT}:{rBT+3}], s{sT0} offen
        """.replace("v_cmp_gt_u32 vcc, 782,","v_cmp_gt_u32 vcc, 0x30e,"))
    a(f"""
    v_and_b32 v90, 63, v{TID}
    v_subrev_u32 v93, 8, v90
    v_and_b32 v94, 1, v93
    v_lshlrev_b32 v94, 4, v94
    v_mov_b32 v101, 0x3f80
    v_lshlrev_b32 v94, v94, v101
    v_lshrrev_b32 v93, 1, v93
    s_waitcnt vmcnt({4+PF})
    """)
    for i in range(4):
        a(f"v_cmp_eq_u32 vcc, {i}, v93\nv_cndmask_b32 v{96+i}, v{96+i}, v94, vcc")
    a(f"""
    s_sub_u32 s{sT1}, s{sT1}, 128
    v_lshl_add_u32 v93, v90, 4, s{sT1}
    s_mov_b64 exec, 0xffff
    ds_write_b128 v93, v[96:99]
    s_mov_b64 exec, -1
    v_lshlrev_b32 v93, 2, v90
    v_mov_b32 v101, {LN2_NEG:#x}
    ds_write_b32 v93, v100 offset:{WXL}
    ds_write_b32 v93, v101 offset:{WXL+256}
    s_waitcnt lgkmcnt(0)
    s_barrier
    s_waitcnt vmcnt({PF})
    s_branch K2_HAVE
    K2_ROUND:
    s_barrier
    v_lshrrev_b32 v2, 2, v{TID}
    s_lshl_b32 s{sT0}, s2, 2
    v_lshl_add_u32 v2, v2, 10, s{sT0}
    buffer_load_dword v3, v2, s[{rTAB}:{rTAB+3}], 0 offen
    v_mov_b32 v8, 0
    v_lshlrev_b32 v4, 2, v{TID}
    s_cmp_ge_u32 s{sW}, 4
    s_cbranch_scc1 K2_NOZ2
    ds_write_b32 v4, v8 offset:{CNT}
    K2_NOZ2:
    s_waitcnt vmcnt(0)
    """)
    rec_loads(a)
    a(f"""
    s_waitcnt lgkmcnt(0)
    s_barrier
    s_waitcnt vmcnt(0)
    K2_HAVE:
    v_cmp_lt_u32 vcc, 32, v92
    v_mov_b32 v93, {MAXC}
    v_mov_b32 v94, 1
    s_mov_b64 exec, vcc
    s_cbranch_execz K2_NOMAX
    ds_max_u32 v93, v92
    K2_NOMAX:
    """)
    for k in range(8):
        a(f"""
        s_mov_b64 exec, s[{sV+2*k}:{sV+2*k+1}]
        s_cbranch_execz K2_ATOM_DONE
        v_lshrrev_b32 v{16+k}, 22, v{2*k}
        ds_add_rtn_u32 v{24+k}, v{16+k}, v94 offset:{CNT}
        """)
    a(f"""
    K2_ATOM_DONE:
    s_mov_b64 exec, -1
    s_waitcnt lgkmcnt(0)
    s_barrier
    v_and_b32 v100, 63, v{TID}
    v_lshlrev_b32 v101, 4, v100
    ds_read_b128 v[88:91], v101 offset:{CNT}
    ds_read_b32 v102, v93
    s_lshl_b32 s{sT0}, s{sW}, 2
    s_waitcnt lgkmcnt(0)
    v_readfirstlane_b32 s{sMaxc}, v102
    v_add_u32 v89, v88, v89
    v_add_u32 v90, v89, v90
    v_add_u32 v91, v90, v91
    v_add_u32_dpp v92, v91, v91 quad_perm:[1,0,3,2] row_mask:0xf bank_mask:0xf
    v_add_u32_dpp v92, v92, v92 quad_perm:[2,3,0,1] row_mask:0xf bank_mask:0xf
    v_sub_u32 v93, 0, v92
    v_and_b32 v93, 31, v93
    v_cndmask_b32 v93, 0, v93, s[{sQ3}:{sQ3+1}]
    v_add_u32 v94, v91, v93
    v_mov_b32 v103, v94
    """)
    wave_scan(a,103)
    a(f"""
    v_sub_u32 v96, v103, v94
    v_add_u32 v97, v96, v88
    v_add_u32 v98, v96, v89
    v_add_u32 v99, v96, v90
    ds_write_b128 v101, v[96:99] offset:{BASE}
    v_readlane_b32 s{sTot}, v103, 63
    v_readlane_b32 s{sGb}, v96, s{sT0}
    v_readlane_b32 s{sNT}, v92, s{sT0}
    s_cmp_le_u32 s{sTot}, {LCAP}
    s_cbranch_scc1 K2_FITS
    s_add_u32 s{sBhi}, s{sBlo}, 4
    s_waitcnt lgkmcnt(0)
    s_branch K2_ROUND
    K2_FITS:
    """)
    for k in range(8):
        a(f"""
        s_mov_b64 exec, s[{sV+2*k}:{sV+2*k+1}]
        s_cbranch_execz K2_BR_DONE
        ds_read_b32 v{16+k}, v{16+k} offset:{BASE}
        """)
    a(f"""
    K2_BR_DONE:
    s_add_u32 s{sT1}, s{sGb}, s{sNT}
    s_sub_u32 s{sT2}, 0, s{sNT}
    s_and_b32 s{sT2}, s{sT2}, 31
    s_mov_b64 exec, -1
    v_add_lshl_u32 v101, s{sT1}, v100, 2
    v_cmp_gt_u32 vcc, s{sT2}, v100
    v_mov_b32 v102, 7
    v_mov_b32 v103, 0
    s_mov_b64 exec, vcc
    ds_write2st64_b32 v101, v102, v103 offset0:{L0//256} offset1:{L1//256}
    s_waitcnt lgkmcnt(0)
    """)
    for k in range(8):
        a(f"""
        s_mov_b64 exec, s[{sV+2*k}:{sV+2*k+1}]
        s_cbranch_execz K2_LW_DONE
        v_add_lshl_u32 v{16+k}, v{16+k}, v{24+k}, 2
        ds_write2st64_b32 v{16+k}, v{2*k}, v{2*k+1} offset0:{L0//256} offset1:{L1//256}
        """)
    a(f"""
    K2_LW_DONE:
    s_mov_b64 exec, -1
    s_lshl_b32 s{sT0}, s{sGb}, 2
    s_add_u32 s{sT0}, s{sT0}, {L0}
    v_lshrrev_b32 v101, 3, v100
    v_lshl_add_u32 v{aL4}, v101, 4, s{sT0}
    v_and_b32 v101, 31, v100
    v_lshl_add_u32 v{aLE}, v101, 2, s{sT0}
    s_add_u32 s{sNT}, s{sNT}, 31
    s_lshr_b32 s{sNT}, s{sNT}, 5
    v_mov_b32 v{SXA}, v{aSXW}
    s_waitcnt lgkmcnt(0)
    s_barrier
    """)
    a(idx_reads())
    a(f"""
    s_cmp_eq_u32 s{sFirst}, 0
    s_cbranch_scc1 K2_NF1
    v_and_b32 v102, 3, v101
    v_lshrrev_b32 v103, 3, v101
    v_lshl_add_u32 v102, v103, 2, v102
    v_lshlrev_b32 v102, 7, v102
    v_add_u32 v102, v102, v{cHH}
    v_and_b32 v103, 20, v101
    v_cmp_eq_u32 vcc, 0, v103
    v_bfrev_b32 v103, -2
    v_cndmask_b32 v102, v103, v102, vcc
    v_lshlrev_b32 v100, 4, v100
    v_lshlrev_b32 v101, 2, v101
    """)
    for s in range(4): a(f"buffer_load_dwordx4 {vr(4*s,4)}, v102, s[{rH}:{rH+3}], 0 offen offset:{32*s}")
    for i in range(8):
        a(f"s_mov_b32 s{sT0}, {WT_W1T+(i//4)*4096}" if i%4==0 else "")
        a(f"buffer_load_dwordx4 {vr(D2+4*i,4)}, v100, s[{rWT}:{rWT+3}], s{sT0} offen offset:{(i%4)*1024}")
    a(f"s_mov_b32 s{sT0}, {WT_W3T}")
    for p in range(2): a(f"buffer_load_dwordx4 {vr(W3+4*p,4)}, v100, s[{rWT}:{rWT+3}], s{sT0} offen offset:{p*1024}")
    a(f"s_mov_b32 s{sT0}, {WT_WDT}")
    for p in range(2): a(f"buffer_load_dword v{AG+2+4*p}, v101, s[{rWT}:{rWT+3}], s{sT0} offen offset:{p*128}")
    a("K2_NF1:\ns_waitcnt lgkmcnt(0)")
    a(issue_loads(opt)); a(oh_read())
    a(f"""
    s_cmp_eq_u32 s{sFirst}, 0
    s_cbranch_scc1 K2_NF2
    s_mov_b32 s{sFirst}, 0
    s_mov_b32 s{sK}, {LOG2E_NEG:#x}
    s_mov_b32 s{sK+1}, {LOG2E_NEG:#x}
    s_waitcnt vmcnt(6)
    """)
    ACC=(16,88)
    for p in range(2):
        for s in range(4):
            a(mf(ACC[p], 4*s, D2+8*s+4*p, None if s==0 else ACC[p]))
    for i in range(32): a(f"v_mov_b32 v{D2+i}, 0") if i>=0 else None
    for p in range(2):
        for i in range(4): a(f"v_pk_mul_f32 {vr(ACC[p]+2*i,2)}, {vr(ACC[p]+2*i,2)}, s[{sK}:{sK+1}]")
    a("s_mov_b32 exec_hi, 0")
    for p in range(2):
        for i in range(4): a(f"v_cvt_pk_bf16_f32 v{AG+4*p+i}, v{ACC[p]+2*i}, v{ACC[p]+2*i+1}")
    a(f"s_mov_b64 exec, s[{sHI}:{sHI+1}]")
    for p in range(2):
        for i in (0,1,3): a(f"v_mov_b32 v{AG+4*p+i}, 0")
    a("s_mov_b64 exec, -1")
    a(f"""
    K2_NF2:
    """)
    for i in (0,1,2,3,8,9,10,11): a(f"v_mov_b32 v{D1+16+i}, 0")
    a(f"""
    s_waitcnt vmcnt(0)
    s_cmp_eq_u32 s{sNT}, 0
    s_cbranch_scc1 K2_RND_END
    """)
    a(bst_reads(0)); a("s_waitcnt lgkmcnt(4)"); a(edge())
    a(mf(D1,EA,W3)); a("s_waitcnt lgkmcnt(2)"); a(mf(D1,ID,T0,D1)); a("s_waitcnt lgkmcnt(0)"); a(mf(D1,ID+4,T1,D1)); a(mf(D1,OH,AG,D1))
    a(sx_reads())
    a(f"""
    s_nop 3
    s_cmp_eq_u32 s{sNT}, 1
    s_cbranch_scc1 K2_LAST
    .p2align 3
    K2_TILE:
    """)
    phaseX(a,opt,False); phaseY(a,opt,False)
    a(f"""
    s_sub_u32 s{sNT}, s{sNT}, 1
    s_cmp_lg_u32 s{sNT}, 1
    s_cbranch_scc1 K2_TILE
    K2_LAST:
    """)
    phaseX(a,opt,True); phaseY(a,opt,True)
    a("s_waitcnt lgkmcnt(2)"); a(g2(1,0)); a("s_waitcnt lgkmcnt(0)"); a(g2(1,1))
    a(f"s_mov_b64 exec, s[{sHI}:{sHI+1}]"); a(sx_zero()); a("s_mov_b64 exec, -1")
    a(f"""
    K2_RND_END:
    s_waitcnt lgkmcnt(0)
    s_cmp_ge_u32 s{sBhi}, 16
    s_cbranch_scc1 K2_NEXTLAYER
    s_mov_b32 s{sBlo}, s{sBhi}
    s_add_u32 s{sBhi}, s{sBhi}, 4
    s_branch K2_ROUND
    K2_NEXTLAYER:
    s_add_u32 s{sLayer}, s{sLayer}, 1
    s_mov_b32 s{sBlo}, 0
    s_lshl_b32 s{sT0}, s{sLayer}, 5
    s_cmp_lt_u32 s{sT0}, s{sMaxc}
    s_cbranch_scc1 K2_ROUND
    """)
    a(f"""
    v_and_b32 v31, 63, v{TID}
    v_lshlrev_b32 v28, 4, v31
    v_and_b32 v12, 15, v31
    v_lshrrev_b32 v13, 4, v31
    v_lshrrev_b32 v14, 2, v12
    v_and_b32 v15, 1, v31
    v_lshl_add_u32 v14, v14, 1, v15
    v_lshlrev_b32 v15, 7, v14
    v_lshl_add_u32 v15, v13, 4, v15
    v_lshlrev_b32 v29, 8, v13
    v_lshl_add_u32 v29, v12, 3, v29
    buffer_load_dwordx4 v[0:3], v15, s[{rH}:{rH+3}], 0 offen
    buffer_load_dwordx4 v[4:7], v15, s[{rH}:{rH+3}], 0 offen offset:64
    buffer_load_dwordx2 v[8:9], v29, s[{rH}:{rH+3}], 0 offen
    buffer_load_dwordx2 v[10:11], v29, s[{rH}:{rH+3}], 0 offen offset:128
    """)
    for i in range(16):
        if i%4==0: a(f"s_mov_b32 s{sT0}, {WT_WHT+(i//4)*4096}")
        a(f"buffer_load_dwordx4 {vr(64+4*i,4)}, v28, s[{rWT}:{rWT+3}], s{sT0} offen offset:{(i%4)*1024}")
    a(f"""
    v_mul_u32_u24 v30, 144, v14
    v_lshl_add_u32 v30, v13, 4, v30
    v_add_u32 v30, s{sM0}, v30
    v_lshrrev_b32 v13, 5, v31
    v_lshlrev_b32 v28, 7, v13
    v_and_b32 v12, 3, v31
    v_cmp_eq_u32 vcc, 0, v12
    v_mov_b32 v14, 256
    v_cndmask_b32 v28, v28, v14, vcc
    s_mov_b64 s[{sV}:{sV+1}], vcc
    """)
    for p in range(2):
        for q in range(4): a(f"ds_read_b128 {vr(12+4*q,4)}, v28 offset:{WXL+64*p+16*q}")
        a("s_waitcnt lgkmcnt(0)")
        for i in range(8): a(f"v_pk_mul_f32 {vr(D2+16*p+2*i,2)}, {vr(D2+16*p+2*i,2)}, {vr(12+2*i,2)}")
    a(f"""
    v_bfe_u32 v12, v31, 2, 3
    v_mul_u32_u24 v28, 144, v12
    v_lshrrev_b32 v13, 5, v31
    v_lshl_add_u32 v28, v13, 3, v28
    v_add_u32 v28, s{sM0}, v28
    v_and_b32 v14, 3, v31
    v_lshlrev_b32 v15, 4, v12
    v_lshl_add_u32 v15, v14, 2, v15
    s_lshl_b32 s{sT1}, s{sW}, 8
    s_add_u32 s{sT1}, s{sT1}, {PDT-4}
    v_add_u32 v15, s{sT1}, v15
    ds_read_b32 v16, v15
    v_mul_u32_u24 v12, 6, v12
    v_lshl_add_u32 v12, v14, 1, v12
    v_subrev_u32 v12, 2, v12
    s_mov_b64 exec, s[{sV}:{sV+1}]
    """)
    for p in range(2):
        for q in range(4):
            b=D2+16*p+4*q
            a(f"v_cvt_pk_bf16_f32 v{b}, v{b}, v{b+1}\nv_cvt_pk_bf16_f32 v{b+1}, v{b+2}, v{b+3}\nds_write_b64 v28, {vr(b,2)} offset:{64*p+16*q}")
    a(f"s_not_b64 exec, exec")
    st=16
    while st>=2:
        for i in range(0,st,2): a(f"v_pk_add_f32 {vr(D2+i,2)}, {vr(D2+i,2)}, {vr(D2+st+i,2)}")
        st//=2
    a(f"""
    v_add_f32 v32, v32, v33
    s_mov_b64 exec, -1
    v_mov_b32 v33, v32
    v_permlane32_swap_b32 v32, v33
    v_add_f32 v32, v32, v33
    s_waitcnt lgkmcnt(0)
    v_add_f32 v32, v32, v16
    v_cvt_pk_bf16_f32 v32, v32, v32
    s_mov_b32 exec_lo, 0xeeeeeeee
    s_mov_b32 exec_hi, 0
    buffer_store_short v32, v12, s[{rOUTP}:{rOUTP+3}], 0 offen
    s_mov_b64 exec, -1
    ds_read_b128 v[36:39], v30
    ds_read_b128 v[40:43], v30 offset:64
    s_waitcnt vmcnt(1)
    """)
    D3=44
    XA=(0,4,36,40)
    for s in range(4):
        if s==2: a("s_waitcnt lgkmcnt(0)")
        for q in range(4):
            c="0" if s==0 else vr(D3+4*q,4)
            a(f"v_mfma_f32_16x16x32_bf16 {vr(D3+4*q,4)}, {vr(XA[s],4)}, {vr(64+16*s+4*q,4)}, {c}")
    for r in range(2):
        a(f"""
        v_lshlrev_b32 v{12+4*r}, 16, v{8+2*r}
        v_and_b32 v{13+4*r}, 0xffff0000, v{8+2*r}
        v_lshlrev_b32 v{14+4*r}, 16, v{9+2*r}
        v_and_b32 v{15+4*r}, 0xffff0000, v{9+2*r}
        """)
    Z=[(r,q) for r in range(2) for q in range(4)]
    for k,(r,q) in enumerate(Z): a(f"v_mul_f32 v{20+k}, {LOG2E_NEG:#x}, v{D3+4*q+r}")
    for k in range(8): a(f"v_exp_f32 v{20+k}, v{20+k}")
    for k in range(8): a(f"v_add_f32 v{20+k}, 1.0, v{20+k}")
    for k in range(8): a(f"v_rcp_f32 v{20+k}, v{20+k}")
    for k,(r,q) in enumerate(Z): a(f"v_fmac_f32 v{12+k}, v{20+k}, v{D3+4*q+r}")
    for r in range(2):
        a(f"""
        v_cvt_pk_bf16_f32 v{20+2*r}, v{12+4*r}, v{13+4*r}
        v_cvt_pk_bf16_f32 v{21+2*r}, v{14+4*r}, v{15+4*r}
        buffer_store_dwordx2 {vr(20+2*r,2)}, v29, s[{rOUT}:{rOUT+3}], 0 offen offset:{128*r}
        """)
    a("K2_END:\ns_endpgm")
    return a
```

```python
import sys, json
from cfg import *
from k1 import gen_k1, K1_LDS
from k2 import gen_k2, K2_LDS
HDR=open('gather_scatter__cheap_equivariant_egnn__graph.s.ref').read().split('; Override launch')[0]
def kd(name,vg,sg):
    return f""".amdhsa_kernel {name}
  .amdhsa_next_free_vgpr {vg}
  .amdhsa_next_free_sgpr {sg}
  .amdhsa_accum_offset {vg}
  .amdhsa_group_segment_fixed_size 0
  .amdhsa_kernarg_size 88
  .amdhsa_user_sgpr_count 2
  .amdhsa_user_sgpr_kernarg_segment_ptr 1
  .amdhsa_system_sgpr_workgroup_id_x 1
  .amdhsa_float_denorm_mode_32 3
.end_amdhsa_kernel
"""
def build(opt,verbose=False):
    k1,n1=gen_k1(opt).get(verbose); k2,n2=gen_k2(opt).get(verbose)
    s=HDR
    s+=f"; @launch kernel=egnn_part_kernel grid=({NBK},1,1) block=(1024,1,1) lds={(K1_LDS+63)//64*64}\n"
    s+=f"; @launch kernel=egnn_main_kernel grid=({NBK},1,1) block=(1024,1,1) lds={K2_LDS}\n"
    s+='.amdgcn_target "amdgcn-amd-amdhsa--gfx950"\n.text\n'
    for name,body in (('egnn_part_kernel',k1),('egnn_main_kernel',k2)):
        s+=f".globl {name}\n.p2align 8\n.type {name},@function\n{name}:\n"+"\n".join(body)+"\n"
    s+='.section .rodata,"a"\n.p2align 6\n'+kd('egnn_part_kernel',128,80)+'.p2align 6\n'+kd('egnn_main_kernel',128,96)
    return s,(n1,n2)
if __name__=='__main__':
    out=sys.argv[1]; opt=json.loads(sys.argv[2]) if len(sys.argv)>2 else {}
    s,n=build(opt,verbose=opt.get('v',0)); open(out,'w').write(s); print('nops',n,'bytes',len(s))
```

```python
from asmlib import *
from cfg import *

def srd(a, s, base_lo, off=None, size=None, w1or=0):
    if off is None:
        a(f"s_mov_b32 s{s}, s{base_lo}\ns_mov_b32 s{s+1}, s{base_lo+1}")
    else:
        a(f"s_add_u32 s{s}, s{base_lo}, {off}\ns_addc_u32 s{s+1}, s{base_lo+1}, 0")
    if w1or: a(f"s_or_b32 s{s+1}, s{s+1}, {w1or:#x}")
    a(f"s_mov_b32 s{s+2}, {size}\ns_mov_b32 s{s+3}, 0x20000")

def wave_scan(a, v):
    for sh in (1,2,4,8):
        a(f"v_add_u32_dpp v{v}, v{v}, v{v} row_shr:{sh} row_mask:0xf bank_mask:0xf bound_ctrl:1")
    a(f"v_add_u32_dpp v{v}, v{v}, v{v} row_bcast:15 row_mask:0xa bank_mask:0xf")
    a(f"v_add_u32_dpp v{v}, v{v}, v{v} row_bcast:31 row_mask:0xc bank_mask:0xf")

def stamp(a,opt,k):
    if opt.get('stamp'):
        a(f"s_memrealtime s[92:93]\ns_waitcnt lgkmcnt(0)\ns_mov_b32 s{94+k}, s92")
def stamp_out(a,opt,which,sWS,sW,v0,v1):
    if opt.get('stamp'):
        a(f"s_lshl_b32 s92, s2, 4\ns_add_u32 s92, s92, s{sW}\ns_lshl_b32 s92, s92, 5\ns_add_u32 s92, s92, {WS_ST+which*131072}")
        a(f"s_add_u32 s92, s{sWS}, s92\ns_addc_u32 s93, s{sWS+1}, 0\nv_mov_b32 v{v1}, 0")
        for i in range(8): a(f"v_mov_b32 v{v0+i}, s{94+i}")
        a(f"s_mov_b64 exec, 1\nglobal_store_dwordx4 v{v1}, v[{v0}:{v0+3}], s[92:93]\nglobal_store_dwordx4 v{v1}, v[{v0+4}:{v0+7}], s[92:93] offset:16")

CNT=0; BASE=1024; W2L=2048; BOUT=10240; RECS=26624; K1_LDS=RECS+CH*8

def gen_k1(opt):
    a=Asm()
    ST=opt.get('k1_store','sc1'); LD=opt.get('k1_load','nt')
    sH,sPOSP,sSRC,sDST,sWE,sWX,sWH,sWS=4,6,8,10,12,14,16,18
    rDST,rSRC,rH,rPOS,rWE,rREC,rTAB,rBT,rP16,rX,rY=20,24,28,32,36,40,44,48,52,56,60
    sW,sN,sNN,sT0,sT1,sT2,sT3=64,65,66,67,68,69,70
    sL=72
    sVAL=74
    a(f"""
    s_cmp_ge_u32 s2, {NBK}
    s_cbranch_scc1 K1_END
    s_load_dwordx4 s[4:7], s[0:1], 0
    s_load_dwordx4 s[8:11], s[0:1], 24
    s_load_dwordx4 s[12:15], s[0:1], 40
    s_load_dwordx2 s[16:17], s[0:1], 56
    s_load_dwordx2 s[18:19], s[0:1], 80
    v_lshrrev_b32 v1, 6, v0
    v_and_b32 v2, 63, v0
    v_readfirstlane_b32 s{sW}, v1
    v_lshlrev_b32 v3, 4, v0
    s_mul_i32 s{sT0}, s2, {CH}
    s_sub_u32 s{sN}, {E}, s{sT0}
    s_min_u32 s{sN}, s{sN}, {CH}
    s_mul_i32 s{sT1}, s2, {NB}
    s_sub_u32 s{sNN}, {N}, s{sT1}
    s_min_u32 s{sNN}, s{sNN}, {NB}
    s_mov_b32 s{sL}, {LOG2E_NEG:#x}
    s_mov_b32 s{sL+1}, {LOG2E_NEG:#x}
    s_lshl_b32 s{sT2}, s{sT0}, 2
    s_lshl_b32 s{sT3}, s{sN}, 2
    s_waitcnt lgkmcnt(0)
    """)
    for k in range(8): stamp(a,opt,k)
    srd(a,rDST,sDST,f"s{sT2}",f"s{sT3}")
    srd(a,rSRC,sSRC,f"s{sT2}",f"s{sT3}")
    srd(a,rWE,sWE,None,145*128)
    a(f"""
    s_cmp_ge_u32 s{sW}, 8
    s_cbranch_scc1 K1_NODMA
    s_lshl_b32 s{sT2}, s{sW}, 10
    s_add_u32 m0, s{sT2}, {W2L}
    v_add_u32 v4, {64*128}, v3
    buffer_load_dwordx4 v4, s[{rWE}:{rWE+3}], 0 offen lds
    K1_NODMA:
    buffer_load_dwordx4 v[8:11], v3, s[{rDST}:{rDST+3}], 0 offen {LD}
    buffer_load_dwordx4 v[12:15], v3, s[{rSRC}:{rSRC+3}], 0 offen {LD}
    """)
    a(f"s_lshl_b32 s{sT2}, s{sT1}, 7\ns_lshl_b32 s{sT3}, s{sNN}, 7")
    srd(a,rH,sH,f"s{sT2}",f"s{sT3}")
    a(f"s_add_u32 s{sT2}, s{sT2}, {WS_BT:#x}")
    srd(a,rBT,sWS,f"s{sT2}",f"s{sT3}")
    a(f"s_mul_i32 s{sT2}, s{sT1}, 6\ns_mul_i32 s{sT3}, s{sNN}, 6")
    srd(a,rPOS,sPOSP,f"s{sT2}",f"s{sT3}")
    a(f"s_lshl_b32 s{sT2}, s{sT1}, 4\ns_add_u32 s{sT2}, s{sT2}, {WS_P16:#x}\ns_lshl_b32 s{sT3}, s{sNN}, 4")
    srd(a,rP16,sWS,f"s{sT2}",f"s{sT3}")
    a(f"s_lshl_b32 s{sT2}, s{sT0}, 3\ns_add_u32 s{sT2}, s{sT2}, {WS_REC:#x}\ns_lshl_b32 s{sT3}, s{sN}, 3")
    srd(a,rREC,sWS,f"s{sT2}",f"s{sT3}")
    a(f"s_lshl_b32 s{sT2}, s2, 10\ns_add_u32 s{sT2}, s{sT2}, {WS_TAB:#x}")
    srd(a,rTAB,sWS,f"s{sT2}",1024)
    HB=32
    a(f"""
    s_cmp_lt_u32 s{sW}, 12
    s_cbranch_scc1 K1_NOH
    s_sub_u32 s{sT2}, 15, s{sW}
    s_lshl_b32 s{sT2}, s{sT2}, 12
    v_and_b32 v5, 31, v2
    v_lshrrev_b32 v6, 5, v2
    v_lshlrev_b32 v7, 7, v5
    v_lshl_add_u32 v7, v6, 4, v7
    v_add_u32 v7, s{sT2}, v7
    """)
    for s in range(4): a(f"buffer_load_dwordx4 v[{HB+4*s}:{HB+4*s+3}], v7, s[{rH}:{rH+3}], 0 offen offset:{32*s}")
    a(f"""
    s_cmp_eq_u32 s{sW}, 12
    s_cbranch_scc1 K1_NOH
    s_cmp_eq_u32 s{sW}, 15
    s_cbranch_scc1 K1_PREP
    v_subrev_u32 v16, {13*64}, v0
    v_mul_u32_u24 v17, 6, v16
    buffer_load_ushort v48, v17, s[{rPOS}:{rPOS+3}], 0 offen
    buffer_load_ushort v49, v17, s[{rPOS}:{rPOS+3}], 0 offen offset:2
    buffer_load_ushort v50, v17, s[{rPOS}:{rPOS+3}], 0 offen offset:4
    v_lshlrev_b32 v16, 4, v16
    s_branch K1_NOH
    K1_PREP:
    s_cmp_ge_u32 s2, 26
    s_cbranch_scc1 K1_PREP2
    """)
    a(f"""
    s_cmp_ge_u32 s2, 10
    s_cbranch_scc1 K1_PWH
    s_lshr_b32 s{sT2}, s2, 1
    s_lshl_b32 s{sT2}, s{sT2}, 4
    s_cmp_ge_u32 s2, 8
    s_cselect_b32 s{sT2}, 129, s{sT2}
    s_and_b32 s{sT3}, s2, 1
    s_lshl_b32 s{sT3}, s{sT3}, 6
    s_lshl_b32 s{sT2}, s{sT2}, 7
    s_add_u32 s{sT2}, s{sT2}, s{sT3}
    v_lshlrev_b32 v17, 10, v6
    v_lshl_add_u32 v17, v5, 1, v17
    v_add_u32 v17, s{sT2}, v17
    s_mov_b32 s{rX}, s{sWE}
    s_mov_b32 s{rX+1}, s{sWE+1}
    s_mov_b32 s{rX+2}, {145*128}
    s_branch K1_PLD
    K1_PWH:
    s_sub_u32 s{sT2}, s2, 10
    s_and_b32 s{sT3}, s{sT2}, 3
    s_lshr_b32 s{sT2}, s{sT2}, 2
    s_lshl_b32 s{sT2}, s{sT2}, 12
    s_lshl_b32 s{sT3}, s{sT3}, 1
    s_add_u32 s{sT2}, s{sT2}, s{sT3}
    v_lshrrev_b32 v17, 4, v2
    v_lshlrev_b32 v17, 10, v17
    v_and_b32 v18, 15, v2
    v_lshl_add_u32 v17, v18, 3, v17
    v_add_u32 v17, s{sT2}, v17
    s_mov_b32 s{rX}, s{sWH}
    s_mov_b32 s{rX+1}, s{sWH+1}
    s_mov_b32 s{rX+2}, {128*128}
    K1_PLD:
    s_mov_b32 s{rX+3}, 0x20000
    """)
    for j in range(8): a(f"buffer_load_ushort v{48+j}, v17, s[{rX}:{rX+3}], 0 offen offset:{128*j}")
    a(f"""
    s_branch K1_NOH
    K1_PREP2:
    s_cmp_lg_u32 s2, 26
    s_cbranch_scc1 K1_NOH
    """)
    srd(a,rX,sWX,None,128)
    a(f"""
    v_lshlrev_b32 v17, 1, v2
    v_add_u32 v17, {128*128}, v17
    buffer_load_ushort v48, v17, s[{rWE}:{rWE+3}], 0 offen
    v_and_b32 v18, 3, v2
    v_bfe_u32 v19, v2, 2, 2
    v_lshl_add_u32 v18, v19, 3, v18
    v_lshl_add_u32 v18, v6, 2, v18
    v_bfe_u32 v19, v2, 4, 1
    v_lshl_add_u32 v18, v19, 5, v18
    v_lshlrev_b32 v18, 1, v18
    buffer_load_ushort v49, v18, s[{rX}:{rX+3}], 0 offen
    K1_NOH:
    """)
    a(f"""
    v_mov_b32 v20, 0
    s_cmp_ge_u32 s{sW}, 4
    s_cbranch_scc1 K1_NOZ
    v_lshlrev_b32 v21, 2, v0
    ds_write_b32 v21, v20 offset:{CNT}
    K1_NOZ:
    s_lshr_b32 s{sT2}, s{sN}, 2
    v_cmp_gt_u32 s[{sVAL}:{sVAL+1}], s{sT2}, v0
    s_cmp_ge_u32 s{sW}, 8
    s_cbranch_scc1 K1_B1
    s_waitcnt vmcnt(2)
    K1_B1:
    s_waitcnt lgkmcnt(0)
    s_barrier
    s_cmp_ge_u32 s{sW}, 13
    s_cbranch_scc1 K1_NOSORT1
    s_cmp_eq_u32 s{sW}, 12
    s_cbranch_scc1 K1_W12
    s_waitcnt vmcnt(0)
    K1_W12:
    s_waitcnt vmcnt(4)
    """)
    stamp(a,opt,1)
    for j in range(4):
        d=8+j; s=12+j
        a(f"""
        v_mul_u32_u24 v20, 42800, v{d}
        v_lshrrev_b32 v20, 21, v20
        v_mul_u32_u24 v21, 49, v20
        v_sub_u32 v21, v{d}, v21
        v_mul_u32_u24 v22, 43, v21
        v_lshrrev_b32 v22, 8, v22
        v_min_u32 v22, 7, v22
        v_mul_u32_u24 v23, 6, v22
        v_sub_u32 v21, v21, v23
        v_and_b32 v23, 1, v20
        v_add_u32 v22, v22, v23
        v_and_b32 v22, 7, v22
        v_lshl_or_b32 v22, v23, 3, v22
        v_lshlrev_b32 v{d}, 1, v20
        v_and_b32 v{d}, 0x3fc, v{d}
        v_lshrrev_b32 v23, {BANDSH}, v{s}
        v_lshl_or_b32 v23, v22, 4, v23
        v_lshl_or_b32 v21, v{s}, 7, v21
        v_lshl_or_b32 v{s}, v23, 24, v21
        """)
    a(f"v_mov_b32 v20, 1\ns_mov_b64 exec, s[{sVAL}:{sVAL+1}]")
    for j in range(4): a(f"ds_add_rtn_u32 v{24+j}, v{8+j}, v20 offset:{CNT}")
    a(f"""
    s_mov_b64 exec, -1
    s_waitcnt lgkmcnt(0)
    K1_NOSORT1:
    s_barrier
    """)
    stamp(a,opt,2)
    a(f"""
    s_cmp_ge_u32 s{sW}, 13
    s_cbranch_scc1 K1_NOSORT2
    v_lshlrev_b32 v21, 4, v2
    ds_read_b128 v[28:31], v21 offset:{CNT}
    s_waitcnt lgkmcnt(0)
    v_add_u32 v29, v28, v29
    v_add_u32 v30, v29, v30
    v_add_u32 v31, v30, v31
    v_mov_b32 v20, v31
    """)
    wave_scan(a,20)
    a(f"""
    v_sub_u32 v16, v20, v31
    v_add_u32 v17, v16, v28
    v_add_u32 v18, v16, v29
    v_add_u32 v19, v16, v30
    ds_write_b128 v21, v[16:19] offset:{BASE}
    """)
    for j in range(4): a(f"ds_read_b32 v{8+j}, v{8+j} offset:{BASE}")
    a(f"""
    s_cmp_lg_u32 s{sW}, 0
    s_cbranch_scc1 K1_NOTAB
    v_lshl_or_b32 v28, v17, 16, v16
    v_lshl_or_b32 v29, v18, 16, v17
    v_lshl_or_b32 v30, v19, 16, v18
    v_lshl_or_b32 v31, v20, 16, v19
    buffer_store_dwordx4 v[28:31], v21, s[{rTAB}:{rTAB+3}], 0 offen {ST}
    K1_NOTAB:
    s_lshl_b32 s{sT2}, s{sT0}, 5
    v_lshlrev_b32 v22, 7, v0
    v_add_u32 v22, s{sT2}, v22
    s_waitcnt lgkmcnt(0)
    s_mov_b64 exec, s[{sVAL}:{sVAL+1}]
    """)
    for j in range(4):
        a(f"""
        v_add_lshl_u32 v{8+j}, v{8+j}, v{24+j}, 3
        v_mov_b32 v{52+2*j}, v{12+j}
        v_add_u32 v{53+2*j}, {32*j}, v22
        ds_write_b64 v{8+j}, v[{52+2*j}:{53+2*j}] offset:{RECS}
        """)
    a(f"""
    s_mov_b64 exec, -1
    K1_NOSORT2:
    s_cmp_lt_u32 s{sW}, 12
    s_cbranch_scc1 K1_NOGEMM
    """)
    a(f"""
    v_bfe_u32 v16, v2, 2, 2
    v_lshl_add_u32 v16, v6, 3, v16
    v_lshlrev_b32 v16, 7, v16
    v_and_b32 v17, 1, v2
    v_lshl_add_u32 v16, v17, 5, v16
    v_bfe_u32 v17, v2, 4, 1
    v_lshl_add_u32 v16, v17, 4, v16
    v_bfe_u32 v17, v2, 1, 1
    v_lshl_add_u32 v16, v17, 3, v16
    """)
    WA=64
    for p in range(2):
        for s in range(4):
            for jj in range(2):
                a(f"ds_read_b64_tr_b16 v[{WA+16*p+4*s+2*jj}:{WA+16*p+4*s+2*jj+1}], v16 offset:{W2L+s*2048+jj*512+64*p}")
    a("s_waitcnt vmcnt(0) lgkmcnt(8)")
    DD=96
    for p in range(2):
        if p==1: a("s_waitcnt lgkmcnt(0)")
        for s in range(4):
            c = "0" if s==0 else vr(DD+16*p,16)
            a(f"v_mfma_f32_32x32x16_bf16 {vr(DD+16*p,16)}, {vr(WA+16*p+4*s,4)}, {vr(HB+4*s,4)}, {c}")
    a(f"""
    s_cmp_eq_u32 s{sW}, 12
    s_cbranch_scc1 K1_SIDE_DONE
    s_cmp_eq_u32 s{sW}, 15
    s_cbranch_scc1 K1_SIDE_PREP
    v_subrev_u32 v16, {13*64}, v0
    v_lshlrev_b32 v16, 4, v16
    v_lshlrev_b32 v48, 16, v48
    v_lshlrev_b32 v49, 16, v49
    v_lshlrev_b32 v50, 16, v50
    v_mov_b32 v51, 0
    buffer_store_dwordx4 v[48:51], v16, s[{rP16}:{rP16+3}], 0 offen {ST}
    s_branch K1_SIDE_DONE
    K1_SIDE_PREP:
    s_cmp_gt_u32 s2, 26
    s_cbranch_scc1 K1_SIDE_DONE
    """)
    srd(a,rY,sWS,f"{WS_WT:#x}",WT_SIZE)
    a(f"""
    s_cmp_eq_u32 s2, 26
    s_cbranch_scc1 K1_SIDE_WD
    s_lshr_b32 s{sT2}, s2, 1
    s_cmp_eq_u32 s{sT2}, 4
    s_cbranch_scc1 K1_SIDE_W3
    """)
    for i in range(4): a(f"v_lshl_or_b32 v{56+i}, v{49+2*i}, 16, v{48+2*i}")
    a("s_branch K1_SIDE_ST\nK1_SIDE_W3:")
    for j in range(8): a(f"v_lshlrev_b32 v{48+j}, 16, v{48+j}\nv_mul_f32 v{48+j}, s{sL}, v{48+j}")
    for i in range(4): a(f"v_cvt_pk_bf16_f32 v{56+i}, v{48+2*i}, v{49+2*i}")
    a(f"""
    K1_SIDE_ST:
    s_lshl_b32 s{sT2}, s2, 10
    v_lshl_add_u32 v16, v2, 4, s{sT2}
    buffer_store_dwordx4 v[56:59], v16, s[{rY}:{rY+3}], 0 offen {ST}
    s_branch K1_SIDE_DONE
    K1_SIDE_WD:
    v_lshlrev_b32 v48, 16, v48
    v_mul_f32 v48, s{sL}, v48
    v_cvt_pk_bf16_f32 v50, v48, v48
    v_and_b32 v51, 0xffff0000, v50
    v_sub_f32 v51, v48, v51
    v_cvt_pk_bf16_f32 v50, v48, v51
    v_lshlrev_b32 v49, 16, v49
    v_mul_f32 v49, {LN2_NEG:#x}, v49
    v_lshlrev_b32 v16, 2, v2
    """)
    a(f"""
    v_add_u32 v16, {WT_WDT}, v16
    buffer_store_dword v50, v16, s[{rY}:{rY+3}], 0 offen {ST}
    buffer_store_dword v49, v16, s[{rY}:{rY+3}], 0 offen offset:{WT_WXT-WT_WDT} {ST}
    K1_SIDE_DONE:
    """)
    for p in range(2):
        for i in range(8): a(f"v_pk_mul_f32 {vr(DD+16*p+2*i,2)}, {vr(DD+16*p+2*i,2)}, s[{sL}:{sL+1}]")
        for i in range(8): a(f"v_cvt_pk_bf16_f32 v{WA+8*p+i}, v{DD+16*p+2*i}, v{DD+16*p+2*i+1}")
    a(f"""
    s_sub_u32 s{sT2}, 15, s{sW}
    s_lshl_b32 s{sT2}, s{sT2}, 12
    v_lshlrev_b32 v16, 7, v5
    v_add_u32 v16, s{sT2}, v16
    v_and_b32 v17, 7, v5
    v_lshlrev_b32 v18, 1, v6
    """)
    for p in range(2):
        for i in range(2):
            a(f"""
            v_add_u32 v19, {4*p+i}, v18
            v_xor_b32 v19, v19, v17
            v_lshl_add_u32 v19, v19, 4, v16
            ds_write_b128 v19, {vr(WA+8*p+4*i,4)} offset:{BOUT}
            """)
    a(f"""
    K1_NOGEMM:
    s_waitcnt lgkmcnt(0)
    """)
    stamp(a,opt,3)
    a(f"""
    s_barrier
    """)
    stamp(a,opt,4)
    a(f"""
    ds_read_b128 v[8:11], v3 offset:{RECS}
    ds_read_b128 v[16:19], v3 offset:{BOUT}
    v_add_u32 v4, 16384, v3
    v_min_u32 v5, {CH*8-16}, v4
    ds_read_b128 v[12:15], v5 offset:{RECS}
    v_bfe_u32 v6, v0, 3, 3
    v_lshlrev_b32 v6, 4, v6
    v_xor_b32 v6, v6, v3
    s_waitcnt lgkmcnt(2)
    buffer_store_dwordx4 v[8:11], v3, s[{rREC}:{rREC+3}], 0 offen {ST}
    s_waitcnt lgkmcnt(1)
    buffer_store_dwordx4 v[16:19], v6, s[{rBT}:{rBT+3}], 0 offen {ST}
    s_waitcnt lgkmcnt(0)
    buffer_store_dwordx4 v[12:15], v4, s[{rREC}:{rREC+3}], 0 offen {ST}
    """)
    stamp(a,opt,5)
    if opt.get('stamp'): a("s_waitcnt vmcnt(0)")
    stamp(a,opt,6)
    stamp_out(a,opt,0,sWS,sW,32,40)
    a(f"""
    K1_END:
    s_endpgm
    """)
    return a
```

```python
from asmlib import *
from cfg import *
from k1 import srd, wave_scan, stamp, stamp_out

CNT=0; BASE=1024; MAXC=2048; WXL=2304; PDT=4096; L0=8192; L1=24576; SX=40960; BST=73728; BSTW=4352
K2_LDS=BST+16*BSTW
LCAP=4096
D1=0; D2=32; W3=64; AG=72; ID=80; EE=88; T0=96; T1=100; EA=104; OH=108; PS=112; TMP=115
cDMA=116; aTR=117; aSXR=118; aL4=119; aLE=120; aSXW=121; cPD=122; cHH=123; W0E=124; SXA=125; aEA=126; TID=127
sH,sEAP,sOUT,sWS=4,6,8,10
rTAB,rREC,rBT,rEA,rP16,rH,rWT,rOUT,rOUTP=12,16,20,24,28,32,36,40,44
sW,sNode0,sCnt,sLayer,sBlo,sBhi,sMaxc,sNT,sT0,sT1,sT2,sT3=48,49,50,51,52,53,54,55,56,57,58,59
sM0=60; sHI=64; sONE=66; sMASK=68; sFirst=69; sK=70; sQ3=72; sTot=74; sGb=75; sV=76

def mf(d,a_,b,c=None):
    return f"v_mfma_f32_32x32x16_bf16 {vr(d,16)}, {vr(a_,4)}, {vr(b,4)}, {'0' if c is None else vr(c,16)}"
def exp4(p,b,h): return "\n".join(f"v_exp_f32 v{EE+4*h+i}, v{D1+16*p+8*b+4*h+i}" for i in range(4))
def rcp4(h): return "\n".join(f"v_rcp_f32 v{EE+4*h+i}, v{EE+4*h+i}" for i in range(4))
def padd(): return "\n".join(f"v_pk_add_f32 {vr(EE+2*i,2)}, {vr(EE+2*i,2)}, s[{sONE}:{sONE+1}]" for i in range(4))
def pmulcvt(p,b):
    y=D1+16*p+8*b
    return "\n".join([f"v_pk_mul_f32 {vr(EE+2*i,2)}, {vr(y+2*i,2)}, {vr(EE+2*i,2)}" for i in range(4)]+
                     [f"v_cvt_pk_bf16_f32 v{y+i}, v{EE+2*i}, v{EE+2*i+1}" for i in range(4)])
def bst_reads(p):
    return "\n".join(f"ds_read_b64_tr_b16 {vr((T0,T1)[s]+2*jj,2)}, v{aTR} offset:{s*2176+jj*256+64*p}" for s in range(2) for jj in range(2))
def sx_reads():
    return "\n".join(f"ds_read_b64_tr_b16 {vr((T0,T1)[s]+2*jj,2)}, v{aSXR} offset:{s*1024+jj*512}" for s in range(2) for jj in range(2))
def idx_reads():
    return f"ds_read_b128 {vr(OH,4)}, v{aL4}\nds_read_b32 v{W0E}, v{aLE}\nds_read_b32 v{aEA}, v{aLE} offset:{L1-L0}"
def issue_loads(opt):
    EP=opt.get('ea_pol','')
    s="\n".join(f"v_and_or_b32 v{OH+i}, v{OH+i}, s{sMASK}, v{cDMA}" for i in range(4))
    s+=f"\nv_add_u32 v{aEA}, v{aEA}, v{cHH}\nv_bfe_u32 v{TMP}, v{W0E}, 3, 19\n"
    s+=f"buffer_load_dwordx4 {vr(EA,4)}, v{aEA}, s[{rEA}:{rEA+3}], 0 offen {EP}\n"
    for i in range(4):
        s+=f"s_mov_b32 m0, s{sM0+i}\n"
        if i==0: s+=f"v_and_b32 v{W0E}, 7, v{W0E}\n"
        s+=f"buffer_load_dwordx4 v{OH+i}, s[{rBT}:{rBT+3}], 0 offen lds\n"
    s+=f"s_mov_b64 exec, s[{sHI}:{sHI+1}]\nbuffer_load_dwordx3 {vr(PS,3)}, v{TMP}, s[{rP16}:{rP16+3}], 0 offen\ns_mov_b64 exec, -1\n"
    return s
def oh_read():
    return f"v_lshl_add_u32 v{TMP}, v{W0E}, 4, v{cPD}\nds_read_b128 {vr(OH,4)}, v{TMP}\nv_add_u32 v{aL4}, 128, v{aL4}\nv_add_u32 v{aLE}, 128, v{aLE}"
def edge():
    return f"""s_mov_b64 exec, s[{sHI}:{sHI+1}]
    v_sub_f32 v{OH}, v{OH}, v{PS}
    v_sub_f32 v{OH+1}, v{OH+1}, v{PS+1}
    v_sub_f32 v{OH+2}, v{OH+2}, v{PS+2}
    v_mul_f32 v{PS}, v{OH}, v{OH}
    v_fmac_f32 v{PS}, v{OH+1}, v{OH+1}
    v_fmac_f32 v{PS}, v{OH+2}, v{OH+2}
    v_cvt_pk_bf16_f32 v{OH}, 1.0, v{OH}
    v_cvt_pk_bf16_f32 v{OH+1}, v{OH+1}, v{OH+2}
    v_cvt_pk_bf16_f32 v{OH+2}, v{PS}, v{PS}
    s_mov_b64 exec, -1"""
def sx_zero(): return f"ds_write2_b32 v{SXA}, v{OH+3}, v{OH+3} offset0:0 offset1:1"
def g2(p,s): return mf(D2+16*p, D1+16*p+8*s, (T0,T1)[s], D2+16*p)

def phaseX(a,opt,last):
    d=D1+16
    a("s_waitcnt lgkmcnt(2)"); a(g2(1,0)); a(exp4(0,0,0))
    a("s_waitcnt lgkmcnt(0)"); a(g2(1,1)); a(exp4(0,0,1))
    a(f"s_mov_b64 exec, s[{sHI}:{sHI+1}]"); a(sx_zero())
    a(f"v_lshl_add_u32 v{SXA}, v{W0E}, 3, v{aSXW}\nds_write_b64 v{SXA}, {vr(OH,2)}\ns_mov_b64 exec, -1")
    a(bst_reads(1)); a(padd())
    a(mf(d,OH,AG+4)); a(rcp4(0)); a(mf(d,EA,W3+4,d))
    if not last: a(idx_reads())
    a(rcp4(1)); a(pmulcvt(0,0))
    a(f"s_waitcnt lgkmcnt({2 if last else 5})"); a(mf(d,ID,T0,d)); a(exp4(0,1,0))
    a(f"s_waitcnt lgkmcnt({0 if last else 3})"); a(mf(d,ID+4,T1,d)); a(exp4(0,1,1))
    if not last:
        a("s_waitcnt lgkmcnt(0)"); a(issue_loads(opt))
    a(padd()); a(rcp4(0))
    if not last: a(oh_read())
    a(sx_reads())
    a(rcp4(1)); a(pmulcvt(0,1))

def phaseY(a,opt,last):
    d=D1
    a("s_waitcnt lgkmcnt(2)"); a(g2(0,0)); a(exp4(1,0,0))
    a("s_waitcnt lgkmcnt(0)"); a(g2(0,1)); a(exp4(1,0,1))
    if not last:
        a("s_waitcnt vmcnt(0)"); a(bst_reads(0)); a(edge())
    a(padd())
    if not last: a(mf(d,EA,W3))
    a(rcp4(0))
    if not last: a("s_waitcnt lgkmcnt(2)"); a(mf(d,ID,T0,d))
    a(rcp4(1)); a(pmulcvt(1,0))
    if not last: a("s_waitcnt lgkmcnt(0)"); a(mf(d,ID+4,T1,d))
    a(exp4(1,1,0))
    if not last: a(mf(d,OH,AG,d))
    a(exp4(1,1,1))
    a(sx_reads())
    a(padd()); a(rcp4(0)); a(rcp4(1)); a(pmulcvt(1,1))

def rec_loads(a):
    a(f"""
    v_and_b32 v88, 0xffff, v3
    v_lshrrev_b32 v89, 16, v3
    v_sub_u32 v92, v89, v88
    s_lshl_b32 s{sT0}, s{sLayer}, 5
    v_and_b32 v90, 3, v{TID}
    v_lshl_add_u32 v88, v90, 1, v88
    v_add_u32 v88, s{sT0}, v88
    v_sub_u32 v89, v89, v88
    s_cmp_ge_u32 s{sW}, s{sBlo}
    s_cselect_b32 s{sT0}, -1, 0
    s_cmp_lt_u32 s{sW}, s{sBhi}
    s_cselect_b32 s{sT0}, s{sT0}, 0
    v_and_b32 v89, s{sT0}, v89
    v_lshrrev_b32 v90, 2, v{TID}
    v_mul_u32_u24 v90, {CH}, v90
    v_add_lshl_u32 v88, v88, v90, 3
    v_bfrev_b32 v91, -2
    """)
    for j in range(4):
        a(f"v_cmp_lt_i32 s[{sV+4*j}:{sV+4*j+1}], {8*j}, v89\nv_cmp_lt_i32 s[{sV+4*j+2}:{sV+4*j+3}], {8*j+1}, v89")
    for j in range(4):
        a(f"v_cndmask_b32 v90, v91, v88, s[{sV+4*j}:{sV+4*j+1}]\nbuffer_load_dwordx4 {vr(4*j,4)}, v90, s[{rREC}:{rREC+3}], 0 offen offset:{64*j}")

def gen_k2(opt):
    a=Asm()
    PF=opt.get('pf_b',1)
    a(f"""
    s_cmp_ge_u32 s2, {NBK}
    s_cbranch_scc1 K2_END
    s_load_dwordx2 s[4:5], s[0:1], 0
    s_load_dwordx2 s[6:7], s[0:1], 16
    s_load_dwordx2 s[8:9], s[0:1], 64
    s_load_dwordx2 s[10:11], s[0:1], 80
    v_mov_b32 v{TID}, v0
    v_lshrrev_b32 v1, 6, v0
    v_lshrrev_b32 v2, 2, v0
    v_readfirstlane_b32 s{sW}, v1
    v_and_b32 v1, 63, v0
    s_lshl_b32 s{sT0}, s2, 2
    v_lshl_add_u32 v2, v2, 10, s{sT0}
    s_lshr_b32 s{sT1}, s{sW}, 3
    s_sub_u32 s{sT2}, s{sW}, s{sT1}
    s_and_b32 s{sT2}, s{sT2}, 7
    s_cmp_eq_u32 s{sT2}, 7
    s_cselect_b32 s{sCnt}, 7, 6
    s_mul_i32 s{sT1}, s{sT1}, 49
    s_mul_i32 s{sT2}, s{sT2}, 6
    s_add_u32 s{sT1}, s{sT1}, s{sT2}
    s_mul_i32 s{sNode0}, s2, {NB}
    s_add_u32 s{sNode0}, s{sNode0}, s{sT1}
    s_sub_i32 s{sT1}, {N}, s{sNode0}
    s_max_i32 s{sT1}, s{sT1}, 0
    s_min_u32 s{sCnt}, s{sCnt}, s{sT1}
    s_min_u32 s{sNode0}, s{sNode0}, {N}
    s_mov_b32 s{sLayer}, 0
    s_mov_b32 s{sBlo}, 0
    s_mov_b32 s{sBhi}, 16
    s_mov_b32 s{sFirst}, 1
    s_mov_b32 s{sHI}, 0
    s_mov_b32 s{sHI+1}, -1
    s_mov_b32 s{sONE}, 1.0
    s_mov_b32 s{sONE+1}, 1.0
    s_mov_b32 s{sMASK}, 0x3fff80
    s_mov_b32 s{sQ3}, 0x88888888
    s_mov_b32 s{sQ3+1}, 0x88888888
    s_mul_i32 s{sM0}, s{sW}, {BSTW}
    s_add_u32 s{sM0}, s{sM0}, {BST}
    s_add_u32 s{sM0+1}, s{sM0}, 1088
    s_add_u32 s{sM0+2}, s{sM0}, 2176
    s_add_u32 s{sM0+3}, s{sM0}, 3264
    s_waitcnt lgkmcnt(0)
    """)
    for k in range(8): stamp(a,opt,k)
    srd(a,rTAB,sWS,f"{WS_TAB:#x}",NBK*1024)
    a(f"buffer_load_dword v3, v2, s[{rTAB}:{rTAB+3}], 0 offen")
    srd(a,rP16,sWS,f"{WS_P16:#x}",N*16)
    srd(a,rWT,sWS,f"{WS_WT:#x}",WT_SIZE)
    a(f"""
    v_add_lshl_u32 v4, s{sNode0}, v1, 4
    v_bfrev_b32 v5, -2
    v_cmp_gt_u32 vcc, 8, v1
    v_cndmask_b32 v4, v5, v4, vcc
    buffer_load_dwordx4 v[96:99], v4, s[{rP16}:{rP16+3}], 0 offen
    v_lshlrev_b32 v4, 2, v1
    s_mov_b32 s{sT0}, {WT_WXT}
    buffer_load_dword v100, v4, s[{rWT}:{rWT+3}], s{sT0} offen
    """)
    srd(a,rREC,sWS,f"{WS_REC:#x}",NBK*CH*8)
    srd(a,rBT,sWS,f"{WS_BT:#x}",N*128)
    srd(a,rEA,sEAP,None,E*32)
    a(f"s_lshl_b32 s{sT0}, s{sNode0}, 7\ns_lshl_b32 s{sT1}, s{sCnt}, 7")
    srd(a,rH,sH,f"s{sT0}",f"s{sT1}")
    srd(a,rOUT,sOUT,f"s{sT0}",f"s{sT1}")
    a(f"s_mul_i32 s{sT0}, s{sNode0}, 6\ns_add_u32 s{sT0}, s{sT0}, {N*128}\ns_mul_i32 s{sT1}, s{sCnt}, 6")
    srd(a,rOUTP,sOUT,f"s{sT0}",f"s{sT1}")
    a(f"""
    v_mov_b32 v8, 0
    v_mov_b32 v9, 0
    v_mov_b32 v10, 0
    v_mov_b32 v11, 0
    s_lshl_b32 s{sT0}, s{sW}, 11
    s_add_u32 s{sT0}, s{sT0}, {SX}
    v_lshl_add_u32 v4, v1, 4, s{sT0}
    ds_write_b128 v4, v[8:11]
    ds_write_b128 v4, v[8:11] offset:1024
    v_lshlrev_b32 v4, 2, v0
    s_cmp_gt_u32 s{sW}, 8
    s_cbranch_scc1 K2_NOZ
    ds_write_b32 v4, v8 offset:{CNT}
    K2_NOZ:
    """)
    a(f"""
    v_and_b32 v4, 31, v1
    v_lshrrev_b32 v5, 5, v1
    v_bfe_u32 v6, v1, 4, 1
    v_bfe_u32 v7, v1, 2, 2
    v_and_b32 v8, 3, v1
    v_and_b32 v{cDMA}, 7, v1
    v_lshlrev_b32 v{cDMA}, 4, v{cDMA}
    v_lshlrev_b32 v{cHH}, 4, v5
    v_lshl_add_u32 v{aSXW}, v4, 6, s{sT0}
    v_lshl_add_u32 v9, v5, 2, v7
    v_lshl_add_u32 v{aSXR}, v9, 6, s{sT0}
    v_lshl_add_u32 v9, v6, 2, v8
    v_lshl_add_u32 v{aSXR}, v9, 3, v{aSXR}
    v_lshrrev_b32 v9, 1, v7
    v_mul_u32_u24 v{aTR}, 1088, v9
    v_and_b32 v9, 1, v7
    v_lshl_add_u32 v9, v5, 2, v9
    v_lshl_add_u32 v{aTR}, v9, 7, v{aTR}
    v_lshl_add_u32 v{aTR}, v6, 5, v{aTR}
    v_lshl_add_u32 v{aTR}, v8, 3, v{aTR}
    v_add_u32 v{aTR}, s{sM0}, v{aTR}
    s_lshl_b32 s{sT1}, s{sW}, 8
    s_add_u32 s{sT1}, s{sT1}, {PDT+128}
    v_lshlrev_b32 v9, 7, v5
    v_sub_u32 v{cPD}, s{sT1}, v9
    """)
    a(f"""
    v_bfe_u32 v9, v4, 1, 1
    v_bfe_u32 v10, v4, 3, 1
    v_lshl_add_u32 v9, v9, 1, v10
    v_and_b32 v10, 1, v4
    v_lshl_add_u32 v9, v9, 1, v10
    v_xor_b32 v10, v5, v6
    v_lshl_add_u32 v9, v10, 3, v9
    v_bfe_u32 v10, v4, 2, 1
    v_lshlrev_b32 v10, 4, v10
    v_mov_b32 v11, 0x3f80
    v_lshlrev_b32 v10, v10, v11
    """)
    for i in range(8):
        a(f"v_cmp_eq_u32 vcc, {i}, v9\nv_cndmask_b32 v{ID+i}, 0, v10, vcc")
    a("s_waitcnt vmcnt(2)")
    stamp(a,opt,1)
    rec_loads(a)
    if PF:
        a(f"""
        s_lshr_b32 s{sT0}, s2, 3
        s_mul_i32 s{sT0}, s{sT0}, {782*128}
        v_lshlrev_b32 v90, 7, v{TID}
        v_cmp_gt_u32 vcc, 782, v{TID}
        v_cndmask_b32 v90, v91, v90, vcc
        buffer_load_dword v95, v90, s[{rBT}:{rBT+3}], s{sT0} offen
        """.replace("v_cmp_gt_u32 vcc, 782,","v_cmp_gt_u32 vcc, 0x30e,"))
    a(f"""
    v_and_b32 v90, 63, v{TID}
    v_subrev_u32 v93, 8, v90
    v_and_b32 v94, 1, v93
    v_lshlrev_b32 v94, 4, v94
    v_mov_b32 v101, 0x3f80
    v_lshlrev_b32 v94, v94, v101
    v_lshrrev_b32 v93, 1, v93
    s_waitcnt vmcnt({4+PF})
    """)
    for i in range(4):
        a(f"v_cmp_eq_u32 vcc, {i}, v93\nv_cndmask_b32 v{96+i}, v{96+i}, v94, vcc")
    a(f"""
    s_sub_u32 s{sT1}, s{sT1}, 128
    v_lshl_add_u32 v93, v90, 4, s{sT1}
    s_mov_b64 exec, 0xffff
    ds_write_b128 v93, v[96:99]
    s_mov_b64 exec, -1
    v_lshlrev_b32 v93, 2, v90
    v_mov_b32 v101, {LN2_NEG:#x}
    ds_write_b32 v93, v100 offset:{WXL}
    ds_write_b32 v93, v101 offset:{WXL+256}
    s_waitcnt lgkmcnt(0)
    s_barrier
    s_waitcnt vmcnt({PF})
    s_branch K2_HAVE
    K2_ROUND:
    s_barrier
    v_lshrrev_b32 v2, 2, v{TID}
    s_lshl_b32 s{sT0}, s2, 2
    v_lshl_add_u32 v2, v2, 10, s{sT0}
    buffer_load_dword v3, v2, s[{rTAB}:{rTAB+3}], 0 offen
    v_mov_b32 v8, 0
    v_lshlrev_b32 v4, 2, v{TID}
    s_cmp_ge_u32 s{sW}, 4
    s_cbranch_scc1 K2_NOZ2
    ds_write_b32 v4, v8 offset:{CNT}
    K2_NOZ2:
    s_waitcnt vmcnt(0)
    """)
    rec_loads(a)
    a(f"""
    s_waitcnt lgkmcnt(0)
    s_barrier
    s_waitcnt vmcnt(0)
    K2_HAVE:
    """)
    stamp(a,opt,2)
    a(f"""
    v_cmp_lt_u32 vcc, 32, v92
    v_mov_b32 v93, {MAXC}
    v_mov_b32 v94, 1
    s_mov_b64 exec, vcc
    s_cbranch_execz K2_NOMAX
    ds_max_u32 v93, v92
    K2_NOMAX:
    """)
    for k in range(8):
        a(f"""
        s_mov_b64 exec, s[{sV+2*k}:{sV+2*k+1}]
        s_cbranch_execz K2_ATOM_DONE
        v_lshrrev_b32 v{16+k}, 22, v{2*k}
        ds_add_rtn_u32 v{24+k}, v{16+k}, v94 offset:{CNT}
        """)
    a(f"""
    K2_ATOM_DONE:
    s_mov_b64 exec, -1
    s_waitcnt lgkmcnt(0)
    s_barrier
    v_and_b32 v100, 63, v{TID}
    v_lshlrev_b32 v101, 4, v100
    ds_read_b128 v[88:91], v101 offset:{CNT}
    ds_read_b32 v102, v93
    s_lshl_b32 s{sT0}, s{sW}, 2
    s_waitcnt lgkmcnt(0)
    v_readfirstlane_b32 s{sMaxc}, v102
    v_add_u32 v89, v88, v89
    v_add_u32 v90, v89, v90
    v_add_u32 v91, v90, v91
    v_add_u32_dpp v92, v91, v91 quad_perm:[1,0,3,2] row_mask:0xf bank_mask:0xf
    v_add_u32_dpp v92, v92, v92 quad_perm:[2,3,0,1] row_mask:0xf bank_mask:0xf
    v_sub_u32 v93, 0, v92
    v_and_b32 v93, 31, v93
    v_cndmask_b32 v93, 0, v93, s[{sQ3}:{sQ3+1}]
    v_add_u32 v94, v91, v93
    v_mov_b32 v103, v94
    """)
    wave_scan(a,103)
    a(f"""
    v_sub_u32 v96, v103, v94
    v_add_u32 v97, v96, v88
    v_add_u32 v98, v96, v89
    v_add_u32 v99, v96, v90
    ds_write_b128 v101, v[96:99] offset:{BASE}
    v_readlane_b32 s{sTot}, v103, 63
    v_readlane_b32 s{sGb}, v96, s{sT0}
    v_readlane_b32 s{sNT}, v92, s{sT0}
    s_cmp_le_u32 s{sTot}, {LCAP}
    s_cbranch_scc1 K2_FITS
    s_add_u32 s{sBhi}, s{sBlo}, 4
    s_waitcnt lgkmcnt(0)
    s_branch K2_ROUND
    K2_FITS:
    """)
    for k in range(8):
        a(f"""
        s_mov_b64 exec, s[{sV+2*k}:{sV+2*k+1}]
        s_cbranch_execz K2_BR_DONE
        ds_read_b32 v{16+k}, v{16+k} offset:{BASE}
        """)
    a(f"""
    K2_BR_DONE:
    s_add_u32 s{sT1}, s{sGb}, s{sNT}
    s_sub_u32 s{sT2}, 0, s{sNT}
    s_and_b32 s{sT2}, s{sT2}, 31
    s_mov_b64 exec, -1
    v_add_lshl_u32 v101, s{sT1}, v100, 2
    v_cmp_gt_u32 vcc, s{sT2}, v100
    v_mov_b32 v102, 7
    v_mov_b32 v103, 0
    s_mov_b64 exec, vcc
    ds_write2st64_b32 v101, v102, v103 offset0:{L0//256} offset1:{L1//256}
    s_waitcnt lgkmcnt(0)
    """)
    for k in range(8):
        a(f"""
        s_mov_b64 exec, s[{sV+2*k}:{sV+2*k+1}]
        s_cbranch_execz K2_LW_DONE
        v_add_lshl_u32 v{16+k}, v{16+k}, v{24+k}, 2
        ds_write2st64_b32 v{16+k}, v{2*k}, v{2*k+1} offset0:{L0//256} offset1:{L1//256}
        """)
    a(f"""
    K2_LW_DONE:
    s_mov_b64 exec, -1
    s_lshl_b32 s{sT0}, s{sGb}, 2
    s_add_u32 s{sT0}, s{sT0}, {L0}
    v_lshrrev_b32 v101, 3, v100
    v_lshl_add_u32 v{aL4}, v101, 4, s{sT0}
    v_and_b32 v101, 31, v100
    v_lshl_add_u32 v{aLE}, v101, 2, s{sT0}
    s_add_u32 s{sNT}, s{sNT}, 31
    s_lshr_b32 s{sNT}, s{sNT}, 5
    v_mov_b32 v{SXA}, v{aSXW}
    s_waitcnt lgkmcnt(0)
    s_barrier
    """)
    stamp(a,opt,3)
    a(idx_reads())
    a(f"""
    s_cmp_eq_u32 s{sFirst}, 0
    s_cbranch_scc1 K2_NF1
    v_and_b32 v102, 3, v101
    v_lshrrev_b32 v103, 3, v101
    v_lshl_add_u32 v102, v103, 2, v102
    v_lshlrev_b32 v102, 7, v102
    v_add_u32 v102, v102, v{cHH}
    v_and_b32 v103, 20, v101
    v_cmp_eq_u32 vcc, 0, v103
    v_bfrev_b32 v103, -2
    v_cndmask_b32 v102, v103, v102, vcc
    v_lshlrev_b32 v100, 4, v100
    v_lshlrev_b32 v101, 2, v101
    """)
    for s in range(4): a(f"buffer_load_dwordx4 {vr(4*s,4)}, v102, s[{rH}:{rH+3}], 0 offen offset:{32*s}")
    for i in range(8):
        a(f"s_mov_b32 s{sT0}, {WT_W1T+(i//4)*4096}" if i%4==0 else "")
        a(f"buffer_load_dwordx4 {vr(D2+4*i,4)}, v100, s[{rWT}:{rWT+3}], s{sT0} offen offset:{(i%4)*1024}")
    a(f"s_mov_b32 s{sT0}, {WT_W3T}")
    for p in range(2): a(f"buffer_load_dwordx4 {vr(W3+4*p,4)}, v100, s[{rWT}:{rWT+3}], s{sT0} offen offset:{p*1024}")
    a(f"s_mov_b32 s{sT0}, {WT_WDT}")
    for p in range(2): a(f"buffer_load_dword v{AG+2+4*p}, v101, s[{rWT}:{rWT+3}], s{sT0} offen offset:{p*128}")
    a("K2_NF1:\ns_waitcnt lgkmcnt(0)")
    a(issue_loads(opt)); a(oh_read())
    a(f"""
    s_cmp_eq_u32 s{sFirst}, 0
    s_cbranch_scc1 K2_NF2
    s_mov_b32 s{sFirst}, 0
    s_mov_b32 s{sK}, {LOG2E_NEG:#x}
    s_mov_b32 s{sK+1}, {LOG2E_NEG:#x}
    s_waitcnt vmcnt(6)
    """)
    ACC=(16,88)
    for p in range(2):
        for s in range(4):
            a(mf(ACC[p], 4*s, D2+8*s+4*p, None if s==0 else ACC[p]))
    for i in range(32): a(f"v_mov_b32 v{D2+i}, 0") if i>=0 else None
    for p in range(2):
        for i in range(4): a(f"v_pk_mul_f32 {vr(ACC[p]+2*i,2)}, {vr(ACC[p]+2*i,2)}, s[{sK}:{sK+1}]")
    a("s_mov_b32 exec_hi, 0")
    for p in range(2):
        for i in range(4): a(f"v_cvt_pk_bf16_f32 v{AG+4*p+i}, v{ACC[p]+2*i}, v{ACC[p]+2*i+1}")
    a(f"s_mov_b64 exec, s[{sHI}:{sHI+1}]")
    for p in range(2):
        for i in (0,1,3): a(f"v_mov_b32 v{AG+4*p+i}, 0")
    a("s_mov_b64 exec, -1")
    a(f"""
    K2_NF2:
    """)
    for i in (0,1,2,3,8,9,10,11): a(f"v_mov_b32 v{D1+16+i}, 0")
    a(f"""
    s_waitcnt vmcnt(0)
    """)
    stamp(a,opt,4)
    a(f"""
    s_cmp_eq_u32 s{sNT}, 0
    s_cbranch_scc1 K2_RND_END
    """)
    a(bst_reads(0)); a("s_waitcnt lgkmcnt(4)"); a(edge())
    a(mf(D1,EA,W3)); a("s_waitcnt lgkmcnt(2)"); a(mf(D1,ID,T0,D1)); a("s_waitcnt lgkmcnt(0)"); a(mf(D1,ID+4,T1,D1)); a(mf(D1,OH,AG,D1))
    a(sx_reads())
    a(f"""
    s_nop 3
    s_cmp_eq_u32 s{sNT}, 1
    s_cbranch_scc1 K2_LAST
    .p2align 3
    K2_TILE:
    """)
    phaseX(a,opt,False); phaseY(a,opt,False)
    a(f"""
    s_sub_u32 s{sNT}, s{sNT}, 1
    s_cmp_lg_u32 s{sNT}, 1
    s_cbranch_scc1 K2_TILE
    K2_LAST:
    """)
    phaseX(a,opt,True); phaseY(a,opt,True)
    a("s_waitcnt lgkmcnt(2)"); a(g2(1,0)); a("s_waitcnt lgkmcnt(0)"); a(g2(1,1))
    a(f"s_mov_b64 exec, s[{sHI}:{sHI+1}]"); a(sx_zero()); a("s_mov_b64 exec, -1")
    a(f"""
    K2_RND_END:
    s_waitcnt lgkmcnt(0)
    s_cmp_ge_u32 s{sBhi}, 16
    s_cbranch_scc1 K2_NEXTLAYER
    s_mov_b32 s{sBlo}, s{sBhi}
    s_add_u32 s{sBhi}, s{sBhi}, 4
    s_branch K2_ROUND
    K2_NEXTLAYER:
    s_add_u32 s{sLayer}, s{sLayer}, 1
    s_mov_b32 s{sBlo}, 0
    s_lshl_b32 s{sT0}, s{sLayer}, 5
    s_cmp_lt_u32 s{sT0}, s{sMaxc}
    s_cbranch_scc1 K2_ROUND
    """)
    stamp(a,opt,5)
    a(f"""
    v_and_b32 v31, 63, v{TID}
    v_lshlrev_b32 v28, 4, v31
    v_and_b32 v12, 15, v31
    v_lshrrev_b32 v13, 4, v31
    v_lshrrev_b32 v14, 2, v12
    v_and_b32 v15, 1, v31
    v_lshl_add_u32 v14, v14, 1, v15
    v_lshlrev_b32 v15, 7, v14
    v_lshl_add_u32 v15, v13, 4, v15
    v_lshlrev_b32 v29, 8, v13
    v_lshl_add_u32 v29, v12, 3, v29
    buffer_load_dwordx4 v[0:3], v15, s[{rH}:{rH+3}], 0 offen
    buffer_load_dwordx4 v[4:7], v15, s[{rH}:{rH+3}], 0 offen offset:64
    buffer_load_dwordx2 v[8:9], v29, s[{rH}:{rH+3}], 0 offen
    buffer_load_dwordx2 v[10:11], v29, s[{rH}:{rH+3}], 0 offen offset:128
    """)
    for i in range(16):
        if i%4==0: a(f"s_mov_b32 s{sT0}, {WT_WHT+(i//4)*4096}")
        a(f"buffer_load_dwordx4 {vr(64+4*i,4)}, v28, s[{rWT}:{rWT+3}], s{sT0} offen offset:{(i%4)*1024}")
    a(f"""
    v_mul_u32_u24 v30, 144, v14
    v_lshl_add_u32 v30, v13, 4, v30
    v_add_u32 v30, s{sM0}, v30
    v_lshrrev_b32 v13, 5, v31
    v_lshlrev_b32 v28, 7, v13
    v_and_b32 v12, 3, v31
    v_cmp_eq_u32 vcc, 0, v12
    v_mov_b32 v14, 256
    v_cndmask_b32 v28, v28, v14, vcc
    s_mov_b64 s[{sV}:{sV+1}], vcc
    """)
    for p in range(2):
        for q in range(4): a(f"ds_read_b128 {vr(12+4*q,4)}, v28 offset:{WXL+64*p+16*q}")
        a("s_waitcnt lgkmcnt(0)")
        for i in range(8): a(f"v_pk_mul_f32 {vr(D2+16*p+2*i,2)}, {vr(D2+16*p+2*i,2)}, {vr(12+2*i,2)}")
    a(f"""
    v_bfe_u32 v12, v31, 2, 3
    v_mul_u32_u24 v28, 144, v12
    v_lshrrev_b32 v13, 5, v31
    v_lshl_add_u32 v28, v13, 3, v28
    v_add_u32 v28, s{sM0}, v28
    v_and_b32 v14, 3, v31
    v_lshlrev_b32 v15, 4, v12
    v_lshl_add_u32 v15, v14, 2, v15
    s_lshl_b32 s{sT1}, s{sW}, 8
    s_add_u32 s{sT1}, s{sT1}, {PDT-4}
    v_add_u32 v15, s{sT1}, v15
    ds_read_b32 v16, v15
    v_mul_u32_u24 v12, 6, v12
    v_lshl_add_u32 v12, v14, 1, v12
    v_subrev_u32 v12, 2, v12
    s_mov_b64 exec, s[{sV}:{sV+1}]
    """)
    for p in range(2):
        for q in range(4):
            b=D2+16*p+4*q
            a(f"v_cvt_pk_bf16_f32 v{b}, v{b}, v{b+1}\nv_cvt_pk_bf16_f32 v{b+1}, v{b+2}, v{b+3}\nds_write_b64 v28, {vr(b,2)} offset:{64*p+16*q}")
    a(f"s_not_b64 exec, exec")
    st=16
    while st>=2:
        for i in range(0,st,2): a(f"v_pk_add_f32 {vr(D2+i,2)}, {vr(D2+i,2)}, {vr(D2+st+i,2)}")
        st//=2
    a(f"""
    v_add_f32 v32, v32, v33
    s_mov_b64 exec, -1
    v_mov_b32 v33, v32
    v_permlane32_swap_b32 v32, v33
    v_add_f32 v32, v32, v33
    s_waitcnt lgkmcnt(0)
    v_add_f32 v32, v32, v16
    v_cvt_pk_bf16_f32 v32, v32, v32
    s_mov_b32 exec_lo, 0xeeeeeeee
    s_mov_b32 exec_hi, 0
    buffer_store_short v32, v12, s[{rOUTP}:{rOUTP+3}], 0 offen
    s_mov_b64 exec, -1
    ds_read_b128 v[36:39], v30
    ds_read_b128 v[40:43], v30 offset:64
    s_waitcnt vmcnt(1)
    """)
    D3=44
    XA=(0,4,36,40)
    for s in range(4):
        if s==2: a("s_waitcnt lgkmcnt(0)")
        for q in range(4):
            c="0" if s==0 else vr(D3+4*q,4)
            a(f"v_mfma_f32_16x16x32_bf16 {vr(D3+4*q,4)}, {vr(XA[s],4)}, {vr(64+16*s+4*q,4)}, {c}")
    for r in range(2):
        a(f"""
        v_lshlrev_b32 v{12+4*r}, 16, v{8+2*r}
        v_and_b32 v{13+4*r}, 0xffff0000, v{8+2*r}
        v_lshlrev_b32 v{14+4*r}, 16, v{9+2*r}
        v_and_b32 v{15+4*r}, 0xffff0000, v{9+2*r}
        """)
    Z=[(r,q) for r in range(2) for q in range(4)]
    for k,(r,q) in enumerate(Z): a(f"v_mul_f32 v{20+k}, {LOG2E_NEG:#x}, v{D3+4*q+r}")
    for k in range(8): a(f"v_exp_f32 v{20+k}, v{20+k}")
    for k in range(8): a(f"v_add_f32 v{20+k}, 1.0, v{20+k}")
    for k in range(8): a(f"v_rcp_f32 v{20+k}, v{20+k}")
    for k,(r,q) in enumerate(Z): a(f"v_fmac_f32 v{12+k}, v{20+k}, v{D3+4*q+r}")
    for r in range(2):
        a(f"""
        v_cvt_pk_bf16_f32 v{20+2*r}, v{12+4*r}, v{13+4*r}
        v_cvt_pk_bf16_f32 v{21+2*r}, v{14+4*r}, v{15+4*r}
        buffer_store_dwordx2 {vr(20+2*r,2)}, v29, s[{rOUT}:{rOUT+3}], 0 offen offset:{128*r}
        """)
    stamp(a,opt,6)
    if opt.get('stamp'): a("s_waitcnt vmcnt(0)")
    stamp(a,opt,7)
    stamp_out(a,opt,1,sWS,sW,32,40)
    a("K2_END:\ns_endpgm")
    return a
```

```python
import sys, json
from cfg import *
from k1 import gen_k1, K1_LDS
from k2 import gen_k2, K2_LDS
HDR=open('gather_scatter__cheap_equivariant_egnn__graph.s.ref').read().split('; Override launch')[0]
def kd(name,vg,sg):
    return f""".amdhsa_kernel {name}
  .amdhsa_next_free_vgpr {vg}
  .amdhsa_next_free_sgpr {sg}
  .amdhsa_accum_offset {vg}
  .amdhsa_group_segment_fixed_size 0
  .amdhsa_kernarg_size 88
  .amdhsa_user_sgpr_count 2
  .amdhsa_user_sgpr_kernarg_segment_ptr 1
  .amdhsa_system_sgpr_workgroup_id_x 1
  .amdhsa_float_denorm_mode_32 3
.end_amdhsa_kernel
"""
def build(opt,verbose=False):
    k1,n1=gen_k1(opt).get(verbose); k2,n2=gen_k2(opt).get(verbose)
    s=HDR
    for i in range(opt.get('empty_before',0)): s+="; @launch kernel=egnn_nop_kernel grid=(1,1,1) block=(64,1,1) lds=0\n"
    for ch in opt.get('seq','12'):
        if ch=='1': s+=f"; @launch kernel=egnn_part_kernel grid=({NBK},1,1) block=(1024,1,1) lds={(K1_LDS+63)//64*64}\n"
        else: s+=f"; @launch kernel=egnn_main_kernel grid=({NBK},1,1) block=(1024,1,1) lds={K2_LDS}\n"
    for i in range(opt.get('empty_after',0)): s+="; @launch kernel=egnn_nop_kernel grid=(1,1,1) block=(64,1,1) lds=0\n"
    s+='.amdgcn_target "amdgcn-amd-amdhsa--gfx950"\n.text\n'
    for name,body in (('egnn_part_kernel',k1),('egnn_main_kernel',k2)):
        s+=f".globl {name}\n.p2align 8\n.type {name},@function\n{name}:\n"+"\n".join(body)+"\n"
    emp=opt.get('empty_after',0)+opt.get('empty_before',0)
    if emp: s+=".globl egnn_nop_kernel\n.p2align 8\n.type egnn_nop_kernel,@function\negnn_nop_kernel:\n  s_endpgm\n"
    s+='.section .rodata,"a"\n.p2align 6\n'+kd('egnn_part_kernel',128,102 if opt.get('stamp') else 80)+'.p2align 6\n'+kd('egnn_main_kernel',128,102 if opt.get('stamp') else 96)
    if emp: s+='.p2align 6\n'+kd('egnn_nop_kernel',8,16)
    return s,(n1,n2)
if __name__=='__main__':
    out=sys.argv[1]; opt=json.loads(sys.argv[2]) if len(sys.argv)>2 else {}
    s,n=build(opt,verbose=opt.get('v',0)); open(out,'w').write(s); print('nops',n,'bytes',len(s))
```

```python
from asmlib import *
from cfg import *
from k1 import srd, wave_scan, stamp, stamp_out

CNT=0; BASE=1024; MAXC=2048; WXL=2304; PDT=4096; L0=8192; L1=24576; SX=40960; BST=73728; BSTW=4352
WHL=BST+16*BSTW
K2_LDS=WHL+16384
W1L=L0
LCAP=4096
D1=0; D2=32; W3=64; AG=72; ID=80; EE=88; T0=96; T1=100; EA=104; OH=108; PS=112; TMP=115
cDMA=116; aTR=117; aSXR=118; aL4=119; aLE=120; aSXW=121; cPD=122; cHH=123; W0E=124; SXA=125; aEA=126; TID=127
sH,sEAP,sOUT,sWS=4,6,8,10
rTAB,rREC,rBT,rEA,rP16,rH,rWT,rOUT,rOUTP=12,16,20,24,28,32,36,40,44
sW,sNode0,sCnt,sLayer,sBlo,sBhi,sMaxc,sNT,sT0,sT1,sT2,sT3=48,49,50,51,52,53,54,55,56,57,58,59
sM0=60; sHI=64; sONE=66; sMASK=68; sFirst=69; sK=70; sQ3=72; sTot=74; sGb=75; sV=76

def mf(d,a_,b,c=None):
    return f"v_mfma_f32_32x32x16_bf16 {vr(d,16)}, {vr(a_,4)}, {vr(b,4)}, {'0' if c is None else vr(c,16)}"
def exp4(p,b,h): return "\n".join(f"v_exp_f32 v{EE+4*h+i}, v{D1+16*p+8*b+4*h+i}" for i in range(4))
def rcp4(h): return "\n".join(f"v_rcp_f32 v{EE+4*h+i}, v{EE+4*h+i}" for i in range(4))
def padd(): return "\n".join(f"v_pk_add_f32 {vr(EE+2*i,2)}, {vr(EE+2*i,2)}, s[{sONE}:{sONE+1}]" for i in range(4))
def pmulcvt(p,b):
    y=D1+16*p+8*b
    return "\n".join([f"v_pk_mul_f32 {vr(EE+2*i,2)}, {vr(y+2*i,2)}, {vr(EE+2*i,2)}" for i in range(4)]+
                     [f"v_cvt_pk_bf16_f32 v{y+i}, v{EE+2*i}, v{EE+2*i+1}" for i in range(4)])
def bst_reads(p):
    return "\n".join(f"ds_read_b64_tr_b16 {vr((T0,T1)[s]+2*jj,2)}, v{aTR} offset:{s*2176+jj*256+64*p}" for s in range(2) for jj in range(2))
def sx_reads():
    return "\n".join(f"ds_read_b64_tr_b16 {vr((T0,T1)[s]+2*jj,2)}, v{aSXR} offset:{s*1024+jj*512}" for s in range(2) for jj in range(2))
def idx_reads():
    return f"ds_read_b128 {vr(OH,4)}, v{aL4}\nds_read_b32 v{W0E}, v{aLE}\nds_read_b32 v{aEA}, v{aLE} offset:{L1-L0}"
def issue_loads(opt):
    EP=opt.get('ea_pol','')
    s="\n".join(f"v_and_or_b32 v{OH+i}, v{OH+i}, s{sMASK}, v{cDMA}" for i in range(4))
    s+=f"\nv_add_u32 v{aEA}, v{aEA}, v{cHH}\nv_bfe_u32 v{TMP}, v{W0E}, 3, 19\n"
    s+=f"buffer_load_dwordx4 {vr(EA,4)}, v{aEA}, s[{rEA}:{rEA+3}], 0 offen {EP}\n"
    for i in range(4):
        s+=f"s_mov_b32 m0, s{sM0+i}\n"
        if i==0: s+=f"v_and_b32 v{W0E}, 7, v{W0E}\n"
        s+=f"buffer_load_dwordx4 v{OH+i}, s[{rBT}:{rBT+3}], 0 offen lds\n"
    s+=f"s_mov_b64 exec, s[{sHI}:{sHI+1}]\nbuffer_load_dwordx3 {vr(PS,3)}, v{TMP}, s[{rP16}:{rP16+3}], 0 offen\ns_mov_b64 exec, -1\n"
    return s
def oh_read():
    return f"v_lshl_add_u32 v{TMP}, v{W0E}, 4, v{cPD}\nds_read_b128 {vr(OH,4)}, v{TMP}\nv_add_u32 v{aL4}, 128, v{aL4}\nv_add_u32 v{aLE}, 128, v{aLE}"
def edge():
    return f"""s_mov_b64 exec, s[{sHI}:{sHI+1}]
    v_sub_f32 v{OH}, v{OH}, v{PS}
    v_sub_f32 v{OH+1}, v{OH+1}, v{PS+1}
    v_sub_f32 v{OH+2}, v{OH+2}, v{PS+2}
    v_mul_f32 v{PS}, v{OH}, v{OH}
    v_fmac_f32 v{PS}, v{OH+1}, v{OH+1}
    v_fmac_f32 v{PS}, v{OH+2}, v{OH+2}
    v_cvt_pk_bf16_f32 v{OH}, 1.0, v{OH}
    v_cvt_pk_bf16_f32 v{OH+1}, v{OH+1}, v{OH+2}
    v_cvt_pk_bf16_f32 v{OH+2}, v{PS}, v{PS}
    s_mov_b64 exec, -1"""
def sx_zero(): return f"ds_write2_b32 v{SXA}, v{OH+3}, v{OH+3} offset0:0 offset1:1"
def g2(p,s): return mf(D2+16*p, D1+16*p+8*s, (T0,T1)[s], D2+16*p)

def phaseX(a,opt,last):
    d=D1+16
    a("s_waitcnt lgkmcnt(2)"); a(g2(1,0)); a(exp4(0,0,0))
    a("s_waitcnt lgkmcnt(0)"); a(g2(1,1)); a(exp4(0,0,1))
    a(f"s_mov_b64 exec, s[{sHI}:{sHI+1}]"); a(sx_zero())
    a(f"v_lshl_add_u32 v{SXA}, v{W0E}, 3, v{aSXW}\nds_write_b64 v{SXA}, {vr(OH,2)}\ns_mov_b64 exec, -1")
    a(bst_reads(1)); a(padd())
    a(mf(d,OH,AG+4)); a(rcp4(0)); a(mf(d,EA,W3+4,d))
    if not last: a(idx_reads())
    a(rcp4(1)); a(pmulcvt(0,0))
    a(f"s_waitcnt lgkmcnt({2 if last else 5})"); a(mf(d,ID,T0,d)); a(exp4(0,1,0))
    a(f"s_waitcnt lgkmcnt({0 if last else 3})"); a(mf(d,ID+4,T1,d)); a(exp4(0,1,1))
    if not last:
        a("s_waitcnt lgkmcnt(0)"); a(issue_loads(opt))
    a(padd()); a(rcp4(0))
    if not last: a(oh_read())
    a(sx_reads())
    a(rcp4(1)); a(pmulcvt(0,1))

def phaseY(a,opt,last):
    d=D1
    a("s_waitcnt lgkmcnt(2)"); a(g2(0,0)); a(exp4(1,0,0))
    a("s_waitcnt lgkmcnt(0)"); a(g2(0,1)); a(exp4(1,0,1))
    if not last:
        a("s_waitcnt vmcnt(0)"); a(bst_reads(0)); a(edge())
    a(padd())
    if not last: a(mf(d,EA,W3))
    a(rcp4(0))
    if not last: a("s_waitcnt lgkmcnt(2)"); a(mf(d,ID,T0,d))
    a(rcp4(1)); a(pmulcvt(1,0))
    if not last: a("s_waitcnt lgkmcnt(0)"); a(mf(d,ID+4,T1,d))
    a(exp4(1,1,0))
    if not last: a(mf(d,OH,AG,d))
    a(exp4(1,1,1))
    a(sx_reads())
    a(padd()); a(rcp4(0)); a(rcp4(1)); a(pmulcvt(1,1))

def rec_loads(a):
    a(f"""
    v_and_b32 v88, 0xffff, v3
    v_lshrrev_b32 v89, 16, v3
    v_sub_u32 v92, v89, v88
    s_lshl_b32 s{sT0}, s{sLayer}, 5
    v_and_b32 v90, 3, v{TID}
    v_lshl_add_u32 v88, v90, 1, v88
    v_add_u32 v88, s{sT0}, v88
    v_sub_u32 v89, v89, v88
    s_cmp_ge_u32 s{sW}, s{sBlo}
    s_cselect_b32 s{sT0}, -1, 0
    s_cmp_lt_u32 s{sW}, s{sBhi}
    s_cselect_b32 s{sT0}, s{sT0}, 0
    v_and_b32 v89, s{sT0}, v89
    v_lshrrev_b32 v90, 2, v{TID}
    v_mul_u32_u24 v90, {CH}, v90
    v_add_lshl_u32 v88, v88, v90, 3
    v_bfrev_b32 v91, -2
    """)
    for j in range(4):
        a(f"v_cmp_lt_i32 s[{sV+4*j}:{sV+4*j+1}], {8*j}, v89\nv_cmp_lt_i32 s[{sV+4*j+2}:{sV+4*j+3}], {8*j+1}, v89")
    for j in range(4):
        a(f"v_cndmask_b32 v90, v91, v88, s[{sV+4*j}:{sV+4*j+1}]\nbuffer_load_dwordx4 {vr(4*j,4)}, v90, s[{rREC}:{rREC+3}], 0 offen offset:{64*j}")

def gen_k2(opt):
    a=Asm()
    PF=opt.get('pf_b',1)
    a(f"""
    s_cmp_ge_u32 s2, {NBK}
    s_cbranch_scc1 K2_END
    s_load_dwordx2 s[4:5], s[0:1], 0
    s_load_dwordx2 s[6:7], s[0:1], 16
    s_load_dwordx2 s[8:9], s[0:1], 64
    s_load_dwordx2 s[10:11], s[0:1], 80
    v_mov_b32 v{TID}, v0
    v_lshrrev_b32 v1, 6, v0
    v_lshrrev_b32 v2, 2, v0
    v_readfirstlane_b32 s{sW}, v1
    v_and_b32 v1, 63, v0
    s_lshl_b32 s{sT0}, s2, 2
    v_lshl_add_u32 v2, v2, 10, s{sT0}
    s_lshr_b32 s{sT1}, s{sW}, 3
    s_sub_u32 s{sT2}, s{sW}, s{sT1}
    s_and_b32 s{sT2}, s{sT2}, 7
    s_cmp_eq_u32 s{sT2}, 7
    s_cselect_b32 s{sCnt}, 7, 6
    s_mul_i32 s{sT1}, s{sT1}, 49
    s_mul_i32 s{sT2}, s{sT2}, 6
    s_add_u32 s{sT1}, s{sT1}, s{sT2}
    s_mul_i32 s{sNode0}, s2, {NB}
    s_add_u32 s{sNode0}, s{sNode0}, s{sT1}
    s_sub_i32 s{sT1}, {N}, s{sNode0}
    s_max_i32 s{sT1}, s{sT1}, 0
    s_min_u32 s{sCnt}, s{sCnt}, s{sT1}
    s_min_u32 s{sNode0}, s{sNode0}, {N}
    s_mov_b32 s{sLayer}, 0
    s_mov_b32 s{sBlo}, 0
    s_mov_b32 s{sBhi}, 16
    s_mov_b32 s{sFirst}, 1
    s_mov_b32 s{sHI}, 0
    s_mov_b32 s{sHI+1}, -1
    s_mov_b32 s{sONE}, 1.0
    s_mov_b32 s{sONE+1}, 1.0
    s_mov_b32 s{sMASK}, 0x3fff80
    s_mov_b32 s{sQ3}, 0x88888888
    s_mov_b32 s{sQ3+1}, 0x88888888
    s_mul_i32 s{sM0}, s{sW}, {BSTW}
    s_add_u32 s{sM0}, s{sM0}, {BST}
    s_add_u32 s{sM0+1}, s{sM0}, 1088
    s_add_u32 s{sM0+2}, s{sM0}, 2176
    s_add_u32 s{sM0+3}, s{sM0}, 3264
    s_waitcnt lgkmcnt(0)
    """)
    for k in range(8): stamp(a,opt,k)
    srd(a,rTAB,sWS,f"{WS_TAB:#x}",NBK*1024)
    a(f"buffer_load_dword v3, v2, s[{rTAB}:{rTAB+3}], 0 offen")
    srd(a,rP16,sWS,f"{WS_P16:#x}",N*16)
    srd(a,rWT,sWS,f"{WS_WT:#x}",WT_SIZE)
    a(f"s_lshl_b32 s{sT0}, s{sNode0}, 7\ns_lshl_b32 s{sT1}, s{sCnt}, 7")
    srd(a,rH,sH,f"s{sT0}",f"s{sT1}")
    srd(a,rOUT,sOUT,f"s{sT0}",f"s{sT1}")
    a(f"""
    s_lshl_b32 s{sT0}, s{sW}, 10
    s_add_u32 m0, s{sT0}, {WHL}
    v_lshlrev_b32 v4, 4, v0
    s_mov_b32 s{sT1}, {WT_WHT}
    buffer_load_dwordx4 v4, s[{rWT}:{rWT+3}], s{sT1} offen lds
    s_add_u32 m0, s{sT0}, {W1L}
    v_bfrev_b32 v5, -2
    s_cmp_ge_u32 s{sW}, 10
    s_cbranch_scc1 K2_NOW1
    buffer_load_dwordx4 v4, s[{rWT}:{rWT+3}], 0 offen lds
    K2_NOW1:
    """)
    a(f"""
    v_add_lshl_u32 v4, s{sNode0}, v1, 4
    v_cmp_gt_u32 vcc, 8, v1
    v_and_b32 v6, 31, v1
    v_lshrrev_b32 v7, 5, v1
    v_cndmask_b32 v4, v5, v4, vcc
    buffer_load_dwordx4 v[96:99], v4, s[{rP16}:{rP16+3}], 0 offen
    v_lshlrev_b32 v4, 2, v1
    s_mov_b32 s{sT0}, {WT_WXT}
    buffer_load_dword v100, v4, s[{rWT}:{rWT+3}], s{sT0} offen
    v_lshlrev_b32 v4, 2, v6
    s_mov_b32 s{sT0}, {WT_WDT}
    buffer_load_dword v{AG+2}, v4, s[{rWT}:{rWT+3}], s{sT0} offen
    buffer_load_dword v{AG+6}, v4, s[{rWT}:{rWT+3}], s{sT0} offen offset:128
    v_and_b32 v8, 3, v6
    v_lshrrev_b32 v9, 3, v6
    v_lshl_add_u32 v8, v9, 2, v8
    v_lshlrev_b32 v8, 7, v8
    v_lshl_add_u32 v8, v7, 4, v8
    v_and_b32 v9, 20, v6
    v_cmp_eq_u32 vcc, 0, v9
    v_cndmask_b32 v8, v5, v8, vcc
    """)
    HA=16
    for s_ in range(4): a(f"buffer_load_dwordx4 {vr(HA+4*s_,4)}, v8, s[{rH}:{rH+3}], 0 offen offset:{32*s_}")
    srd(a,rREC,sWS,f"{WS_REC:#x}",NBK*CH*8)
    srd(a,rBT,sWS,f"{WS_BT:#x}",N*128)
    srd(a,rEA,sEAP,None,E*32)
    a(f"s_mul_i32 s{sT0}, s{sNode0}, 6\ns_add_u32 s{sT0}, s{sT0}, {N*128}\ns_mul_i32 s{sT1}, s{sCnt}, 6")
    srd(a,rOUTP,sOUT,f"s{sT0}",f"s{sT1}")
    a(f"""
    v_mov_b32 v8, 0
    v_mov_b32 v9, 0
    v_mov_b32 v10, 0
    v_mov_b32 v11, 0
    s_lshl_b32 s{sT0}, s{sW}, 11
    s_add_u32 s{sT0}, s{sT0}, {SX}
    v_lshl_add_u32 v4, v1, 4, s{sT0}
    ds_write_b128 v4, v[8:11]
    ds_write_b128 v4, v[8:11] offset:1024
    v_lshlrev_b32 v4, 2, v0
    s_cmp_gt_u32 s{sW}, 8
    s_cbranch_scc1 K2_NOZ
    ds_write_b32 v4, v8 offset:{CNT}
    K2_NOZ:
    """)
    a(f"""
    v_and_b32 v4, 31, v1
    v_lshrrev_b32 v5, 5, v1
    v_bfe_u32 v6, v1, 4, 1
    v_bfe_u32 v7, v1, 2, 2
    v_and_b32 v8, 3, v1
    v_and_b32 v{cDMA}, 7, v1
    v_lshlrev_b32 v{cDMA}, 4, v{cDMA}
    v_lshlrev_b32 v{cHH}, 4, v5
    v_lshl_add_u32 v{aSXW}, v4, 6, s{sT0}
    v_lshl_add_u32 v9, v5, 2, v7
    v_lshl_add_u32 v{aSXR}, v9, 6, s{sT0}
    v_lshl_add_u32 v9, v6, 2, v8
    v_lshl_add_u32 v{aSXR}, v9, 3, v{aSXR}
    v_lshrrev_b32 v9, 1, v7
    v_mul_u32_u24 v{aTR}, 1088, v9
    v_and_b32 v9, 1, v7
    v_lshl_add_u32 v9, v5, 2, v9
    v_lshl_add_u32 v{aTR}, v9, 7, v{aTR}
    v_lshl_add_u32 v{aTR}, v6, 5, v{aTR}
    v_lshl_add_u32 v{aTR}, v8, 3, v{aTR}
    v_add_u32 v{aTR}, s{sM0}, v{aTR}
    s_lshl_b32 s{sT1}, s{sW}, 8
    s_add_u32 s{sT1}, s{sT1}, {PDT+128}
    v_lshlrev_b32 v9, 7, v5
    v_sub_u32 v{cPD}, s{sT1}, v9
    """)
    a(f"""
    v_bfe_u32 v9, v4, 1, 1
    v_bfe_u32 v10, v4, 3, 1
    v_lshl_add_u32 v9, v9, 1, v10
    v_and_b32 v10, 1, v4
    v_lshl_add_u32 v9, v9, 1, v10
    v_xor_b32 v10, v5, v6
    v_lshl_add_u32 v9, v10, 3, v9
    v_bfe_u32 v10, v4, 2, 1
    v_lshlrev_b32 v10, 4, v10
    v_mov_b32 v11, 0x3f80
    v_lshlrev_b32 v10, v10, v11
    """)
    for i in range(8):
        a(f"v_cmp_eq_u32 vcc, {i}, v9\nv_cndmask_b32 v{ID+i}, 0, v10, vcc")
    a("s_waitcnt vmcnt(9)")
    stamp(a,opt,1)
    rec_loads(a)
    def pf():
        a(f"""
        s_lshr_b32 s{sT0}, s2, 3
        s_mul_i32 s{sT0}, s{sT0}, {782*128}
        v_lshlrev_b32 v90, 7, v{TID}
        v_cmp_gt_u32 vcc, 782, v{TID}
        v_bfrev_b32 v91, -2
        v_cndmask_b32 v90, v91, v90, vcc
        buffer_load_dword v95, v90, s[{rBT}:{rBT+3}], s{sT0} offen
        """.replace("v_cmp_gt_u32 vcc, 782,","v_cmp_gt_u32 vcc, 0x30e,"))
    a(f"""
    v_and_b32 v90, 63, v{TID}
    v_subrev_u32 v93, 8, v90
    v_and_b32 v94, 1, v93
    v_lshlrev_b32 v94, 4, v94
    v_mov_b32 v101, 0x3f80
    v_lshlrev_b32 v94, v94, v101
    v_lshrrev_b32 v93, 1, v93
    s_waitcnt vmcnt(4)
    """)
    for i in range(4):
        a(f"v_cmp_eq_u32 vcc, {i}, v93\nv_cndmask_b32 v{96+i}, v{96+i}, v94, vcc")
    a(f"""
    s_sub_u32 s{sT1}, s{sT1}, 128
    v_lshl_add_u32 v93, v90, 4, s{sT1}
    s_mov_b64 exec, 0xffff
    ds_write_b128 v93, v[96:99]
    s_mov_b64 exec, -1
    v_lshlrev_b32 v93, 2, v90
    v_mov_b32 v101, {LN2_NEG:#x}
    ds_write_b32 v93, v100 offset:{WXL}
    ds_write_b32 v93, v101 offset:{WXL+256}
    s_waitcnt lgkmcnt(0)
    s_barrier
    v_lshlrev_b32 v94, 4, v90
    s_mov_b32 s{sK}, {LOG2E_NEG:#x}
    s_mov_b32 s{sK+1}, {LOG2E_NEG:#x}
    """)
    WB=(96,100,104,108,112,88,64,68)
    for i in range(8): a(f"ds_read_b128 {vr(WB[i],4)}, v94 offset:{W1L+1024*i}")
    for s_ in range(4):
        a(f"s_waitcnt lgkmcnt({6-2*s_})")
        for p in range(2): a(mf(D2+16*p, HA+4*s_, WB[2*s_+p], None if s_==0 else D2+16*p))
    for p in range(2): a(f"ds_read_b128 {vr(W3+4*p,4)}, v94 offset:{W1L+8192+1024*p}")
    a("s_nop 7")
    for p in range(2):
        for i in range(4): a(f"v_pk_mul_f32 {vr(D2+16*p+2*i,2)}, {vr(D2+16*p+2*i,2)}, s[{sK}:{sK+1}]")
    a("s_mov_b32 exec_hi, 0")
    for p in range(2):
        for i in range(4): a(f"v_cvt_pk_bf16_f32 v{AG+4*p+i}, v{D2+16*p+2*i}, v{D2+16*p+2*i+1}")
    a(f"s_mov_b64 exec, s[{sHI}:{sHI+1}]")
    for p in range(2):
        for i in (0,1,3): a(f"v_mov_b32 v{AG+4*p+i}, 0")
    a("s_mov_b64 exec, -1")
    for i in range(32): a(f"v_mov_b32 v{D2+i}, 0")
    a("s_waitcnt vmcnt(0)")
    if PF: pf()
    a(f"""
    s_branch K2_HAVE
    K2_ROUND:
    s_barrier
    v_lshrrev_b32 v2, 2, v{TID}
    s_lshl_b32 s{sT0}, s2, 2
    v_lshl_add_u32 v2, v2, 10, s{sT0}
    buffer_load_dword v3, v2, s[{rTAB}:{rTAB+3}], 0 offen
    v_mov_b32 v8, 0
    v_lshlrev_b32 v4, 2, v{TID}
    s_cmp_ge_u32 s{sW}, 4
    s_cbranch_scc1 K2_NOZ2
    ds_write_b32 v4, v8 offset:{CNT}
    K2_NOZ2:
    s_waitcnt vmcnt(0)
    """)
    rec_loads(a)
    a(f"""
    s_waitcnt lgkmcnt(0)
    s_barrier
    s_waitcnt vmcnt(0)
    K2_HAVE:
    """)
    stamp(a,opt,2)
    a(f"""
    v_cmp_lt_u32 vcc, 32, v92
    v_mov_b32 v93, {MAXC}
    v_mov_b32 v94, 1
    s_mov_b64 exec, vcc
    s_cbranch_execz K2_NOMAX
    ds_max_u32 v93, v92
    K2_NOMAX:
    """)
    for k in range(8):
        a(f"""
        s_mov_b64 exec, s[{sV+2*k}:{sV+2*k+1}]
        s_cbranch_execz K2_ATOM_DONE
        v_lshrrev_b32 v{16+k}, 22, v{2*k}
        ds_add_rtn_u32 v{24+k}, v{16+k}, v94 offset:{CNT}
        """)
    a(f"""
    K2_ATOM_DONE:
    s_mov_b64 exec, -1
    s_waitcnt lgkmcnt(0)
    s_barrier
    v_and_b32 v100, 63, v{TID}
    v_lshlrev_b32 v101, 4, v100
    ds_read_b128 v[88:91], v101 offset:{CNT}
    ds_read_b32 v102, v93
    s_lshl_b32 s{sT0}, s{sW}, 2
    s_waitcnt lgkmcnt(0)
    v_readfirstlane_b32 s{sMaxc}, v102
    v_add_u32 v89, v88, v89
    v_add_u32 v90, v89, v90
    v_add_u32 v91, v90, v91
    v_add_u32_dpp v92, v91, v91 quad_perm:[1,0,3,2] row_mask:0xf bank_mask:0xf
    v_add_u32_dpp v92, v92, v92 quad_perm:[2,3,0,1] row_mask:0xf bank_mask:0xf
    v_sub_u32 v93, 0, v92
    v_and_b32 v93, 31, v93
    v_cndmask_b32 v93, 0, v93, s[{sQ3}:{sQ3+1}]
    v_add_u32 v94, v91, v93
    v_mov_b32 v103, v94
    """)
    wave_scan(a,103)
    a(f"""
    v_sub_u32 v96, v103, v94
    v_add_u32 v97, v96, v88
    v_add_u32 v98, v96, v89
    v_add_u32 v99, v96, v90
    ds_write_b128 v101, v[96:99] offset:{BASE}
    v_readlane_b32 s{sTot}, v103, 63
    v_readlane_b32 s{sGb}, v96, s{sT0}
    v_readlane_b32 s{sNT}, v92, s{sT0}
    s_cmp_le_u32 s{sTot}, {LCAP}
    s_cbranch_scc1 K2_FITS
    s_add_u32 s{sBhi}, s{sBlo}, 4
    s_waitcnt lgkmcnt(0)
    s_branch K2_ROUND
    K2_FITS:
    """)
    for k in range(8):
        a(f"""
        s_mov_b64 exec, s[{sV+2*k}:{sV+2*k+1}]
        s_cbranch_execz K2_BR_DONE
        ds_read_b32 v{16+k}, v{16+k} offset:{BASE}
        """)
    a(f"""
    K2_BR_DONE:
    s_add_u32 s{sT1}, s{sGb}, s{sNT}
    s_sub_u32 s{sT2}, 0, s{sNT}
    s_and_b32 s{sT2}, s{sT2}, 31
    s_mov_b64 exec, -1
    v_add_lshl_u32 v101, s{sT1}, v100, 2
    v_cmp_gt_u32 vcc, s{sT2}, v100
    v_mov_b32 v102, 7
    v_mov_b32 v103, 0
    s_mov_b64 exec, vcc
    ds_write2st64_b32 v101, v102, v103 offset0:{L0//256} offset1:{L1//256}
    s_waitcnt lgkmcnt(0)
    """)
    for k in range(8):
        a(f"""
        s_mov_b64 exec, s[{sV+2*k}:{sV+2*k+1}]
        s_cbranch_execz K2_LW_DONE
        v_add_lshl_u32 v{16+k}, v{16+k}, v{24+k}, 2
        ds_write2st64_b32 v{16+k}, v{2*k}, v{2*k+1} offset0:{L0//256} offset1:{L1//256}
        """)
    a(f"""
    K2_LW_DONE:
    s_mov_b64 exec, -1
    s_lshl_b32 s{sT0}, s{sGb}, 2
    s_add_u32 s{sT0}, s{sT0}, {L0}
    v_lshrrev_b32 v101, 3, v100
    v_lshl_add_u32 v{aL4}, v101, 4, s{sT0}
    v_and_b32 v101, 31, v100
    v_lshl_add_u32 v{aLE}, v101, 2, s{sT0}
    s_add_u32 s{sNT}, s{sNT}, 31
    s_lshr_b32 s{sNT}, s{sNT}, 5
    v_mov_b32 v{SXA}, v{aSXW}
    s_waitcnt lgkmcnt(0)
    s_barrier
    """)
    stamp(a,opt,3)
    if opt.get('prio'): a('s_setprio 3')
    a(idx_reads())
    a("s_waitcnt lgkmcnt(0)")
    a(issue_loads(opt)); a(oh_read())
    for i in (0,1,2,3,8,9,10,11): a(f"v_mov_b32 v{D1+16+i}, 0")
    a(f"""
    s_waitcnt vmcnt(0)
    """)
    stamp(a,opt,4)
    a(f"""
    s_cmp_eq_u32 s{sNT}, 0
    s_cbranch_scc1 K2_RND_END
    """)
    a(bst_reads(0)); a("s_waitcnt lgkmcnt(4)"); a(edge())
    a(mf(D1,EA,W3)); a("s_waitcnt lgkmcnt(2)"); a(mf(D1,ID,T0,D1)); a("s_waitcnt lgkmcnt(0)"); a(mf(D1,ID+4,T1,D1)); a(mf(D1,OH,AG,D1))
    a(sx_reads())
    a(f"""
    s_nop 3
    s_cmp_eq_u32 s{sNT}, 1
    s_cbranch_scc1 K2_LAST
    .p2align 3
    K2_TILE:
    """)
    phaseX(a,opt,False); phaseY(a,opt,False)
    a(f"""
    s_sub_u32 s{sNT}, s{sNT}, 1
    """)
    if opt.get('prio'):
        a(f"""
        s_cmp_eq_u32 s{sNT}, 5
        s_cbranch_scc0 K2_P1
        s_setprio 2
        K2_P1:
        s_cmp_eq_u32 s{sNT}, 3
        s_cbranch_scc0 K2_P2
        s_setprio 1
        K2_P2:
        s_cmp_eq_u32 s{sNT}, 1
        s_cbranch_scc0 K2_P3
        s_setprio 0
        K2_P3:
        """)
    a(f"""
    s_cmp_lg_u32 s{sNT}, 1
    s_cbranch_scc1 K2_TILE
    K2_LAST:
    """)
    phaseX(a,opt,True); phaseY(a,opt,True)
    a("s_waitcnt lgkmcnt(2)"); a(g2(1,0)); a("s_waitcnt lgkmcnt(0)"); a(g2(1,1))
    a(f"s_mov_b64 exec, s[{sHI}:{sHI+1}]"); a(sx_zero()); a("s_mov_b64 exec, -1")
    a(f"""
    K2_RND_END:
    s_waitcnt lgkmcnt(0)
    s_cmp_ge_u32 s{sBhi}, 16
    s_cbranch_scc1 K2_NEXTLAYER
    s_mov_b32 s{sBlo}, s{sBhi}
    s_add_u32 s{sBhi}, s{sBhi}, 4
    s_branch K2_ROUND
    K2_NEXTLAYER:
    s_add_u32 s{sLayer}, s{sLayer}, 1
    s_mov_b32 s{sBlo}, 0
    s_lshl_b32 s{sT0}, s{sLayer}, 5
    s_cmp_lt_u32 s{sT0}, s{sMaxc}
    s_cbranch_scc1 K2_ROUND
    """)
    stamp(a,opt,5)
    a(f"""
    v_and_b32 v31, 63, v{TID}
    v_lshlrev_b32 v28, 4, v31
    v_and_b32 v12, 15, v31
    v_lshrrev_b32 v13, 4, v31
    v_lshrrev_b32 v14, 2, v12
    v_and_b32 v15, 1, v31
    v_lshl_add_u32 v14, v14, 1, v15
    v_lshlrev_b32 v15, 7, v14
    v_lshl_add_u32 v15, v13, 4, v15
    v_lshlrev_b32 v29, 8, v13
    v_lshl_add_u32 v29, v12, 3, v29
    buffer_load_dwordx4 v[0:3], v15, s[{rH}:{rH+3}], 0 offen
    buffer_load_dwordx4 v[4:7], v15, s[{rH}:{rH+3}], 0 offen offset:64
    buffer_load_dwordx2 v[8:9], v29, s[{rH}:{rH+3}], 0 offen
    buffer_load_dwordx2 v[10:11], v29, s[{rH}:{rH+3}], 0 offen offset:128
    """)
    a(f"v_add_u32 v28, {WHL}, v28")
    for i in range(14): a(f"ds_read_b128 {vr(64+4*i,4)}, v28 offset:{1024*i}")
    a(f"s_waitcnt lgkmcnt(8)")
    for i in range(14,16): a(f"ds_read_b128 {vr(64+4*i,4)}, v28 offset:{1024*i}")
    a(f"""
    v_mul_u32_u24 v30, 144, v14
    v_lshl_add_u32 v30, v13, 4, v30
    v_add_u32 v30, s{sM0}, v30
    v_lshrrev_b32 v13, 5, v31
    v_lshlrev_b32 v28, 7, v13
    v_and_b32 v12, 3, v31
    v_cmp_eq_u32 vcc, 0, v12
    v_mov_b32 v14, 256
    v_cndmask_b32 v28, v28, v14, vcc
    s_mov_b64 s[{sV}:{sV+1}], vcc
    """)
    for p in range(2):
        for q in range(4): a(f"ds_read_b128 {vr(12+4*q,4)}, v28 offset:{WXL+64*p+16*q}")
        a("s_waitcnt lgkmcnt(0)")
        for i in range(8): a(f"v_pk_mul_f32 {vr(D2+16*p+2*i,2)}, {vr(D2+16*p+2*i,2)}, {vr(12+2*i,2)}")
    a(f"""
    v_bfe_u32 v12, v31, 2, 3
    v_mul_u32_u24 v28, 144, v12
    v_lshrrev_b32 v13, 5, v31
    v_lshl_add_u32 v28, v13, 3, v28
    v_add_u32 v28, s{sM0}, v28
    v_and_b32 v14, 3, v31
    v_lshlrev_b32 v15, 4, v12
    v_lshl_add_u32 v15, v14, 2, v15
    s_lshl_b32 s{sT1}, s{sW}, 8
    s_add_u32 s{sT1}, s{sT1}, {PDT-4}
    v_add_u32 v15, s{sT1}, v15
    ds_read_b32 v16, v15
    v_mul_u32_u24 v12, 6, v12
    v_lshl_add_u32 v12, v14, 1, v12
    v_subrev_u32 v12, 2, v12
    s_mov_b64 exec, s[{sV}:{sV+1}]
    """)
    for p in range(2):
        for q in range(4):
            b=D2+16*p+4*q
            a(f"v_cvt_pk_bf16_f32 v{b}, v{b}, v{b+1}\nv_cvt_pk_bf16_f32 v{b+1}, v{b+2}, v{b+3}\nds_write_b64 v28, {vr(b,2)} offset:{64*p+16*q}")
    a(f"s_not_b64 exec, exec")
    st=16
    while st>=2:
        for i in range(0,st,2): a(f"v_pk_add_f32 {vr(D2+i,2)}, {vr(D2+i,2)}, {vr(D2+st+i,2)}")
        st//=2
    a(f"""
    v_add_f32 v32, v32, v33
    s_mov_b64 exec, -1
    v_mov_b32 v33, v32
    v_permlane32_swap_b32 v32, v33
    v_add_f32 v32, v32, v33
    s_waitcnt lgkmcnt(0)
    v_add_f32 v32, v32, v16
    v_cvt_pk_bf16_f32 v32, v32, v32
    s_mov_b32 exec_lo, 0xeeeeeeee
    s_mov_b32 exec_hi, 0
    buffer_store_short v32, v12, s[{rOUTP}:{rOUTP+3}], 0 offen
    s_mov_b64 exec, -1
    ds_read_b128 v[36:39], v30
    ds_read_b128 v[40:43], v30 offset:64
    s_waitcnt vmcnt(1)
    """)
    D3=44
    XA=(0,4,36,40)
    for s in range(4):
        if s==2: a("s_waitcnt lgkmcnt(0)")
        for q in range(4):
            c="0" if s==0 else vr(D3+4*q,4)
            a(f"v_mfma_f32_16x16x32_bf16 {vr(D3+4*q,4)}, {vr(XA[s],4)}, {vr(64+16*s+4*q,4)}, {c}")
    for r in range(2):
        a(f"""
        v_lshlrev_b32 v{12+4*r}, 16, v{8+2*r}
        v_and_b32 v{13+4*r}, 0xffff0000, v{8+2*r}
        v_lshlrev_b32 v{14+4*r}, 16, v{9+2*r}
        v_and_b32 v{15+4*r}, 0xffff0000, v{9+2*r}
        """)
    Z=[(r,q) for r in range(2) for q in range(4)]
    for k,(r,q) in enumerate(Z): a(f"v_mul_f32 v{20+k}, {LOG2E_NEG:#x}, v{D3+4*q+r}")
    for k in range(8): a(f"v_exp_f32 v{20+k}, v{20+k}")
    for k in range(8): a(f"v_add_f32 v{20+k}, 1.0, v{20+k}")
    for k in range(8): a(f"v_rcp_f32 v{20+k}, v{20+k}")
    for k,(r,q) in enumerate(Z): a(f"v_fmac_f32 v{12+k}, v{20+k}, v{D3+4*q+r}")
    for r in range(2):
        a(f"""
        v_cvt_pk_bf16_f32 v{20+2*r}, v{12+4*r}, v{13+4*r}
        v_cvt_pk_bf16_f32 v{21+2*r}, v{14+4*r}, v{15+4*r}
        buffer_store_dwordx2 {vr(20+2*r,2)}, v29, s[{rOUT}:{rOUT+3}], 0 offen offset:{128*r}
        """)
    stamp(a,opt,6)
    if opt.get('stamp'): a("s_waitcnt vmcnt(0)")
    stamp(a,opt,7)
    stamp_out(a,opt,1,sWS,sW,32,40)
    a("K2_END:\ns_endpgm")
    return a
```

```python
from asmlib import *
from cfg import *
from k1 import srd
def gen_k3(spec):
    (ka,ia,ma),(kb,ib,mb),M=spec
    a=Asm()
    a("s_cmp_ge_u32 s2, 1\ns_cbranch_scc1 K3_END\ns_load_dwordx2 s[4:5], s[0:1], 80\ns_waitcnt lgkmcnt(0)")
    srd(a,8,4,f"{WS_ST:#x}",2*131072)
    a("v_lshlrev_b32 v1, 5, v0")
    for t,(k,i,m) in enumerate(((ka,ia,ma),(kb,ib,mb))):
        op={'min':'v_min_u32','max':'v_max_u32','avg':'v_add_u32'}[m]
        a(f"v_mov_b32 v{2+t}, {-1 if m=='min' else 0}\ns_mov_b32 s6, {k*131072+i*4}\ns_mov_b32 s7, 64")
        if m=='avg': a(f"buffer_load_dword v6, off, s[8:11], s6\ns_waitcnt vmcnt(0)\nv_subrev_u32 v6, 10000, v6")
        a(f"K3_L{t}:\nbuffer_load_dword v4, v1, s[8:11], s6 offen\ns_waitcnt vmcnt(0)")
        if m=='avg': a("v_sub_u32 v4, v4, v6")
        a(f"{op} v{2+t}, v{2+t}, v4\ns_add_u32 s6, s6, 2048\ns_sub_u32 s7, s7, 1\ns_cmp_lg_u32 s7, 0\ns_cbranch_scc1 K3_L{t}")
        for sh in (1,2,4,8): a(f"{op}_dpp v{2+t}, v{2+t}, v{2+t} row_shr:{sh} row_mask:0xf bank_mask:0xf")
        a(f"{op}_dpp v{2+t}, v{2+t}, v{2+t} row_bcast:15 row_mask:0xa bank_mask:0xf")
        a(f"{op}_dpp v{2+t}, v{2+t}, v{2+t} row_bcast:31 row_mask:0xc bank_mask:0xf")
        if m=='avg': a(f"v_lshrrev_b32 v{2+t}, 12, v{2+t}\nv_add_u32 v{2+t}, v{2+t}, v6")
        a(f"v_readlane_b32 s{12+t}, v{2+t}, 63")
    a(f"""
    s_sub_u32 s12, s13, s12
    s_min_u32 s12, s12, 10000
    s_mul_i32 s12, s12, {M}
    s_memrealtime s[14:15]
    s_waitcnt lgkmcnt(0)
    K3_SPIN:
    s_memrealtime s[16:17]
    s_waitcnt lgkmcnt(0)
    s_sub_u32 s16, s16, s14
    s_cmp_lt_u32 s16, s12
    s_cbranch_scc1 K3_SPIN
    K3_END:
    s_endpgm
    """)
    return a
```

```python
import sys, json
from cfg import *
from k1 import gen_k1, K1_LDS
from k2 import gen_k2, K2_LDS
from k3 import gen_k3
HDR=open('gather_scatter__cheap_equivariant_egnn__graph.s.ref').read().split('; Override launch')[0]
def kd(name,vg,sg):
    return f""".amdhsa_kernel {name}
  .amdhsa_next_free_vgpr {vg}
  .amdhsa_next_free_sgpr {sg}
  .amdhsa_accum_offset {vg}
  .amdhsa_group_segment_fixed_size 0
  .amdhsa_kernarg_size 88
  .amdhsa_user_sgpr_count 2
  .amdhsa_user_sgpr_kernarg_segment_ptr 1
  .amdhsa_system_sgpr_workgroup_id_x 1
  .amdhsa_float_denorm_mode_32 3
.end_amdhsa_kernel
"""
def build(opt,verbose=False):
    k1,n1=gen_k1(opt).get(verbose); k2,n2=gen_k2(opt).get(verbose)
    s=HDR
    for i in range(opt.get('empty_before',0)): s+="; @launch kernel=egnn_nop_kernel grid=(1,1,1) block=(64,1,1) lds=0\n"
    for ch in opt.get('seq','12'):
        if ch=='1': s+=f"; @launch kernel=egnn_part_kernel grid=({NBK},1,1) block=(1024,1,1) lds={(K1_LDS+63)//64*64}\n"
        else: s+=f"; @launch kernel=egnn_main_kernel grid=({NBK},1,1) block=(1024,1,1) lds={K2_LDS}\n"
    if opt.get('probe'): s+="; @launch kernel=egnn_probe_kernel grid=(1,1,1) block=(64,1,1) lds=0\n"
    for i in range(opt.get('empty_after',0)): s+="; @launch kernel=egnn_nop_kernel grid=(1,1,1) block=(64,1,1) lds=0\n"
    s+='.amdgcn_target "amdgcn-amd-amdhsa--gfx950"\n.text\n'
    for name,body in (('egnn_part_kernel',k1),('egnn_main_kernel',k2)):
        s+=f".globl {name}\n.p2align 8\n.type {name},@function\n{name}:\n"+"\n".join(body)+"\n"
    if opt.get('probe'): s+=".globl egnn_probe_kernel\n.p2align 8\n.type egnn_probe_kernel,@function\negnn_probe_kernel:\n"+"\n".join(gen_k3(opt['probe']).get()[0])+"\n"
    emp=opt.get('empty_after',0)+opt.get('empty_before',0)
    if emp: s+=".globl egnn_nop_kernel\n.p2align 8\n.type egnn_nop_kernel,@function\negnn_nop_kernel:\n  s_endpgm\n"
    s+='.section .rodata,"a"\n.p2align 6\n'+kd('egnn_part_kernel',128,102 if opt.get('stamp') else 90)+'.p2align 6\n'+kd('egnn_main_kernel',128,102 if opt.get('stamp') else 97)
    if emp: s+='.p2align 6\n'+kd('egnn_nop_kernel',8,16)
    if opt.get('probe'): s+='.p2align 6\n'+kd('egnn_probe_kernel',8,24)
    return s,(n1,n2)
if __name__=='__main__':
    out=sys.argv[1]; opt=json.loads(sys.argv[2]) if len(sys.argv)>2 else {}
    s,n=build(opt,verbose=opt.get('v',0)); open(out,'w').write(s); print('nops',n,'bytes',len(s))
```

```python
from asmlib import *
from cfg import *

def srd(a, s, base_lo, off=None, size=None, w1or=0):
    if off is None:
        a(f"s_mov_b32 s{s}, s{base_lo}\ns_mov_b32 s{s+1}, s{base_lo+1}")
    else:
        a(f"s_add_u32 s{s}, s{base_lo}, {off}\ns_addc_u32 s{s+1}, s{base_lo+1}, 0")
    if w1or: a(f"s_or_b32 s{s+1}, s{s+1}, {w1or:#x}")
    a(f"s_mov_b32 s{s+2}, {size}\ns_mov_b32 s{s+3}, 0x20000")

def wave_scan(a, v):
    for sh in (1,2,4,8):
        a(f"v_add_u32_dpp v{v}, v{v}, v{v} row_shr:{sh} row_mask:0xf bank_mask:0xf bound_ctrl:1")
    a(f"v_add_u32_dpp v{v}, v{v}, v{v} row_bcast:15 row_mask:0xa bank_mask:0xf")
    a(f"v_add_u32_dpp v{v}, v{v}, v{v} row_bcast:31 row_mask:0xc bank_mask:0xf")

STREG={'regs':None,'tmp':None}
def stamp(a,opt,k,mode=None):
    if opt.get('stamp') and (mode is None or opt.get('stamp')==mode):
        R=STREG['regs']
        a(f"{'s_memtime' if opt.get('clk') else 's_memrealtime'} vcc\ns_waitcnt lgkmcnt(0)\ns_mov_b32 s{R[k]}, vcc_lo")
        if k==0:
            for i in range(1,6): a(f"s_mov_b32 s{R[i]}, vcc_lo")
def stamp_out(a,opt,which,sWS,sW,v0,v1):
    if opt.get('stamp'):
        R=STREG['regs']; t=STREG['tmp']
        a(f"s_lshl_b32 s{t}, s2, 4\ns_add_u32 s{t}, s{t}, s{sW}\ns_lshl_b32 s{t}, s{t}, 5\ns_add_u32 s{t}, s{t}, {WS_ST+which*131072}")
        a(f"s_add_u32 s{t}, s{sWS}, s{t}\ns_addc_u32 s{t+1}, s{sWS+1}, 0\nv_mov_b32 v{v1}, 0")
        for i in range(8): a(f"v_mov_b32 v{v0+i}, s{R[i]}")
        a(f"s_mov_b64 exec, 1\nglobal_store_dwordx4 v{v1}, v[{v0}:{v0+3}], s[{t}:{t+1}]\nglobal_store_dwordx4 v{v1}, v[{v0+4}:{v0+7}], s[{t}:{t+1}] offset:16")

CNT=0; BASE=1024; W2L=2048; BOUT=10240; SLOTS=BOUT+3*4096; SLW=144; K1_LDS=SLOTS+256*SLW

def gen_k1(opt):
    a=Asm()
    STREG.update(regs=[90,91,92,93,94,95,96,97],tmp=88)
    ST=opt.get('k1_store','sc1'); LD=opt.get('k1_load','nt'); TP=opt.get('tab_store','')
    sH,sPOSP,sSRC,sDST,sWE,sWX,sWH,sWS=4,6,8,10,12,14,16,18
    rDST,rSRC,rH,rPOS,rWE,rREC,rTAB,rBT,rP16,rX,rY,rSLOT=20,24,28,32,36,40,44,48,52,56,60,76
    sW,sN,sNN,sT0,sT1,sT2,sT3,sM=64,65,66,67,68,69,70,71
    ROT=opt.get('k1_rot',832)
    sL=72
    sVAL=74
    sOV=80
    a(f"""
    s_cmp_ge_u32 s2, {NBK}
    s_cbranch_scc1 K1_END
    s_load_dwordx4 s[8:11], s[0:1], 24
    s_load_dwordx4 s[12:15], s[0:1], 40
    s_load_dwordx4 s[4:7], s[0:1], 0
    s_load_dwordx2 s[16:17], s[0:1], 56
    s_load_dwordx2 s[18:19], s[0:1], 80
    v_add_u32 v0, {ROT}, v0
    v_and_b32 v0, 0x3ff, v0
    v_lshrrev_b32 v1, 6, v0
    v_and_b32 v2, 63, v0
    v_readfirstlane_b32 s{sW}, v1
    v_lshlrev_b32 v3, 4, v0
    s_mul_i32 s{sT0}, s2, {CH}
    s_sub_u32 s{sN}, {E}, s{sT0}
    s_min_u32 s{sN}, s{sN}, {CH}
    s_mul_i32 s{sT1}, s2, {NB}
    s_sub_u32 s{sNN}, {N}, s{sT1}
    s_min_u32 s{sNN}, s{sNN}, {NB}
    s_lshl_b32 s{sT2}, s{sT0}, 2
    s_lshl_b32 s{sT3}, s{sN}, 2
    s_cmp_ge_u32 s{sW}, 13
    s_waitcnt lgkmcnt(0)
    """)
    stamp(a,opt,0)
    a("s_cbranch_scc1 K1_G0")
    srd(a,rDST,sDST,f"s{sT2}",f"s{sT3}")
    a(f"buffer_load_dwordx4 v[8:11], v3, s[{rDST}:{rDST+3}], 0 offen {LD}")
    srd(a,rSRC,sSRC,f"s{sT2}",f"s{sT3}")
    a(f"buffer_load_dwordx4 v[12:15], v3, s[{rSRC}:{rSRC+3}], 0 offen {LD}")
    a(f"""
    v_mov_b32 v20, 0
    s_cmp_ge_u32 s{sW}, 4
    s_cbranch_scc1 K1_NOZ
    v_lshlrev_b32 v21, 2, v0
    ds_write_b32 v21, v20 offset:{CNT}
    K1_NOZ:
    s_lshl_b32 s{sT2}, s{sT0}, 3
    s_add_u32 s{sT2}, s{sT2}, {WS_REC-128:#x}
    s_lshl_b32 s{sT3}, s{sN}, 3
    s_add_u32 s{sT3}, s{sT3}, 128
    """)
    srd(a,rREC,sWS,f"s{sT2}",f"s{sT3}")
    srd(a,rTAB,sWS,f"{WS_TAB:#x}",NBK*1024)
    srd(a,rSLOT,sWS,f"{WS_SLOT:#x}",NBK*32768)
    a(f"""
    s_lshr_b32 s{sT2}, s{sN}, 2
    v_cmp_gt_u32 s[{sVAL}:{sVAL+1}], s{sT2}, v0
    s_lshl_b32 s{sT2}, s{sT0}, 5
    v_lshl_add_u32 v53, v0, 7, s{sT2}
    v_add_u32 v55, 32, v53
    v_add_u32 v57, 64, v53
    v_add_u32 v59, 96, v53
    s_mov_b32 s{sM}, 171196
    v_mov_b32 v22, 8192
    v_mov_b32 v20, 1
    s_waitcnt lgkmcnt(0)
    s_barrier
    s_mov_b64 exec, s[{sVAL}:{sVAL+1}]
    s_waitcnt vmcnt(1)
    """)
    stamp(a,opt,1)
    for j in range(4):
        a(f"""
        v_mad_u32_u24 v{16+j}, v{8+j}, s{sM}, v22
        v_lshrrev_b32 v{16+j}, 20, v{16+j}
        v_lshrrev_b32 v{28+j}, 2, v{16+j}
        v_and_b32 v{28+j}, 0x3fc, v{28+j}
        ds_add_rtn_u32 v{24+j}, v{28+j}, v20 offset:{CNT}
        """)
    for j in range(4):
        a(f"""
        v_mad_u32_u24 v21, v{16+j}, 49, 7
        v_lshrrev_b32 v21, 3, v21
        v_sub_u32 v{8+j}, v{8+j}, v21
        """)
    a("s_waitcnt vmcnt(0)")
    for j in range(4):
        a(f"""
        v_lshrrev_b32 v21, {BANDSH}, v{12+j}
        v_lshl_or_b32 v21, v{16+j}, 4, v21
        v_lshl_or_b32 v{8+j}, v{12+j}, 7, v{8+j}
        v_lshl_or_b32 v{52+2*j}, v21, 24, v{8+j}
        """)
    for j in range(4):
        a(f"""
        s_waitcnt lgkmcnt(3)
        v_cmp_gt_u32 vcc, 16, v{24+j}
        v_lshlrev_b32 v{24+j}, 3, v{24+j}
        v_mad_u32_u24 v21, v{28+j}, {SLW//4}, v{24+j}
        s_andn2_b64 s[{sOV+2*j}:{sOV+2*j+1}], exec, vcc
        s_mov_b64 exec, vcc
        ds_write_b64 v21, v[{52+2*j}:{53+2*j}] offset:{SLOTS}
        s_mov_b64 exec, {'-1' if j==3 else 's[%d:%d]'%(sVAL,sVAL+1)}
        """)
    def slot_out_prep(r=16):
        a(f"""
        v_lshrrev_b32 v{r}, 3, v0
        v_and_b32 v{r+3}, 0x70, v3
        v_mad_u32_u24 v{r+1}, v{r}, s{sT3}, v{r+3}
        v_add_u32 v{r+2}, s2, v{r}
        v_and_b32 v{r+2}, 0xff, v{r+2}
        v_lshl_add_u32 v{r+2}, v{r}, 8, v{r+2}
        v_lshl_add_u32 v{r+2}, v{r+2}, 7, v{r+3}
        v_xor_b32 v{r+3}, 0x4000, v{r+2}
        s_mov_b32 s{sT2}, 0x400000
        """)
    def slot_out(extra,r=16,d2=None):
        if d2 is None: d2 = 20 if r==16 else 96
        a(f"""
        ds_read_b128 v[60:63], v{r+1} offset:{SLOTS}
        ds_read_b128 {vr(d2,4)}, v{r+1} offset:{SLOTS+128*SLW}
        {extra}
        s_waitcnt lgkmcnt({2 if extra else 1})
        buffer_store_dwordx4 v[60:63], v{r+2}, s[{rSLOT}:{rSLOT+3}], 0 offen {ST}
        s_waitcnt lgkmcnt({1 if extra else 0})
        buffer_store_dwordx4 {vr(d2,4)}, v{r+3}, s[{rSLOT}:{rSLOT+3}], s{sT2} offen {ST}
        """)
    a(f"s_mov_b32 s{sT3}, {SLW}")
    slot_out_prep()
    a(f"""
    v_lshlrev_b32 v4, 4, v2
    s_waitcnt lgkmcnt(0)
    s_barrier
    """)
    stamp(a,opt,2)
    slot_out(f"ds_read_b128 v[8:11], v4 offset:{CNT}")
    a("s_waitcnt lgkmcnt(0)")
    for j in range(4): a(f"v_subrev_u32 v{12+j}, 16, v{8+j}")
    for j in range(4): a(f"v_max_i32 v{12+j}, 0, v{12+j}")
    a(f"""
    v_add_u32 v13, v12, v13
    v_add_u32 v14, v13, v14
    v_add_u32 v15, v14, v15
    v_mov_b32 v5, v15
    """)
    wave_scan(a,5)
    a(f"""
    v_sub_u32 v16, v5, v15
    v_add_u32 v17, v16, v12
    v_add_u32 v18, v16, v13
    v_add_u32 v19, v16, v14
    ds_write_b128 v4, v[16:19] offset:{BASE}
    """)
    for j in range(4):
        a(f"s_mov_b64 exec, s[{sOV+2*j}:{sOV+2*j+1}]\nds_read_b32 v{28+j}, v{28+j} offset:{BASE}")
    a(f"""
    s_mov_b64 exec, -1
    s_cmp_lg_u32 s{sW}, 0
    s_cbranch_scc1 K1_NOTAB
    """)
    for j in range(4):
        a(f"""
        v_lshl_or_b32 v{8+j}, v{16+j}, 16, v{8+j}
        v_lshl_add_u32 v5, v2, 2, {j}
        v_add_u32 v6, s2, v5
        v_and_b32 v6, 0xff, v6
        v_lshl_add_u32 v5, v5, 8, v6
        v_lshlrev_b32 v5, 2, v5
        buffer_store_dword v{8+j}, v5, s[{rTAB}:{rTAB+3}], 0 offen {TP}
        """)
    a("K1_NOTAB:\ns_waitcnt lgkmcnt(0)")
    for j in range(4):
        a(f"""
        s_mov_b64 exec, s[{sOV+2*j}:{sOV+2*j+1}]
        s_cbranch_execz K1_NOOV{j}
        v_lshl_add_u32 v{28+j}, v{28+j}, 3, v{24+j}
        buffer_store_dwordx2 v[{52+2*j}:{53+2*j}], v{28+j}, s[{rREC}:{rREC+3}], 0 offen {ST}
        K1_NOOV{j}:
        """)
    a("s_mov_b64 exec, -1\ns_branch K1_FIN")
    a("K1_G0:")
    srd(a,rWE,sWE,None,145*128)
    a(f"s_lshl_b32 s{sT2}, s{sT1}, 7\ns_lshl_b32 s{sT3}, s{sNN}, 7")
    srd(a,rH,sH,f"s{sT2}",f"s{sT3}")
    a(f"s_add_u32 s{sT2}, s{sT2}, {WS_BT:#x}")
    srd(a,rBT,sWS,f"s{sT2}",f"s{sT3}")
    srd(a,rSLOT,sWS,f"{WS_SLOT:#x}",NBK*32768)
    HB=32; HB3=8; WA=64; DD=96
    a(f"s_lshl_b32 s{sT2}, s{sT1}, 4\ns_add_u32 s{sT2}, s{sT2}, {WS_P16:#x}\ns_lshl_b32 s{sT3}, s{sNN}, 4")
    srd(a,rP16,sWS,f"s{sT2}",f"s{sT3}")
    a(f"""
    s_sub_u32 s{sT2}, s{sW}, 13
    s_mul_i32 s{sT2}, s{sT2}, 3072
    s_add_u32 m0, s{sT2}, {W2L}
    s_add_u32 s{sT2}, s{sT2}, {64*128}
    v_lshlrev_b32 v4, 4, v2
    """)
    for i in range(3): a(f"buffer_load_dwordx4 v4, s[{rWE}:{rWE+3}], s{sT2} offen offset:{1024*i} lds")
    a(f"""
    s_sub_u32 s{sT2}, 15, s{sW}
    s_lshl_b32 s{sT2}, s{sT2}, 12
    v_and_b32 v5, 31, v2
    v_lshrrev_b32 v6, 5, v2
    v_lshlrev_b32 v7, 7, v5
    v_lshl_add_u32 v7, v6, 4, v7
    v_add_u32 v7, s{sT2}, v7
    s_mov_b32 s{sL}, {LOG2E_NEG:#x}
    s_mov_b32 s{sL+1}, {LOG2E_NEG:#x}
    """)
    for s in range(4): a(f"buffer_load_dwordx4 v[{HB+4*s}:{HB+4*s+3}], v7, s[{rH}:{rH+3}], 0 offen offset:{32*s}")
    a(f"""
    v_subrev_u32 v24, {13*64}, v0
    {"" if opt.get('k1_early',1) else "s_barrier"}
    s_cmp_eq_u32 s{sW}, 15
    s_cbranch_scc1 K1_PREP
    s_mul_i32 s{sT2}, s{sT1}, 6
    s_mul_i32 s{sT3}, s{sNN}, 6
    """)
    srd(a,rPOS,sPOSP,f"s{sT2}",f"s{sT3}")
    a(f"""
    v_mul_u32_u24 v25, 6, v24
    buffer_load_ushort v48, v25, s[{rPOS}:{rPOS+3}], 0 offen
    buffer_load_ushort v49, v25, s[{rPOS}:{rPOS+3}], 0 offen offset:2
    buffer_load_ushort v50, v25, s[{rPOS}:{rPOS+3}], 0 offen offset:4
    s_cmp_lg_u32 s{sW}, 13
    s_cbranch_scc1 K1_W7
    v_add_u32 v7, 4096, v7
    """)
    for s in range(4): a(f"buffer_load_dwordx4 v[{HB3+4*s}:{HB3+4*s+3}], v7, s[{rH}:{rH+3}], 0 offen offset:{32*s}")
    a(f"""
    s_waitcnt vmcnt(11)
    s_branch K1_G2
    K1_W7:
    s_waitcnt vmcnt(7)
    s_branch K1_G2
    K1_PREP:
    s_cmp_ge_u32 s2, 26
    s_cbranch_scc1 K1_PREP2
    """)
    a(f"""
    s_cmp_ge_u32 s2, 10
    s_cbranch_scc1 K1_PWH
    s_lshr_b32 s{sT2}, s2, 1
    s_lshl_b32 s{sT2}, s{sT2}, 4
    s_cmp_ge_u32 s2, 8
    s_cselect_b32 s{sT2}, 129, s{sT2}
    s_and_b32 s{sT3}, s2, 1
    s_lshl_b32 s{sT3}, s{sT3}, 6
    s_lshl_b32 s{sT2}, s{sT2}, 7
    s_add_u32 s{sT2}, s{sT2}, s{sT3}
    v_lshlrev_b32 v17, 10, v6
    v_lshl_add_u32 v17, v5, 1, v17
    v_add_u32 v17, s{sT2}, v17
    s_mov_b32 s{rX}, s{sWE}
    s_mov_b32 s{rX+1}, s{sWE+1}
    s_mov_b32 s{rX+2}, {145*128}
    s_branch K1_PLD
    K1_PWH:
    s_sub_u32 s{sT2}, s2, 10
    s_and_b32 s{sT3}, s{sT2}, 3
    s_lshr_b32 s{sT2}, s{sT2}, 2
    s_lshl_b32 s{sT2}, s{sT2}, 12
    s_lshl_b32 s{sT3}, s{sT3}, 1
    s_add_u32 s{sT2}, s{sT2}, s{sT3}
    v_lshrrev_b32 v17, 4, v2
    v_lshlrev_b32 v17, 10, v17
    v_and_b32 v18, 15, v2
    v_lshl_add_u32 v17, v18, 3, v17
    v_add_u32 v17, s{sT2}, v17
    s_mov_b32 s{rX}, s{sWH}
    s_mov_b32 s{rX+1}, s{sWH+1}
    s_mov_b32 s{rX+2}, {128*128}
    K1_PLD:
    s_mov_b32 s{rX+3}, 0x20000
    """)
    for j in range(8): a(f"buffer_load_ushort v{48+j}, v17, s[{rX}:{rX+3}], 0 offen offset:{128*j}")
    a(f"""
    s_waitcnt vmcnt(12)
    s_branch K1_G2
    K1_PREP2:
    s_cmp_lg_u32 s2, 26
    s_cbranch_scc1 K1_W4
    """)
    srd(a,rX,sWX,None,128)
    a(f"""
    v_lshlrev_b32 v17, 1, v2
    v_add_u32 v17, {128*128}, v17
    buffer_load_ushort v48, v17, s[{rWE}:{rWE+3}], 0 offen
    v_and_b32 v18, 3, v2
    v_bfe_u32 v19, v2, 2, 2
    v_lshl_add_u32 v18, v19, 3, v18
    v_lshl_add_u32 v18, v6, 2, v18
    v_bfe_u32 v19, v2, 4, 1
    v_lshl_add_u32 v18, v19, 5, v18
    v_lshlrev_b32 v18, 1, v18
    buffer_load_ushort v49, v18, s[{rX}:{rX+3}], 0 offen
    K1_W4:
    s_waitcnt vmcnt(4)
    K1_G2:
    """)
    a(f"""
    v_bfe_u32 v26, v2, 2, 2
    v_lshl_add_u32 v26, v6, 3, v26
    v_lshlrev_b32 v26, 7, v26
    v_and_b32 v27, 1, v2
    v_lshl_add_u32 v26, v27, 5, v26
    v_bfe_u32 v27, v2, 4, 1
    v_lshl_add_u32 v26, v27, 4, v26
    v_bfe_u32 v27, v2, 1, 1
    v_lshl_add_u32 v26, v27, 3, v26
    s_sub_u32 s{sT2}, s{sW}, 13
    s_lshl_b32 s{sT2}, s{sT2}, 12
    v_lshl_add_u32 v28, v5, 7, s{sT2}
    v_and_b32 v27, 7, v5
    v_lshlrev_b32 v29, 1, v6
    v_xor_b32 v29, v29, v27
    v_lshl_add_u32 v28, v29, 4, v28
    v_lshl_add_u32 v30, v2, 4, s{sT2}
    v_lshrrev_b32 v31, 3, v2
    v_lshlrev_b32 v31, 4, v31
    v_lshlrev_b32 v27, 4, v2
    v_xor_b32 v31, v31, v27
    s_mov_b32 s{sT3}, {SLW}
    """)
    EARLY=opt.get('k1_early',1)
    if EARLY:
        a("s_barrier")
        stamp(a,opt,1)
    else:
        slot_out_prep(56)
        stamp(a,opt,1)
        a("s_barrier")
        stamp(a,opt,2)
        slot_out("",56)
    for p in range(2):
        for s in range(4):
            for jj in range(2):
                a(f"ds_read_b64_tr_b16 v[{WA+16*p+4*s+2*jj}:{WA+16*p+4*s+2*jj+1}], v26 offset:{W2L+s*2048+jj*512+64*p}")
    def gemm(hb,first):
        for p in range(2):
            if first: a(f"s_waitcnt lgkmcnt({8-8*p})"+((" vmcnt(0)" if EARLY else " vmcnt(2)") if p==0 else ""))
            for s in range(4):
                c = "0" if s==0 else vr(DD+16*p,16)
                a(f"v_mfma_f32_32x32x16_bf16 {vr(DD+16*p,16)}, {vr(WA+16*p+4*s,4)}, {vr(hb+4*s,4)}, {c}")
    def rows_out():
        for p in range(2):
            for i in range(8): a(f"v_pk_mul_f32 {vr(DD+16*p+2*i,2)}, {vr(DD+16*p+2*i,2)}, s[{sL}:{sL+1}]")
            for i in range(8): a(f"v_cvt_pk_bf16_f32 v{DD+16*p+i}, v{DD+16*p+2*i}, v{DD+16*p+2*i+1}")
            for i in range(2):
                if 4*p+i: a(f"v_xor_b32 v29, {16*(4*p+i)}, v28")
                a(f"ds_write_b128 v{29 if 4*p+i else 28}, {vr(DD+16*p+4*i,4)} offset:{BOUT}")
        for i in range(4): a(f"ds_read_b128 {vr(DD+4*i,4)}, v30 offset:{BOUT+1024*i}")
        a(f"v_add_u32 v27, s{sT2}, v31")
        for i in range(4):
            a(f"s_waitcnt lgkmcnt({3-i})\nbuffer_store_dwordx4 {vr(DD+4*i,4)}, v27, s[{rBT}:{rBT+3}], 0 offen offset:{1024*i} {ST}")
    gemm(HB,True)
    a(f"""
    s_cmp_eq_u32 s{sW}, 15
    s_cbranch_scc1 K1_SIDE_PREP
    v_lshlrev_b32 v24, 4, v24
    v_lshlrev_b32 v48, 16, v48
    v_lshlrev_b32 v49, 16, v49
    v_lshlrev_b32 v50, 16, v50
    v_mov_b32 v51, 0
    buffer_store_dwordx4 v[48:51], v24, s[{rP16}:{rP16+3}], 0 offen {ST}
    s_branch K1_SIDE_DONE
    K1_SIDE_PREP:
    s_cmp_gt_u32 s2, 26
    s_cbranch_scc1 K1_SIDE_DONE
    """)
    srd(a,rY,sWS,f"{WS_WT:#x}",WT_SIZE)
    a(f"""
    s_cmp_eq_u32 s2, 26
    s_cbranch_scc1 K1_SIDE_WD
    s_lshr_b32 s{sT2}, s2, 1
    s_cmp_eq_u32 s{sT2}, 4
    s_cbranch_scc1 K1_SIDE_W3
    """)
    for i in range(4): a(f"v_lshl_or_b32 v{56+i}, v{49+2*i}, 16, v{48+2*i}")
    a("s_branch K1_SIDE_ST\nK1_SIDE_W3:")
    for j in range(8): a(f"v_lshlrev_b32 v{48+j}, 16, v{48+j}\nv_mul_f32 v{48+j}, s{sL}, v{48+j}")
    for i in range(4): a(f"v_cvt_pk_bf16_f32 v{56+i}, v{48+2*i}, v{49+2*i}")
    a(f"""
    K1_SIDE_ST:
    s_lshl_b32 s{sT2}, s2, 10
    v_lshl_add_u32 v16, v2, 4, s{sT2}
    buffer_store_dwordx4 v[56:59], v16, s[{rY}:{rY+3}], 0 offen {ST}
    s_branch K1_SIDE_DONE
    K1_SIDE_WD:
    v_lshlrev_b32 v48, 16, v48
    v_mul_f32 v48, s{sL}, v48
    v_cvt_pk_bf16_f32 v50, v48, v48
    v_and_b32 v51, 0xffff0000, v50
    v_sub_f32 v51, v48, v51
    v_cvt_pk_bf16_f32 v50, v48, v51
    v_lshlrev_b32 v49, 16, v49
    v_mul_f32 v49, {LN2_NEG:#x}, v49
    v_lshlrev_b32 v16, 2, v2
    v_add_u32 v16, {WT_WDT}, v16
    buffer_store_dword v50, v16, s[{rY}:{rY+3}], 0 offen {ST}
    buffer_store_dword v49, v16, s[{rY}:{rY+3}], 0 offen offset:{WT_WXT-WT_WDT} {ST}
    K1_SIDE_DONE:
    s_sub_u32 s{sT2}, 15, s{sW}
    s_lshl_b32 s{sT2}, s{sT2}, 12
    """)
    rows_out()
    if EARLY:
        a(f"s_cmp_lg_u32 s{sW}, 13\ns_cbranch_scc1 K1_G3")
        gemm(HB3,False)
        a(f"K1_G3:\ns_mov_b32 s{sT3}, {SLW}")
        slot_out_prep(56)
        a("s_barrier")
        stamp(a,opt,2)
        slot_out("",56,24)
        a(f"s_cmp_lg_u32 s{sW}, 13\ns_cbranch_scc1 K1_FIN\ns_mov_b32 s{sT2}, {3*4096}")
    else:
        a(f"s_cmp_lg_u32 s{sW}, 13\ns_cbranch_scc1 K1_FIN\ns_mov_b32 s{sT2}, {3*4096}")
        gemm(HB3,False)
    rows_out()
    a("K1_FIN:")
    stamp(a,opt,5)
    if opt.get('stamp'): a("s_waitcnt vmcnt(0)")
    stamp(a,opt,6)
    stamp(a,opt,7)
    stamp_out(a,opt,0,sWS,sW,32,40)
    a(f"""
    K1_END:
    s_endpgm
    """)
    return a
```

```python
from asmlib import *
from cfg import *
from k1 import srd, wave_scan, stamp, stamp_out, STREG

CNT=0; BASE=1024; MAXC=2048; KEYS=2112; WDL=2304; WXL=2560; OHT=2944; PDT=3072; W3L=4864
LCAP=3712; L0=6912; L1=L0+4*LCAP; SX=L1+4*LCAP; BST=SX+32768; BSTW=4352
WHL=BST+16*BSTW; W1L=WHL+16384; K2_LDS=W1L+8192
assert L0%256==0 and L1%256==0 and K2_LDS<=163840 and L1//256<256
D1=0; D2=32; W3=64; AG=72; ID=80; EE=88; T0=96; T1=100; EA=104; OH=108; PS=112; TMP=115
cDMA=116; aTR=117; aSXR=118; aSXW=119; cPD=120; cHH=121; W0E=122; SXA=123; aL4=124; aLE=125; aEA=126; TID=127
sH,sEAP,sOUT,sWS=4,6,8,10
rTAB,rREC,rBT,rEA,rP16,rH,rWT,rOUT,rOUTP=12,16,20,24,28,32,36,40,44
sW,sLayer,sBlo,sBhi,sMaxc,sNT,sT0,sT1,sT2,sT3=48,51,52,53,54,55,56,57,58,59
sNode0,sCnt=58,59
rSLOT=92; sCH=96; sG=0; sGs=49; sPad=50
sM0=60; sHI=64; sONE=66; sMASK=68; sFirst=69; sK=70; sQ3=72; sTot=74; sGb=75; sV=76

def mf(d,a_,b,c=None):
    return f"v_mfma_f32_32x32x16_bf16 {vr(d,16)}, {vr(a_,4)}, {vr(b,4)}, {'0' if c is None else vr(c,16)}"
XNS=0
def exp4(p,b,h):
    if XNS: return f"v_mov_b32 v{EE+4*h}, v{D1+16*p+8*b+4*h}"
    return exp4_(p,b,h)
def rcp4(h):
    if XNS: return "s_nop 0"
    return rcp4_(h)
def exp4_(p,b,h): return "\n".join(f"v_exp_f32 v{EE+4*h+i}, v{D1+16*p+8*b+4*h+i}" for i in range(4))
def rcp4_(h): return "\n".join(f"v_rcp_f32 v{EE+4*h+i}, v{EE+4*h+i}" for i in range(4))
def padd(): return "\n".join(f"v_pk_add_f32 {vr(EE+2*i,2)}, {vr(EE+2*i,2)}, s[{sONE}:{sONE+1}]" for i in range(4))
def pmulcvt(p,b):
    y=D1+16*p+8*b
    return "\n".join([f"v_pk_mul_f32 {vr(EE+2*i,2)}, {vr(y+2*i,2)}, {vr(EE+2*i,2)}" for i in range(4)]+
                     [f"v_cvt_pk_bf16_f32 v{y+i}, v{EE+2*i}, v{EE+2*i+1}" for i in range(4)])
def bst_reads(p):
    return "\n".join(f"ds_read_b64_tr_b16 {vr((T0,T1)[s]+2*jj,2)}, v{aTR} offset:{s*2176+jj*256+64*p}" for s in range(2) for jj in range(2))
def sx_reads(n=2):
    return "\n".join(f"ds_read_b64_tr_b16 {vr((T0,T1)[s]+2*jj,2)}, v{aSXR} offset:{s*1024+jj*512}" for s in range(n) for jj in range(2))
def idx_reads():
    return f"ds_read_b128 {vr(OH,4)}, v{aL4}\nds_read_b32 v{W0E}, v{aLE}\nds_read_b32 v{aEA}, v{aLE} offset:{L1-L0}"
def issue_loads(opt):
    EP=opt.get('ea_pol','')
    s="\n".join(f"v_and_or_b32 v{OH+i}, v{OH+i}, {'0' if opt.get('x_nob') else 's%d'%sMASK}, v{cDMA}" for i in range(4))
    if opt.get('x_noea'): s+=f"\nv_mov_b32 v{aEA}, v{cHH}"
    else: s+=f"\nv_add_u32 v{aEA}, v{aEA}, v{cHH}"
    s+=f"\nv_bfe_u32 v{TMP}, v{W0E}, 3, {0 if opt.get('x_nopos') else 19}\n"
    for i in range(4):
        s+=f"s_mov_b32 m0, s{sM0+i}\n"
        if i==0: s+=f"v_and_b32 v{W0E}, 7, v{W0E}\n"
        s+=f"buffer_load_dwordx4 v{OH+i}, s[{rBT}:{rBT+3}], 0 offen lds\n"
    s+=f"s_mov_b64 exec, s[{sHI}:{sHI+1}]\nbuffer_load_dwordx3 {vr(PS,3)}, v{TMP}, s[{rP16}:{rP16+3}], 0 offen\ns_mov_b64 exec, -1\n"
    s+=f"buffer_load_dwordx4 {vr(EA,4)}, v{aEA}, s[{rEA}:{rEA+3}], 0 offen {EP}\n"
    return s
def oh_read():
    return f"v_lshl_add_u32 v{TMP}, v{W0E}, 4, v{cPD}\nds_read_b128 {vr(OH,4)}, v{TMP}\nv_add_u32 v{aL4}, 128, v{aL4}\nv_add_u32 v{aLE}, 128, v{aLE}"
def edge():
    return f"""s_mov_b64 exec, s[{sHI}:{sHI+1}]
    v_sub_f32 v{OH}, v{OH}, v{PS}
    v_sub_f32 v{OH+1}, v{OH+1}, v{PS+1}
    v_sub_f32 v{OH+2}, v{OH+2}, v{PS+2}
    v_mul_f32 v{PS}, v{OH}, v{OH}
    v_fmac_f32 v{PS}, v{OH+1}, v{OH+1}
    v_fmac_f32 v{PS}, v{OH+2}, v{OH+2}
    v_cvt_pk_bf16_f32 v{OH}, 1.0, v{OH}
    v_cvt_pk_bf16_f32 v{OH+1}, v{OH+1}, v{OH+2}
    v_cvt_pk_bf16_f32 v{OH+2}, v{PS}, v{PS}
    s_mov_b64 exec, -1"""
def sx_zero(): return f"ds_write2_b32 v{SXA}, v{OH+3}, v{OH+3} offset0:0 offset1:1"
def g2(p,s): return mf(D2+16*p, D1+16*p+8*s, (T0,T1)[s], D2+16*p)

def fin_loads():
    return f"""v_mbcnt_lo_u32_b32 v{aL4}, -1, 0
    v_mbcnt_hi_u32_b32 v{aL4}, -1, v{aL4}
    v_bfe_u32 v{aLE}, v{aL4}, 2, 2
    v_and_b32 v{aEA}, 1, v{aL4}
    v_lshl_add_u32 v{aLE}, v{aLE}, 1, v{aEA}
    v_lshrrev_b32 v{aEA}, 4, v{aL4}
    v_lshlrev_b32 v{PS}, 4, v{aEA}
    v_lshl_add_u32 v{PS}, v{aLE}, 7, v{PS}
    v_and_b32 v{aL4}, 15, v{aL4}
    v_lshlrev_b32 v{aL4}, 3, v{aL4}
    v_lshl_add_u32 v{aL4}, v{aEA}, 8, v{aL4}
    buffer_load_dwordx4 {vr(EA,4)}, v{PS}, s[{rH}:{rH+3}], 0 offen
    buffer_load_dwordx4 {vr(PS,4)}, v{PS}, s[{rH}:{rH+3}], 0 offen offset:64
    buffer_load_dwordx2 {vr(aEA,2)}, v{aL4}, s[{rH}:{rH+3}], 0 offen offset:128
    buffer_load_dwordx2 {vr(aL4,2)}, v{aL4}, s[{rH}:{rH+3}], 0 offen"""

def phaseX(a,opt,last,half=False):
    d=D1+16
    a("s_waitcnt lgkmcnt(2)"); a(g2(1,0)); a(exp4(0,0,0))
    a("s_waitcnt lgkmcnt(0)"); a(g2(1,1)); a(exp4(0,0,1))
    a(f"s_mov_b64 exec, s[{sHI}:{sHI+1}]"); a(sx_zero())
    a(f"v_lshl_add_u32 v{SXA}, v{W0E}, 3, v{aSXW}\nds_write_b64 v{SXA}, {vr(OH,2)}\ns_mov_b64 exec, -1")
    a(bst_reads(1)); a(padd())
    a(mf(d,OH,AG+4)); a(rcp4(0)); a(mf(d,EA,W3+4,d))
    if not last: a(idx_reads())
    a(rcp4(1))
    if half:
        a(pmulcvt(0,0))
        a("s_waitcnt lgkmcnt(2)"); a(mf(d,ID,T0,d)); a(fin_loads())
        a("s_waitcnt lgkmcnt(0)"); a(mf(d,ID+4,T1,d))
        a(sx_reads(1))
        return
    a(pmulcvt(0,0))
    a(f"s_waitcnt lgkmcnt({2 if last else 5})"); a(mf(d,ID,T0,d)); a(exp4(0,1,0))
    a(f"s_waitcnt lgkmcnt({0 if last else 3})"); a(mf(d,ID+4,T1,d)); a(exp4(0,1,1))
    if not last:
        a("s_waitcnt lgkmcnt(0)"); a(issue_loads(opt))
    else: a(fin_loads())
    a(padd()); a(rcp4(0))
    if not last: a(oh_read())
    a(sx_reads())
    a(rcp4(1)); a(pmulcvt(0,1))

def phaseY(a,opt,last,half=False):
    d=D1
    SPF=opt.get('spf',0); BPF=opt.get('bpf',0)
    if half:
        a("s_waitcnt lgkmcnt(0)"); a(g2(0,0)); a(exp4(1,0,0)); a(exp4(1,0,1))
        a(padd()); a(rcp4(0)); a(rcp4(1)); a(pmulcvt(1,0))
        a(g2(1,0))
        return
    a("s_waitcnt lgkmcnt(2)"); a(g2(0,0)); a(exp4(1,0,0))
    a("s_waitcnt lgkmcnt(0)"); a(g2(0,1)); a(exp4(1,0,1))
    if not last:
        if SPF: a(f"ds_read_b32 v{TID}, v{aLE} offset:{L1-L0}")
        a("s_waitcnt vmcnt(1)"); a(bst_reads(0)); a(edge())
    a(padd())
    if not last: a("s_waitcnt lgkmcnt(2)"); a(mf(d,ID,T0))
    a(rcp4(0))
    if not last: a("s_waitcnt lgkmcnt(0)"); a(mf(d,ID+4,T1,d))
    if SPF and not last:
        a(f"s_cmp_le_u32 s{sNT}, 2\ns_cbranch_scc1 K2_NOSPF")
        for i in range(SPF): a(f"v_readlane_b32 s{sV+i}, v{TID}, {i}")
        for i in range(SPF): a(f"s_buffer_load_dword s{sTot}, s[{rEA}:{rEA+3}], s{sV+i}")
        a("K2_NOSPF:")
    if BPF and not last:
        for i in range(BPF): a(f"s_buffer_load_dword s{sTot}, s[{rBT}:{rBT+3}], s{sGb} offset:{(i%4)*128+(i//4)*262144}")
        a(f"s_add_u32 s{sGb}, s{sGb}, {(BPF//4)*262144}")
    a(rcp4(1)); a(pmulcvt(1,0))
    if last: a(g2(1,0))
    else: a(mf(d,OH,AG,d))
    a(exp4(1,1,0))
    if not last: a("s_waitcnt vmcnt(0)"); a(mf(d,EA,W3,d))
    a(exp4(1,1,1))
    if not last: a(sx_reads())
    a(padd()); a(rcp4(0)); a(rcp4(1)); a(pmulcvt(1,1))
    if last: a(g2(1,1))

def xfilter(a,n0,opt):
    import re
    pats=opt.get('x_drop')
    if pats: a.l[n0:]=[l for l in a.l[n0:] if not re.search(pats,l)]
def slot_loads(a):
    a(f"""
    v_and_b32 v89, 3, v{TID}
    v_lshrrev_b32 v90, 2, v{TID}
    v_lshlrev_b32 v91, 7, v90
    v_lshl_add_u32 v91, v89, 4, v91
    buffer_load_dwordx4 v[0:3], v91, s[{rSLOT}:{rSLOT+3}], 0 offen
    buffer_load_dwordx4 v[4:7], v91, s[{rSLOT}:{rSLOT+3}], 0 offen offset:64
    """)
def ov_prep(a):
    a(f"""
    v_subrev_u32 v90, s2, v90
    v_and_b32 v90, 0xff, v90
    s_lshl_b32 s{sT0}, s{sLayer}, 5
    v_lshl_add_u32 v89, v89, 1, s{sT0}
    v_mad_u32_u24 v90, v90, s{sCH}, v89
    s_cmp_ge_u32 s{sW}, s{sBlo}
    s_cselect_b32 s{sT0}, -1, 0
    s_cmp_lt_u32 s{sW}, s{sBhi}
    s_cselect_b32 s{sT0}, s{sT0}, 0
    """)
def ov_loads(a,js):
    a(f"""
    v_and_b32 v92, 0xffff, v88
    v_lshrrev_b32 v88, 16, v88
    v_sub_u32 v89, v92, v89
    v_add_lshl_u32 v88, v88, v90, 3
    v_and_b32 v89, s{sT0}, v89
    """)
    for j in range(4):
        a(f"v_cmp_lt_i32 s[{sV+4*j}:{sV+4*j+1}], {8*j}, v89\nv_cmp_lt_i32 s[{sV+4*j+2}:{sV+4*j+3}], {8*j+1}, v89")
    global OVN
    OVN+=1
    for j in js:
        a(f"s_mov_b64 exec, s[{sV+4*j}:{sV+4*j+1}]\ns_cbranch_execz K2_OV{OVN}\nbuffer_load_dwordx4 {vr(4*j,4)}, v88, s[{rREC}:{rREC+3}], 0 offen offset:{64*j}")
    a(f"K2_OV{OVN}:\ns_mov_b64 exec, -1")
OVN=0

def gen_k2(opt):
    global XNS
    XNS=opt.get('x_nosilu',0)
    STREG.update(regs=[97,98,99,100,101,3,1,6],tmp=4)
    BAL=opt.get('bal',1); HALF=opt.get('half',1)
    HA=32
    a=Asm()
    a(f"""
    s_cmp_ge_u32 s2, {NBK}
    s_cbranch_scc1 K2_END
    s_load_dwordx2 s[10:11], s[0:1], 80
    s_load_dwordx2 s[4:5], s[0:1], 0
    s_load_dwordx2 s[6:7], s[0:1], 16
    s_load_dwordx2 s[8:9], s[0:1], 64
    v_mov_b32 v{TID}, v0
    v_lshrrev_b32 v1, 6, v0
    v_and_b32 v2, 0x3fc, v0
    v_readfirstlane_b32 s{sW}, v1
    s_lshl_b32 s{sT0}, s2, 10
    s_add_u32 s{sT0}, s{sT0}, {WS_TAB:#x}
    s_mov_b32 s{sLayer}, 0
    s_mov_b32 s{sBlo}, 0
    s_mov_b32 s{sBhi}, 16
    s_mov_b32 s{sFirst}, 1
    s_waitcnt lgkmcnt(0)
    """)
    stamp(a,opt,0)
    srd(a,rTAB,sWS,f"s{sT0}",1024)
    a(f"buffer_load_dword v88, v2, s[{rTAB}:{rTAB+3}], 0 offen")
    a(f"s_lshl_b32 s{sT0}, s2, 15\ns_add_u32 s{sT0}, s{sT0}, {WS_SLOT:#x}")
    srd(a,rSLOT,sWS,f"s{sT0}",32768)
    a(f"v_lshlrev_b32 v16, 2, v0")
    slot_loads(a)
    srd(a,rREC,sWS,f"{WS_REC-128:#x}",NBK*CH*8+128)
    a(f"s_mov_b32 s{sCH}, {CH}")
    ov_prep(a)
    a(f"""
    v_mov_b32 v17, 0
    s_mov_b32 s{sT3}, s{sT0}
    s_cmp_gt_u32 s{sW}, 8
    s_cbranch_scc1 K2_NOZ
    ds_write_b32 v16, v17 offset:{CNT}
    K2_NOZ:
    s_mov_b32 s{sHI}, 0
    s_mov_b32 s{sHI+1}, -1
    s_mov_b32 s{sONE}, 1.0
    s_mov_b32 s{sONE+1}, 1.0
    s_mov_b32 s{sMASK}, 0x3fff80
    s_mov_b32 s{sQ3}, 0x88888888
    s_mov_b32 s{sQ3+1}, 0x88888888
    s_mul_i32 s{sM0}, s{sW}, {BSTW}
    s_add_u32 s{sM0}, s{sM0}, {BST}
    s_add_u32 s{sM0+1}, s{sM0}, 1088
    s_add_u32 s{sM0+2}, s{sM0}, 2176
    s_add_u32 s{sM0+3}, s{sM0}, 3264
    """)
    srd(a,rP16,sWS,f"{WS_P16:#x}",N*16)
    srd(a,rWT,sWS,f"{WS_WT:#x}",WT_SIZE)
    srd(a,rBT,sWS,f"{WS_BT:#x}",N*128)
    srd(a,rEA,sEAP,None,E*32)
    srd(a,rH,sH,None,0); srd(a,rOUT,sOUT,None,0); srd(a,rOUTP,sOUT,None,0)
    a(f"""
    v_and_b32 v18, 63, v{TID}
    v_and_b32 v{cDMA}, 7, v18
    v_lshlrev_b32 v{cDMA}, 4, v{cDMA}
    v_lshrrev_b32 v{cHH}, 5, v18
    v_lshlrev_b32 v{cHH}, 4, v{cHH}
    s_cmp_lg_u32 s{sW}, 13
    s_cbranch_scc1 K2_NOOH
    v_bfe_u32 v19, v18, 2, 1
    v_lshlrev_b32 v19, 4, v19
    v_mov_b32 v20, 0x3f80
    v_lshlrev_b32 v19, v19, v20
    v_bfe_u32 v20, v18, 3, 2
    v_and_b32 v21, 3, v18
    v_cmp_eq_u32 vcc, v20, v21
    v_mov_b32 v20, {LN2_NEG:#x}
    v_lshlrev_b32 v21, 2, v18
    v_cndmask_b32 v19, 0, v19, vcc
    s_mov_b32 exec_hi, 0
    ds_write_b32 v21, v19 offset:{OHT}
    ds_write_b32 v21, v20 offset:{WXL+256}
    s_mov_b64 exec, -1
    K2_NOOH:
    v_lshlrev_b32 v19, 4, v{TID}
    v_lshlrev_b32 v18, 4, v18
    s_mov_b32 s{sT0}, s{sT3}
    s_waitcnt lgkmcnt(0)
    s_barrier
    s_waitcnt vmcnt(2)
    """)
    stamp(a,opt,1)
    ov_loads(a,(2,3))
    a(f"""
    s_lshl_b32 s{sT0}, s{sW}, 10
    s_add_u32 m0, s{sT0}, {WHL}
    s_mov_b32 s{sT1}, {WT_WHT}
    buffer_load_dwordx4 v19, s[{rWT}:{rWT+3}], s{sT1} offen lds
    s_cmp_ge_u32 s{sW}, 10
    s_cbranch_scc1 K2_DM1
    s_add_u32 s{sT1}, s{sT0}, {W1L}
    s_add_u32 s{sT2}, s{sT0}, {W3L-8192}
    s_cmp_ge_u32 s{sW}, 8
    s_cselect_b32 m0, s{sT2}, s{sT1}
    s_nop 0
    buffer_load_dwordx4 v19, s[{rWT}:{rWT+3}], 0 offen lds
    s_waitcnt vmcnt(2)
    s_branch K2_HAVE
    K2_DM1:
    s_cmp_ge_u32 s{sW}, 12
    s_cbranch_scc1 K2_DM2
    s_sub_u32 s{sT0}, s{sT0}, {10*1024}
    s_add_u32 m0, s{sT0}, {PDT}
    s_mul_i32 s{sT1}, s2, {NB*16}
    s_add_u32 s{sT1}, s{sT1}, s{sT0}
    v_add_u32 v18, s{sT1}, v18
    s_cmp_eq_u32 s{sW}, 11
    s_cselect_b32 exec_hi, 0xff, -1
    buffer_load_dwordx4 v18, s[{rP16}:{rP16+3}], 0 offen lds
    s_mov_b64 exec, -1
    s_waitcnt vmcnt(2)
    s_branch K2_HAVE
    K2_DM2:
    s_cmp_lg_u32 s{sW}, 12
    s_cbranch_scc1 K2_DM3
    s_mov_b32 m0, {WDL}
    s_mov_b32 s{sT1}, {WT_WDT}
    s_mov_b32 exec_hi, 0
    buffer_load_dwordx4 v18, s[{rWT}:{rWT+3}], s{sT1} offen lds
    s_mov_b64 exec, -1
    s_waitcnt vmcnt(2)
    s_branch K2_HAVE
    K2_DM3:
    s_waitcnt vmcnt(1)
    s_branch K2_HAVE
    K2_ROUND:
    s_waitcnt vmcnt(0)
    s_barrier
    v_mbcnt_lo_u32_b32 v2, -1, 0
    v_mbcnt_hi_u32_b32 v2, -1, v2
    s_lshl_b32 s{sT0}, s{sW}, 6
    v_add_u32 v{TID}, s{sT0}, v2
    v_and_b32 v2, 0x3fc, v{TID}
    buffer_load_dword v88, v2, s[{rTAB}:{rTAB+3}], 0 offen
    v_mov_b32 v17, 0
    v_lshlrev_b32 v16, 2, v{TID}
    s_cmp_ge_u32 s{sW}, 4
    s_cbranch_scc1 K2_NOZ2
    ds_write_b32 v16, v17 offset:{CNT}
    K2_NOZ2:
    """)
    slot_loads(a); ov_prep(a)
    a(f"""
    s_waitcnt vmcnt(0)
    s_cmp_eq_u32 s{sLayer}, 0
    s_cbranch_scc0 K2_DEEP
    """)
    ov_loads(a,(2,3))
    a("s_branch K2_DEEP2\nK2_DEEP:")
    ov_loads(a,(0,1,2,3))
    a(f"""
    K2_DEEP2:
    s_waitcnt lgkmcnt(0)
    s_barrier
    s_waitcnt vmcnt(0)
    K2_HAVE:
    """)
    stamp(a,opt,2)
    a(f"""
    v_cmp_lt_u32 vcc, 32, v92
    v_mov_b32 v93, {MAXC}
    v_mov_b32 v94, 1
    s_mov_b64 exec, vcc
    s_cbranch_execz K2_NOMAX
    ds_max_u32 v93, v92
    K2_NOMAX:
    """)
    for k in range(8):
        a(f"""
        s_mov_b64 exec, s[{sV+2*k}:{sV+2*k+1}]
        s_cbranch_execz K2_ATOM_DONE
        v_lshrrev_b32 v{16+k}, 22, v{2*k}
        ds_add_rtn_u32 v{24+k}, v{16+k}, v94 offset:{CNT}
        """)
    a(f"""
    K2_ATOM_DONE:
    s_mov_b64 exec, -1
    v_and_b32 v100, 63, v{TID}
    v_lshlrev_b32 v101, 4, v100
    """)
    if opt.get('vpf'):
        nb=opt.get('vpf')
        a(f"""
        s_cmp_lg_u32 s{sFirst}, 1
        s_cbranch_scc1 K2_NOVPF
        s_lshr_b32 s{sT0}, s2, 3
        s_lshl_b32 s{sT0}, s{sT0}, 4
        s_add_u32 s{sT0}, s{sT0}, s{sW}
        s_lshl_b32 s{sT0}, s{sT0}, 9
        v_and_b32 v95, 3, v100
        v_lshrrev_b32 v96, 2, v100
        v_lshlrev_b32 v96, 18, v96
        v_lshl_add_u32 v95, v95, 7, v96
        v_add_u32 v95, s{sT0}, v95
        s_mov_b32 exec_hi, {((1<<(4*nb))-1)>>32:#x}
        s_mov_b32 exec_lo, {((1<<(4*nb))-1)&0xffffffff:#x}
        buffer_load_dword v95, v95, s[{rBT}:{rBT+3}], 0 offen
        s_mov_b64 exec, -1
        K2_NOVPF:
        """)
    stamp(a,opt,3,2)
    a(f"""
    s_waitcnt lgkmcnt(0)
    s_barrier
    """)
    stamp(a,opt,4,2)
    a(f"""
    ds_read_b128 v[88:91], v101 offset:{CNT}
    ds_read_b32 v102, v93
    s_waitcnt lgkmcnt(0)
    v_readfirstlane_b32 s{sMaxc}, v102
    v_add_u32 v89, v88, v89
    v_add_u32 v90, v89, v90
    v_add_u32 v91, v90, v91
    v_add_u32_dpp v92, v91, v91 quad_perm:[1,0,3,2] row_mask:0xf bank_mask:0xf
    v_lshrrev_b32 v102, 2, v100
    v_add_u32_dpp v92, v92, v92 quad_perm:[2,3,0,1] row_mask:0xf bank_mask:0xf
    """)
    if BAL:
        a(f"""
        v_lshl_add_u32 v104, v92, 4, v102
        v_and_b32 v105, 0x3c, v100
        v_and_b32 v106, 3, v100
        v_lshlrev_b32 v106, 4, v106
        ds_write_b32 v105, v104 offset:{KEYS}
        ds_read_b128 v[108:111], v106 offset:{KEYS}
        """)
    a(f"""
    v_sub_u32 v93, 0, v92
    v_and_b32 v93, 31, v93
    v_cndmask_b32 v93, 0, v93, s[{sQ3}:{sQ3+1}]
    v_add_u32 v94, v91, v93
    v_mov_b32 v103, v94
    """)
    wave_scan(a,103)
    a(f"""
    v_sub_u32 v96, v103, v94
    v_add_u32 v97, v96, v88
    v_add_u32 v98, v96, v89
    v_add_u32 v99, v96, v90
    ds_write_b128 v101, v[96:99] offset:{BASE}
    v_readlane_b32 s{sTot}, v103, 63
    s_cmp_le_u32 s{sTot}, {LCAP}
    s_cbranch_scc1 K2_FITS
    s_add_u32 s{sBhi}, s{sBlo}, 4
    s_waitcnt lgkmcnt(0)
    s_branch K2_ROUND
    K2_FITS:
    """)
    stamp(a,opt,5,2)
    for k in range(8):
        a(f"""
        s_mov_b64 exec, s[{sV+2*k}:{sV+2*k+1}]
        s_cbranch_execz K2_BR_DONE
        ds_read_b32 v{16+k}, v{16+k} offset:{BASE}
        """)
    a(f"""
    K2_BR_DONE:
    s_mov_b64 exec, -1
    s_cmp_eq_u32 s{sFirst}, 0
    s_cbranch_scc1 K2_NFG
    """)
    if BAL:
        a(f"""
        s_lshr_b32 s{sT0}, s{sW}, 2
        s_and_b32 s{sT1}, s{sT0}, 1
        s_mul_i32 s{sT1}, s{sT1}, 3
        s_xor_b32 s{sT0}, s{sW}, s{sT1}
        s_waitcnt lgkmcnt(0)
        v_cmp_gt_u32 vcc, v108, v104
        v_cmp_gt_u32 s[{sK}:{sK+1}], v109, v104
        v_addc_co_u32 v105, vcc, 0, 0, vcc
        v_addc_co_u32 v105, s[{sK}:{sK+1}], 0, v105, s[{sK}:{sK+1}]
        v_cmp_gt_u32 vcc, v110, v104
        v_cmp_gt_u32 s[{sK}:{sK+1}], v111, v104
        v_addc_co_u32 v105, vcc, 0, v105, vcc
        v_addc_co_u32 v105, s[{sK}:{sK+1}], 0, v105, s[{sK}:{sK+1}]
        v_add_u32_dpp v105, v105, v105 quad_perm:[1,0,3,2] row_mask:0xf bank_mask:0xf
        v_add_u32_dpp v105, v105, v105 quad_perm:[2,3,0,1] row_mask:0xf bank_mask:0xf
        v_cmp_eq_u32 vcc, s{sT0}, v105
        s_ff1_i32_b64 s{sG}, vcc
        s_lshr_b32 s{sG}, s{sG}, 2
        s_and_b32 s{sG}, s{sG}, 15
        """)
    else:
        a(f"""
        s_lshr_b32 s{sT1}, s{sW}, 3
        s_sub_u32 s{sT2}, s{sW}, s{sT1}
        s_and_b32 s{sT2}, s{sT2}, 7
        s_lshl_b32 s{sT1}, s{sT1}, 3
        s_add_u32 s{sG}, s{sT1}, s{sT2}
        """)
    a(f"""
    s_and_b32 s{sT1}, s{sG}, 7
    s_cmp_eq_u32 s{sT1}, 0
    s_cselect_b32 s{sCnt}, 7, 6
    s_mul_i32 s{sGs}, s{sG}, 49
    s_add_u32 s{sGs}, s{sGs}, 7
    s_lshr_b32 s{sGs}, s{sGs}, 3
    s_mul_i32 s{sNode0}, s2, {NB}
    s_add_u32 s{sNode0}, s{sNode0}, s{sGs}
    s_lshl_b32 s{sGs}, s{sGs}, 4
    s_add_u32 s{sGs}, s{sGs}, {PDT}
    s_sub_i32 s{sT1}, {N}, s{sNode0}
    s_max_i32 s{sT1}, s{sT1}, 0
    s_min_u32 s{sCnt}, s{sCnt}, s{sT1}
    s_min_u32 s{sNode0}, s{sNode0}, {N}
    s_lshl_b32 s{sT0}, s{sNode0}, 7
    s_lshl_b32 s{sT1}, s{sCnt}, 7
    """)
    srd(a,rH,sH,f"s{sT0}",f"s{sT1}")
    a(f"""
    v_and_b32 v105, 3, v100
    v_bfe_u32 v106, v100, 3, 2
    v_lshl_add_u32 v105, v106, 2, v105
    v_lshl_add_u32 v105, v105, 7, v{cHH}
    s_mov_b32 exec_lo, 0xf0f
    s_mov_b32 exec_hi, 0xf0f
    """)
    for s_ in range(4): a(f"buffer_load_dwordx4 {vr(HA+4*s_,4)}, v105, s[{rH}:{rH+3}], 0 offen offset:{32*s_}")
    a(f"""
    s_mov_b64 exec, -1
    v_mov_b32 v{cPD}, {OHT}
    v_mov_b32 v105, s{sGs}
    v_cndmask_b32 v{cPD}, v{cPD}, v105, s[{sHI}:{sHI+1}]
    """)
    srd(a,rOUT,sOUT,f"s{sT0}",f"s{sT1}")
    a(f"s_mul_i32 s{sT0}, s{sNode0}, 6\ns_add_u32 s{sT0}, s{sT0}, {N*128}\ns_mul_i32 s{sT1}, s{sCnt}, 6")
    srd(a,rOUTP,sOUT,f"s{sT0}",f"s{sT1}")
    a(f"""
    K2_NFG:
    s_lshl_b32 s{sT0}, s{sG}, 2
    v_readlane_b32 s{sGb}, v96, s{sT0}
    v_readlane_b32 s{sNT}, v92, s{sT0}
    v_mov_b32 v102, 7
    v_mov_b32 v103, 0
    s_add_u32 s{sT1}, s{sGb}, s{sNT}
    s_sub_u32 s{sPad}, 0, s{sNT}
    s_and_b32 s{sPad}, s{sPad}, 31
    v_add_lshl_u32 v101, s{sT1}, v100, 2
    v_cmp_gt_u32 vcc, s{sPad}, v100
    s_mov_b64 exec, vcc
    ds_write2st64_b32 v101, v102, v103 offset0:{L0//256} offset1:{L1//256}
    s_waitcnt lgkmcnt(1)
    """)
    for k in range(8):
        a(f"""
        s_mov_b64 exec, s[{sV+2*k}:{sV+2*k+1}]
        s_cbranch_execz K2_LW_DONE
        v_add_lshl_u32 v{16+k}, v{16+k}, v{24+k}, 2
        ds_write2st64_b32 v{16+k}, v{2*k}, v{2*k+1} offset0:{L0//256} offset1:{L1//256}
        """)
    a(f"""
    K2_LW_DONE:
    s_mov_b64 exec, -1
    """)
    stamp(a,opt,6,2)
    a(f"""
    s_lshl_b32 s{sT0}, s{sGb}, 2
    s_add_u32 s{sT0}, s{sT0}, {L0}
    v_lshrrev_b32 v101, 3, v100
    v_lshl_add_u32 v{aL4}, v101, 4, s{sT0}
    v_and_b32 v101, 31, v100
    v_lshl_add_u32 v{aLE}, v101, 2, s{sT0}
    s_add_u32 s{sNT}, s{sNT}, 31
    s_lshr_b32 s{sNT}, s{sNT}, 5
    s_waitcnt vmcnt(4) lgkmcnt(0)
    s_barrier
    """)
    stamp(a,opt,3,1)
    stamp(a,opt,7,2)
    if opt.get('prio'): a('s_setprio 3')
    if opt.get('bpf'):
        a(f"""
        s_lshr_b32 s{sGb}, s2, 3
        s_lshl_b32 s{sGb}, s{sGb}, 4
        s_add_u32 s{sGb}, s{sGb}, s{sW}
        s_lshl_b32 s{sGb}, s{sGb}, 9
        s_add_u32 s{sGb}, s{sGb}, {opt.get('bpf0',3)*262144}
        """)
    a(idx_reads())
    a("s_waitcnt lgkmcnt(0)")
    a(issue_loads(opt)); a(oh_read())
    a(f"""
    s_cmp_eq_u32 s{sFirst}, 0
    s_cbranch_scc1 K2_NF2
    s_mov_b32 s{sFirst}, 0
    v_lshlrev_b32 v18, 4, v100
    v_add_u32 v48, {W1L}, v18
    v_lshlrev_b32 v19, 2, v101
    ds_read_b128 {vr(W3,4)}, v18 offset:{W3L}
    ds_read_b128 {vr(W3+4,4)}, v18 offset:{W3L+1024}
    ds_read_b32 v{AG+2}, v19 offset:{WDL}
    ds_read_b32 v{AG+6}, v19 offset:{WDL+128}
    """)
    a(f"""
    v_mov_b32 v16, v100
    v_mov_b32 v20, v101
    v_lshrrev_b32 v21, 5, v16
    v_and_b32 v24, 3, v16
    v_pk_mov_b32 v[28:29], 0, 0
    v_pk_mov_b32 v[30:31], 0, 0
    s_lshl_b32 s{sT0}, s{sW}, 11
    s_add_u32 s{sT0}, s{sT0}, {SX}
    v_add_u32 v18, s{sT0}, v18
    ds_write_b128 v18, v[28:31]
    ds_write_b128 v18, v[28:31] offset:1024
    """)
    WB=(88,92,96,100,52,56,60,88)
    for i in range(7): a(f"ds_read_b128 {vr(WB[i],4)}, v48 offset:{1024*i}")
    cons=f"""v_bfe_u32 v22, v16, 4, 1
    v_bfe_u32 v23, v16, 2, 2
    v_lshl_add_u32 v{aSXW}, v20, 6, s{sT0}
    v_lshl_add_u32 v25, v21, 2, v23
    v_lshl_add_u32 v{aSXR}, v25, 6, s{sT0}
    v_lshl_add_u32 v25, v22, 2, v24
    v_lshl_add_u32 v{aSXR}, v25, 3, v{aSXR}
    v_lshrrev_b32 v25, 1, v23
    v_mul_u32_u24 v{aTR}, 1088, v25
    v_and_b32 v25, 1, v23
    v_lshl_add_u32 v25, v21, 2, v25
    v_lshl_add_u32 v{aTR}, v25, 7, v{aTR}
    v_lshl_add_u32 v{aTR}, v22, 5, v{aTR}
    v_lshl_add_u32 v{aTR}, v24, 3, v{aTR}
    v_add_u32 v{aTR}, s{sM0}, v{aTR}
    v_bfe_u32 v25, v20, 1, 1
    v_bfe_u32 v26, v20, 3, 1
    v_lshl_add_u32 v25, v25, 1, v26
    v_and_b32 v26, 1, v20
    v_lshl_add_u32 v49, v25, 1, v26
    v_xor_b32 v26, v21, v22
    v_lshl_add_u32 v49, v26, 3, v49
    v_bfe_u32 v26, v20, 2, 1
    v_lshlrev_b32 v26, 4, v26
    v_mov_b32 v27, 0x3f80
    v_lshlrev_b32 v50, v26, v27"""
    a(cons)
    idl=[]
    for i in range(0,8,2):
        idl.append(f"v_cmp_eq_u32 vcc, {i}, v49\nv_cmp_eq_u32 s[{sK}:{sK+1}], {i+1}, v49\ns_nop 0\nv_cndmask_b32 v{ID+i}, 0, v50, vcc\nv_cndmask_b32 v{ID+i+1}, 0, v50, s[{sK}:{sK+1}]")
    a("s_waitcnt vmcnt(6)")
    for i in range(8):
        s_,p=i//2,i%2
        a(f"s_waitcnt lgkmcnt({(6,6,5,4,3,2,1,0)[i]})")
        a(mf(D1+16*p, HA+4*s_, WB[i], None if s_==0 else D1+16*p))
        if i==0: a(f"ds_read_b128 {vr(WB[7],4)}, v48 offset:{1024*7}")
        if 1<=i<=4: a(idl[i-1])
    a(f"s_mov_b32 s{sK}, {LOG2E_NEG:#x}\ns_mov_b32 s{sK+1}, {LOG2E_NEG:#x}")
    a(f"s_mov_b64 exec, s[{sHI}:{sHI+1}]")
    for p in range(2):
        for i in (0,1,3): a(f"v_mov_b32 v{AG+4*p+i}, 0")
    a("s_mov_b64 exec, -1")
    for i in range(0,32,2): a(f"v_pk_mov_b32 {vr(D2+i,2)}, 0, 0")
    a("s_mov_b32 exec_hi, 0")
    for p in range(2):
        for i in range(4): a(f"v_pk_mul_f32 {vr(D1+16*p+2*i,2)}, {vr(D1+16*p+2*i,2)}, s[{sK}:{sK+1}]")
    for p in range(2):
        for i in range(4): a(f"v_cvt_pk_bf16_f32 v{AG+4*p+i}, v{D1+16*p+2*i}, v{D1+16*p+2*i+1}")
    a("s_mov_b64 exec, -1\nK2_NF2:")
    a(f"v_mov_b32 v{SXA}, v{aSXW}")
    for i in (0,2,8,10): a(f"v_pk_mov_b32 {vr(D1+16+i,2)}, 0, 0")
    a(f"""
    s_cmp_eq_u32 s{sNT}, 0
    s_cbranch_scc1 K2_EMPTY
    s_waitcnt vmcnt(1)
    """)
    stamp(a,opt,4,1)
    a(bst_reads(0)); a("s_waitcnt lgkmcnt(4)"); a(edge())
    a("s_waitcnt lgkmcnt(2)"); a(mf(D1,ID,T0)); a("s_waitcnt lgkmcnt(0)"); a(mf(D1,ID+4,T1,D1)); a(mf(D1,OH,AG,D1)); a("s_waitcnt vmcnt(0)"); a(mf(D1,EA,W3,D1))
    a(sx_reads())
    a(f"""
    s_nop 3
    s_cmp_eq_u32 s{sNT}, 1
    s_cbranch_scc1 K2_LAST
    .p2align 3
    K2_TILE:
    """)
    n0=len(a.l)
    phaseX(a,opt,False); phaseY(a,opt,False)
    xfilter(a,n0,opt)
    a(f"s_sub_u32 s{sNT}, s{sNT}, 1")
    if opt.get('prio'):
        th=opt.get('prio_th',[5,3,1])
        for i,t in enumerate(th):
            a(f"s_cmp_eq_u32 s{sNT}, {t}\ns_cbranch_scc0 K2_P{i}\ns_setprio {2-i}\nK2_P{i}:")
    a(f"""
    s_cmp_lg_u32 s{sNT}, 1
    s_cbranch_scc1 K2_TILE
    K2_LAST:
    """)
    if HALF:
        a(f"s_cmp_ge_u32 s{sPad}, 16\ns_cbranch_scc1 K2_LASTH")
    n0=len(a.l)
    phaseX(a,opt,True); phaseY(a,opt,True)
    xfilter(a,n0,opt)
    if HALF:
        a("s_branch K2_TAIL\nK2_LASTH:")
        n0=len(a.l)
        phaseX(a,opt,True,True); phaseY(a,opt,True,True)
        xfilter(a,n0,opt)
    a(f"K2_TAIL:\ns_mov_b64 exec, s[{sHI}:{sHI+1}]"); a(sx_zero()); a("s_mov_b64 exec, -1")
    a("s_branch K2_RND_END\nK2_EMPTY:\ns_waitcnt vmcnt(0) lgkmcnt(0)")
    a(fin_loads())
    a(f"""
    K2_RND_END:
    s_waitcnt lgkmcnt(0)
    s_cmp_ge_u32 s{sBhi}, 16
    s_cbranch_scc1 K2_NEXTLAYER
    s_mov_b32 s{sBlo}, s{sBhi}
    s_add_u32 s{sBhi}, s{sBhi}, 4
    s_branch K2_ROUND
    K2_NEXTLAYER:
    s_add_u32 s{sLayer}, s{sLayer}, 1
    s_mov_b32 s{sBlo}, 0
    s_lshl_b32 s{sT0}, s{sLayer}, 5
    s_cmp_lt_u32 s{sT0}, s{sMaxc}
    s_cbranch_scc1 K2_ROUND
    """)
    stamp(a,opt,5,1)
    WH=[64+4*i for i in range(10)]+[0,4,8,116,108,120]
    a(f"""
    v_mbcnt_lo_u32_b32 v31, -1, 0
    v_mbcnt_hi_u32_b32 v31, -1, v31
    v_lshlrev_b32 v28, 4, v31
    v_add_u32 v28, {WHL}, v28
    """)
    for i in range(12): a(f"ds_read_b128 {vr(WH[i],4)}, v28 offset:{1024*i}")
    a(f"""
    v_and_b32 v12, 15, v31
    v_lshrrev_b32 v13, 4, v31
    v_lshrrev_b32 v14, 2, v12
    v_and_b32 v15, 1, v31
    v_lshl_add_u32 v14, v14, 1, v15
    v_lshlrev_b32 v29, 8, v13
    v_lshl_add_u32 v29, v12, 3, v29
    s_waitcnt lgkmcnt(6)
    """)
    for i in range(12,16): a(f"ds_read_b128 {vr(WH[i],4)}, v28 offset:{1024*i}")
    a(f"""
    v_mul_u32_u24 v30, 144, v14
    v_lshl_add_u32 v30, v13, 4, v30
    v_add_u32 v30, s{sM0}, v30
    v_lshrrev_b32 v13, 5, v31
    v_lshlrev_b32 v28, 7, v13
    v_and_b32 v12, 3, v31
    v_cmp_eq_u32 vcc, 0, v12
    v_mov_b32 v14, 256
    v_cndmask_b32 v28, v28, v14, vcc
    s_mov_b64 s[{sV}:{sV+1}], vcc
    """)
    for p in range(2):
        for q in range(4): a(f"ds_read_b128 {vr(12+4*q,4)}, v28 offset:{WXL+64*p+16*q}")
        a("s_waitcnt lgkmcnt(0)")
        for i in range(8): a(f"v_pk_mul_f32 {vr(D2+16*p+2*i,2)}, {vr(D2+16*p+2*i,2)}, {vr(12+2*i,2)}")
    a(f"""
    v_bfe_u32 v12, v31, 2, 3
    v_mul_u32_u24 v28, 144, v12
    v_lshrrev_b32 v13, 5, v31
    v_lshl_add_u32 v28, v13, 3, v28
    v_add_u32 v28, s{sM0}, v28
    v_and_b32 v14, 3, v31
    v_lshlrev_b32 v15, 4, v12
    v_lshl_add_u32 v15, v14, 2, v15
    s_sub_u32 s{sT1}, s{sGs}, 4
    v_add_u32 v15, s{sT1}, v15
    ds_read_b32 v16, v15
    v_mul_u32_u24 v12, 6, v12
    v_lshl_add_u32 v12, v14, 1, v12
    v_subrev_u32 v12, 2, v12
    s_mov_b64 exec, s[{sV}:{sV+1}]
    """)
    for p in range(2):
        for q in range(4):
            b=D2+16*p+4*q
            a(f"v_cvt_pk_bf16_f32 v{b}, v{b}, v{b+1}\nv_cvt_pk_bf16_f32 v{b+1}, v{b+2}, v{b+3}\nds_write_b64 v28, {vr(b,2)} offset:{64*p+16*q}")
    a(f"s_not_b64 exec, exec")
    st=16
    while st>=2:
        for i in range(0,st,2): a(f"v_pk_add_f32 {vr(D2+i,2)}, {vr(D2+i,2)}, {vr(D2+st+i,2)}")
        st//=2
    a(f"""
    v_add_f32 v32, v32, v33
    s_mov_b64 exec, -1
    v_mov_b32 v33, v32
    v_permlane32_swap_b32 v32, v33
    v_add_f32 v32, v32, v33
    s_waitcnt lgkmcnt(0)
    v_add_f32 v32, v32, v16
    v_cvt_pk_bf16_f32 v32, v32, v32
    s_mov_b32 exec_lo, 0xeeeeeeee
    s_mov_b32 exec_hi, 0
    buffer_store_short v32, v12, s[{rOUTP}:{rOUTP+3}], 0 offen
    s_mov_b64 exec, -1
    ds_read_b128 v[36:39], v30
    ds_read_b128 v[40:43], v30 offset:64
    s_waitcnt vmcnt(1)
    """)
    D3=44
    XA=(EA,PS,36,40)
    for s in range(4):
        if s==2: a("s_waitcnt lgkmcnt(0)")
        for q in range(4):
            c="0" if s==0 else vr(D3+4*q,4)
            a(f"v_mfma_f32_16x16x32_bf16 {vr(D3+4*q,4)}, {vr(XA[s],4)}, {vr(WH[4*s+q],4)}, {c}")
    for r in range(2):
        a(f"""
        v_lshlrev_b32 v{12+4*r}, 16, v{124+2*r}
        v_and_b32 v{13+4*r}, 0xffff0000, v{124+2*r}
        v_lshlrev_b32 v{14+4*r}, 16, v{125+2*r}
        v_and_b32 v{15+4*r}, 0xffff0000, v{125+2*r}
        """)
    Z=[(r,q) for r in range(2) for q in range(4)]
    for k,(r,q) in enumerate(Z): a(f"v_mul_f32 v{20+k}, {LOG2E_NEG:#x}, v{D3+4*q+r}")
    for k in range(8): a(f"v_exp_f32 v{20+k}, v{20+k}")
    for k in range(8): a(f"v_add_f32 v{20+k}, 1.0, v{20+k}")
    for k in range(8): a(f"v_rcp_f32 v{20+k}, v{20+k}")
    for k,(r,q) in enumerate(Z): a(f"v_fmac_f32 v{12+k}, v{20+k}, v{D3+4*q+r}")
    for r in range(2):
        a(f"""
        v_cvt_pk_bf16_f32 v{20+2*r}, v{12+4*r}, v{13+4*r}
        v_cvt_pk_bf16_f32 v{21+2*r}, v{14+4*r}, v{15+4*r}
        buffer_store_dwordx2 {vr(20+2*r,2)}, v29, s[{rOUT}:{rOUT+3}], 0 offen offset:{128*r}
        """)
    stamp(a,opt,6,1)
    if opt.get('stamp'): a("s_waitcnt vmcnt(0)")
    stamp(a,opt,7,1)
    stamp_out(a,opt,1,sWS,sW,32,40)
    a("K2_END:\ns_endpgm")
    return a
```

```python
from asmlib import *
from cfg import *

def srd(a, s, base_lo, off=None, size=None, w1or=0):
    if off is None:
        a(f"s_mov_b32 s{s}, s{base_lo}\ns_mov_b32 s{s+1}, s{base_lo+1}")
    else:
        a(f"s_add_u32 s{s}, s{base_lo}, {off}\ns_addc_u32 s{s+1}, s{base_lo+1}, 0")
    if w1or: a(f"s_or_b32 s{s+1}, s{s+1}, {w1or:#x}")
    a(f"s_mov_b32 s{s+2}, {size}\ns_mov_b32 s{s+3}, 0x20000")

def wave_scan(a, v):
    for sh in (1,2,4,8):
        a(f"v_add_u32_dpp v{v}, v{v}, v{v} row_shr:{sh} row_mask:0xf bank_mask:0xf bound_ctrl:1")
    a(f"v_add_u32_dpp v{v}, v{v}, v{v} row_bcast:15 row_mask:0xa bank_mask:0xf")
    a(f"v_add_u32_dpp v{v}, v{v}, v{v} row_bcast:31 row_mask:0xc bank_mask:0xf")

STREG={'regs':None,'tmp':None}
def stamp(a,opt,k,mode=None):
    if opt.get('stamp') and (mode is None or opt.get('stamp')==mode):
        R=STREG['regs']
        a(f"{'s_memtime' if opt.get('clk') else 's_memrealtime'} vcc\ns_waitcnt lgkmcnt(0)\ns_mov_b32 s{R[k]}, vcc_lo")
        if k==0:
            for i in range(1,6): a(f"s_mov_b32 s{R[i]}, vcc_lo")
def stamp_out(a,opt,which,sWS,sW,v0,v1):
    if opt.get('stamp'):
        R=STREG['regs']; t=STREG['tmp']
        a(f"s_lshl_b32 s{t}, s2, 4\ns_add_u32 s{t}, s{t}, s{sW}\ns_lshl_b32 s{t}, s{t}, 5\ns_add_u32 s{t}, s{t}, {WS_ST+which*131072}")
        a(f"s_add_u32 s{t}, s{sWS}, s{t}\ns_addc_u32 s{t+1}, s{sWS+1}, 0\nv_mov_b32 v{v1}, 0")
        for i in range(8): a(f"v_mov_b32 v{v0+i}, s{R[i]}")
        a(f"s_mov_b64 exec, 1\nglobal_store_dwordx4 v{v1}, v[{v0}:{v0+3}], s[{t}:{t+1}]\nglobal_store_dwordx4 v{v1}, v[{v0+4}:{v0+7}], s[{t}:{t+1}] offset:16")

CNT=0; XB=1024; BASE=2048; W2L=3072; BOUT=W2L+8192; SLOTS=BOUT+3*4096; SLW=80; K1_LDS=SLOTS+256*SLW

def gen_k1(opt):
    a=Asm()
    STREG.update(regs=[90,91,92,93,94,95,96,97],tmp=88)
    ST=opt.get('k1_store','sc1'); LD=opt.get('k1_load','nt'); TP=opt.get('tab_store','')
    sH,sPOSP,sSRC,sDST,sWE,sWX,sWH,sWS=4,6,8,10,12,14,16,18
    rDST,rSRC,rH,rPOS,rWE,rREC,rTAB,rBT,rP16,rX,rY,rSLOT=20,24,28,32,36,40,44,48,52,56,60,76
    sW,sN,sNN,sT0,sT1,sT2,sT3,sM=64,65,66,67,68,69,70,71
    ROT=opt.get('k1_rot',832)
    sL=72
    sVAL=74
    sHI2=3
    sOV=80
    a(f"""
    s_cmp_ge_u32 s2, {NBK}
    s_cbranch_scc1 K1_END
    s_load_dwordx4 s[8:11], s[0:1], 24
    s_load_dwordx4 s[12:15], s[0:1], 40
    s_load_dwordx4 s[4:7], s[0:1], 0
    s_load_dwordx2 s[16:17], s[0:1], 56
    s_load_dwordx2 s[18:19], s[0:1], 80
    v_add_u32 v0, {ROT}, v0
    v_and_b32 v0, 0x3ff, v0
    v_lshrrev_b32 v1, 6, v0
    v_and_b32 v2, 63, v0
    v_readfirstlane_b32 s{sW}, v1
    v_lshlrev_b32 v3, 4, v0
    s_mul_i32 s{sT0}, s2, {CH}
    s_sub_u32 s{sN}, {E}, s{sT0}
    s_min_u32 s{sN}, s{sN}, {CH}
    s_mul_i32 s{sT1}, s2, {NB}
    s_sub_u32 s{sNN}, {N}, s{sT1}
    s_min_u32 s{sNN}, s{sNN}, {NB}
    s_lshl_b32 s{sT2}, s{sT0}, 2
    s_lshl_b32 s{sT3}, s{sN}, 2
    s_cmp_ge_u32 s{sW}, 13
    s_waitcnt lgkmcnt(0)
    """)
    stamp(a,opt,0)
    a("s_cbranch_scc1 K1_G0")
    srd(a,rDST,sDST,f"s{sT2}",f"s{sT3}")
    a(f"buffer_load_dwordx4 v[8:11], v3, s[{rDST}:{rDST+3}], 0 offen {LD}")
    srd(a,rSRC,sSRC,f"s{sT2}",f"s{sT3}")
    a(f"buffer_load_dwordx4 v[12:15], v3, s[{rSRC}:{rSRC+3}], 0 offen {LD}")
    a(f"""
    v_mov_b32 v20, 0
    s_cmp_ge_u32 s{sW}, 8
    s_cbranch_scc1 K1_NOZ
    v_lshlrev_b32 v21, 2, v0
    ds_write_b32 v21, v20 offset:{CNT}
    K1_NOZ:
    s_lshl_b32 s{sT2}, s{sT0}, 3
    s_add_u32 s{sT2}, s{sT2}, {WS_REC-128:#x}
    s_lshl_b32 s{sT3}, s{sN}, 3
    s_add_u32 s{sT3}, s{sT3}, 128
    """)
    srd(a,rREC,sWS,f"s{sT2}",f"s{sT3}")
    srd(a,rTAB,sWS,f"{WS_TAB:#x}",NBK*2048)
    srd(a,rSLOT,sWS,f"{WS_SLOT:#x}",NBK*16384)
    a(f"""
    s_lshr_b32 s{sT2}, s{sN}, 2
    v_cmp_gt_u32 s[{sVAL}:{sVAL+1}], s{sT2}, v0
    s_lshl_b32 s{sT2}, s{sT0}, 5
    v_lshl_add_u32 v53, v0, 7, s{sT2}
    v_add_u32 v55, 32, v53
    v_add_u32 v57, 64, v53
    v_add_u32 v59, 96, v53
    v_lshlrev_b32 v23, 24, v0
    v_and_b32 v23, 0xfc000000, v23
    v_and_b32 v21, 3, v0
    v_lshl_or_b32 v23, v21, 5, v23
    s_lshr_b32 s{sHI2}, s{sW}, 2
    s_mov_b32 s{sM}, 171196
    v_mov_b32 v22, 8192
    v_mov_b32 v20, 1
    s_waitcnt lgkmcnt(0)
    s_barrier
    s_mov_b64 exec, s[{sVAL}:{sVAL+1}]
    s_waitcnt vmcnt(1)
    """)
    stamp(a,opt,1)
    for j in range(4):
        a(f"""
        v_mad_u32_u24 v{16+j}, v{8+j}, s{sM}, v22
        v_lshrrev_b32 v{16+j}, 20, v{16+j}
        v_lshrrev_b32 v{28+j}, 2, v{16+j}
        v_and_b32 v{28+j}, 0x3fc, v{28+j}
        ds_add_rtn_u32 v{24+j}, v{28+j}, v20 offset:{CNT}
        """)
    for j in range(4):
        a(f"""
        v_mad_u32_u24 v21, v{16+j}, 49, 7
        v_lshrrev_b32 v21, 3, v21
        v_sub_u32 v{8+j}, v{8+j}, v21
        """)
    for j in range(4):
        a(f"""
        v_and_b32 v{16+j}, 15, v{16+j}
        v_lshl_or_b32 v{8+j}, v{16+j}, 22, v{8+j}
        v_add3_u32 v{8+j}, v{8+j}, v23, {8*j}
        """)
    a("s_waitcnt vmcnt(0)")
    for j in range(4): a(f"v_lshl_or_b32 v{52+2*j}, v{12+j}, 7, v{8+j}")
    for j in range(4):
        a(f"""
        s_waitcnt lgkmcnt({3+j})
        v_cmp_gt_u32 vcc, 16, v{24+j}
        v_lshlrev_b32 v{12+j}, 1, v{24+j}
        v_lshlrev_b32 v{24+j}, 2, v{24+j}
        v_mad_u32_u24 v21, v{28+j}, {SLW//4}, v{24+j}
        v_lshlrev_b32 v{12+j}, v{12+j}, s{sHI2}
        s_andn2_b64 s[{sOV+2*j}:{sOV+2*j+1}], exec, vcc
        s_mov_b64 exec, vcc
        ds_write_b32 v21, v{52+2*j} offset:{SLOTS}
        ds_or_b32 v{28+j}, v{12+j} offset:{XB}
        s_mov_b64 exec, {'-1' if j==3 else 's[%d:%d]'%(sVAL,sVAL+1)}
        """)
    def slot_out_prep(r=16):
        a(f"""
        v_lshrrev_b32 v{r}, 2, v0
        v_and_b32 v{r+3}, 0x30, v3
        v_mad_u32_u24 v{r+1}, v{r}, s{sT3}, v{r+3}
        v_add_u32 v{r+2}, s2, v{r}
        v_and_b32 v{r+2}, 0xff, v{r+2}
        v_lshl_add_u32 v{r+2}, v{r}, 8, v{r+2}
        v_lshl_add_u32 v{r+2}, v{r+2}, 6, v{r+3}
        """)
    def slot_out(extra,r=16,d2=None):
        a(f"""
        ds_read_b128 v[60:63], v{r+1} offset:{SLOTS}
        {extra}
        s_waitcnt lgkmcnt({extra.count('ds_')})
        buffer_store_dwordx4 v[60:63], v{r+2}, s[{rSLOT}:{rSLOT+3}], 0 offen {ST}
        """)
    a(f"s_mov_b32 s{sT3}, {SLW}")
    slot_out_prep()
    a(f"""
    v_lshlrev_b32 v4, 4, v2
    s_waitcnt lgkmcnt(0)
    s_barrier
    """)
    stamp(a,opt,2)
    slot_out(f"ds_read_b128 v[8:11], v4 offset:{CNT}\nds_read_b128 v[20:23], v4 offset:{XB}")
    a("s_waitcnt lgkmcnt(0)")
    for j in range(4): a(f"v_subrev_u32 v{12+j}, 16, v{8+j}")
    for j in range(4): a(f"v_max_i32 v{12+j}, 0, v{12+j}")
    a(f"""
    v_add_u32 v13, v12, v13
    v_add_u32 v14, v13, v14
    v_add_u32 v15, v14, v15
    v_mov_b32 v5, v15
    """)
    wave_scan(a,5)
    a(f"""
    v_sub_u32 v16, v5, v15
    v_add_u32 v17, v16, v12
    v_add_u32 v18, v16, v13
    v_add_u32 v19, v16, v14
    ds_write_b128 v4, v[16:19] offset:{BASE}
    """)
    for j in range(4):
        a(f"s_mov_b64 exec, s[{sOV+2*j}:{sOV+2*j+1}]\nds_read_b32 v{28+j}, v{28+j} offset:{BASE}")
    a(f"""
    s_mov_b64 exec, -1
    s_cmp_ge_u32 s{sW}, 4
    s_cbranch_scc1 K1_NOTAB
    v_lshl_add_u32 v5, v2, 2, s{sW}
    v_add_u32 v6, s2, v5
    v_and_b32 v6, 0xff, v6
    v_lshl_add_u32 v5, v5, 8, v6
    v_lshlrev_b32 v5, 3, v5
    """)
    for j in range(4):
        a(f"""
        s_cmp_lg_u32 s{sW}, {j}
        s_cbranch_scc1 K1_TB{j}
        v_lshl_or_b32 v6, v{16+j}, 16, v{8+j}
        v_mov_b32 v7, v{20+j}
        K1_TB{j}:
        """)
    a(f"buffer_store_dwordx2 v[6:7], v5, s[{rTAB}:{rTAB+3}], 0 offen {TP}")
    a("K1_NOTAB:\ns_waitcnt lgkmcnt(0)")
    for j in range(4):
        a(f"""
        s_mov_b64 exec, s[{sOV+2*j}:{sOV+2*j+1}]
        s_cbranch_execz K1_NOOV{j}
        v_lshl_add_u32 v{28+j}, v{28+j}, 2, v{24+j}
        v_lshlrev_b32 v{28+j}, 1, v{28+j}
        buffer_store_dwordx2 v[{52+2*j}:{53+2*j}], v{28+j}, s[{rREC}:{rREC+3}], 0 offen {ST}
        K1_NOOV{j}:
        """)
    a("s_mov_b64 exec, -1\ns_branch K1_FIN")
    a("K1_G0:")
    srd(a,rWE,sWE,None,145*128)
    a(f"s_lshl_b32 s{sT2}, s{sT1}, 7\ns_lshl_b32 s{sT3}, s{sNN}, 7")
    srd(a,rH,sH,f"s{sT2}",f"s{sT3}")
    a(f"s_add_u32 s{sT2}, s{sT2}, {WS_BT:#x}")
    srd(a,rBT,sWS,f"s{sT2}",f"s{sT3}")
    srd(a,rSLOT,sWS,f"{WS_SLOT:#x}",NBK*16384)
    HB=32; HB3=8; WA=64; DD=96
    a(f"s_lshl_b32 s{sT2}, s{sT1}, 4\ns_add_u32 s{sT2}, s{sT2}, {WS_P16:#x}\ns_lshl_b32 s{sT3}, s{sNN}, 4")
    srd(a,rP16,sWS,f"s{sT2}",f"s{sT3}")
    a(f"""
    s_sub_u32 s{sT2}, s{sW}, 13
    s_mul_i32 s{sT2}, s{sT2}, 3072
    s_add_u32 m0, s{sT2}, {W2L}
    s_add_u32 s{sT2}, s{sT2}, {64*128}
    v_lshlrev_b32 v4, 4, v2
    """)
    for i in range(3): a(f"buffer_load_dwordx4 v4, s[{rWE}:{rWE+3}], s{sT2} offen offset:{1024*i} lds")
    a(f"""
    s_sub_u32 s{sT2}, 15, s{sW}
    s_lshl_b32 s{sT2}, s{sT2}, 12
    v_and_b32 v5, 31, v2
    v_lshrrev_b32 v6, 5, v2
    v_lshlrev_b32 v7, 7, v5
    v_lshl_add_u32 v7, v6, 4, v7
    v_add_u32 v7, s{sT2}, v7
    s_mov_b32 s{sL}, {LOG2E_NEG:#x}
    s_mov_b32 s{sL+1}, {LOG2E_NEG:#x}
    """)
    for s in range(4): a(f"buffer_load_dwordx4 v[{HB+4*s}:{HB+4*s+3}], v7, s[{rH}:{rH+3}], 0 offen offset:{32*s}")
    a(f"""
    v_subrev_u32 v24, {13*64}, v0
    {"" if opt.get('k1_early',1) else "s_barrier"}
    s_cmp_eq_u32 s{sW}, 15
    s_cbranch_scc1 K1_PREP
    s_mul_i32 s{sT2}, s{sT1}, 6
    s_mul_i32 s{sT3}, s{sNN}, 6
    """)
    srd(a,rPOS,sPOSP,f"s{sT2}",f"s{sT3}")
    a(f"""
    v_mul_u32_u24 v25, 6, v24
    buffer_load_ushort v48, v25, s[{rPOS}:{rPOS+3}], 0 offen
    buffer_load_ushort v49, v25, s[{rPOS}:{rPOS+3}], 0 offen offset:2
    buffer_load_ushort v50, v25, s[{rPOS}:{rPOS+3}], 0 offen offset:4
    s_cmp_lg_u32 s{sW}, 13
    s_cbranch_scc1 K1_W7
    v_add_u32 v7, 4096, v7
    """)
    for s in range(4): a(f"buffer_load_dwordx4 v[{HB3+4*s}:{HB3+4*s+3}], v7, s[{rH}:{rH+3}], 0 offen offset:{32*s}")
    a(f"""
    s_waitcnt vmcnt(11)
    s_branch K1_G2
    K1_W7:
    s_waitcnt vmcnt(7)
    s_branch K1_G2
    K1_PREP:
    s_cmp_ge_u32 s2, 26
    s_cbranch_scc1 K1_PREP2
    """)
    a(f"""
    s_cmp_ge_u32 s2, 10
    s_cbranch_scc1 K1_PWH
    s_lshr_b32 s{sT2}, s2, 1
    s_lshl_b32 s{sT2}, s{sT2}, 4
    s_cmp_ge_u32 s2, 8
    s_cselect_b32 s{sT2}, 129, s{sT2}
    s_and_b32 s{sT3}, s2, 1
    s_lshl_b32 s{sT3}, s{sT3}, 6
    s_lshl_b32 s{sT2}, s{sT2}, 7
    s_add_u32 s{sT2}, s{sT2}, s{sT3}
    v_lshlrev_b32 v17, 10, v6
    v_lshl_add_u32 v17, v5, 1, v17
    v_add_u32 v17, s{sT2}, v17
    s_mov_b32 s{rX}, s{sWE}
    s_mov_b32 s{rX+1}, s{sWE+1}
    s_mov_b32 s{rX+2}, {145*128}
    s_branch K1_PLD
    K1_PWH:
    s_sub_u32 s{sT2}, s2, 10
    s_and_b32 s{sT3}, s{sT2}, 3
    s_lshr_b32 s{sT2}, s{sT2}, 2
    s_lshl_b32 s{sT2}, s{sT2}, 12
    s_lshl_b32 s{sT3}, s{sT3}, 1
    s_add_u32 s{sT2}, s{sT2}, s{sT3}
    v_lshrrev_b32 v17, 4, v2
    v_lshlrev_b32 v17, 10, v17
    v_and_b32 v18, 15, v2
    v_lshl_add_u32 v17, v18, 3, v17
    v_add_u32 v17, s{sT2}, v17
    s_mov_b32 s{rX}, s{sWH}
    s_mov_b32 s{rX+1}, s{sWH+1}
    s_mov_b32 s{rX+2}, {128*128}
    K1_PLD:
    s_mov_b32 s{rX+3}, 0x20000
    """)
    for j in range(8): a(f"buffer_load_ushort v{48+j}, v17, s[{rX}:{rX+3}], 0 offen offset:{128*j}")
    a(f"""
    s_waitcnt vmcnt(12)
    s_branch K1_G2
    K1_PREP2:
    s_cmp_lg_u32 s2, 26
    s_cbranch_scc1 K1_W4
    """)
    srd(a,rX,sWX,None,128)
    a(f"""
    v_lshlrev_b32 v17, 1, v2
    v_add_u32 v17, {128*128}, v17
    buffer_load_ushort v48, v17, s[{rWE}:{rWE+3}], 0 offen
    v_and_b32 v18, 3, v2
    v_bfe_u32 v19, v2, 2, 2
    v_lshl_add_u32 v18, v19, 3, v18
    v_lshl_add_u32 v18, v6, 2, v18
    v_bfe_u32 v19, v2, 4, 1
    v_lshl_add_u32 v18, v19, 5, v18
    v_lshlrev_b32 v18, 1, v18
    buffer_load_ushort v49, v18, s[{rX}:{rX+3}], 0 offen
    K1_W4:
    s_waitcnt vmcnt(4)
    K1_G2:
    """)
    a(f"""
    v_bfe_u32 v26, v2, 2, 2
    v_lshl_add_u32 v26, v6, 3, v26
    v_lshlrev_b32 v26, 7, v26
    v_and_b32 v27, 1, v2
    v_lshl_add_u32 v26, v27, 5, v26
    v_bfe_u32 v27, v2, 4, 1
    v_lshl_add_u32 v26, v27, 4, v26
    v_bfe_u32 v27, v2, 1, 1
    v_lshl_add_u32 v26, v27, 3, v26
    s_sub_u32 s{sT2}, s{sW}, 13
    s_lshl_b32 s{sT2}, s{sT2}, 12
    v_lshl_add_u32 v28, v5, 7, s{sT2}
    v_and_b32 v27, 7, v5
    v_lshlrev_b32 v29, 1, v6
    v_xor_b32 v29, v29, v27
    v_lshl_add_u32 v28, v29, 4, v28
    v_lshl_add_u32 v30, v2, 4, s{sT2}
    v_lshrrev_b32 v31, 3, v2
    v_lshlrev_b32 v31, 4, v31
    v_lshlrev_b32 v27, 4, v2
    v_xor_b32 v31, v31, v27
    s_mov_b32 s{sT3}, {SLW}
    """)
    EARLY=opt.get('k1_early',1)
    if EARLY:
        a("s_barrier")
        stamp(a,opt,1)
    else:
        slot_out_prep(56)
        stamp(a,opt,1)
        a("s_barrier")
        stamp(a,opt,2)
        slot_out("",56)
    for p in range(2):
        for s in range(4):
            for jj in range(2):
                a(f"ds_read_b64_tr_b16 v[{WA+16*p+4*s+2*jj}:{WA+16*p+4*s+2*jj+1}], v26 offset:{W2L+s*2048+jj*512+64*p}")
    def gemm(hb,first):
        for p in range(2):
            if first: a(f"s_waitcnt lgkmcnt({8-8*p})"+((" vmcnt(0)" if EARLY else " vmcnt(1)") if p==0 else ""))
            for s in range(4):
                c = "0" if s==0 else vr(DD+16*p,16)
                a(f"v_mfma_f32_32x32x16_bf16 {vr(DD+16*p,16)}, {vr(WA+16*p+4*s,4)}, {vr(hb+4*s,4)}, {c}")
    def rows_out():
        for p in range(2):
            for i in range(8): a(f"v_pk_mul_f32 {vr(DD+16*p+2*i,2)}, {vr(DD+16*p+2*i,2)}, s[{sL}:{sL+1}]")
            for i in range(8): a(f"v_cvt_pk_bf16_f32 v{DD+16*p+i}, v{DD+16*p+2*i}, v{DD+16*p+2*i+1}")
            for i in range(2):
                if 4*p+i: a(f"v_xor_b32 v29, {16*(4*p+i)}, v28")
                a(f"ds_write_b128 v{29 if 4*p+i else 28}, {vr(DD+16*p+4*i,4)} offset:{BOUT}")
        for i in range(4): a(f"ds_read_b128 {vr(DD+4*i,4)}, v30 offset:{BOUT+1024*i}")
        a(f"v_add_u32 v27, s{sT2}, v31")
        for i in range(4):
            a(f"s_waitcnt lgkmcnt({3-i})\nbuffer_store_dwordx4 {vr(DD+4*i,4)}, v27, s[{rBT}:{rBT+3}], 0 offen offset:{1024*i} {ST}")
    gemm(HB,True)
    a(f"""
    s_cmp_eq_u32 s{sW}, 15
    s_cbranch_scc1 K1_SIDE_PREP
    v_lshlrev_b32 v24, 4, v24
    v_lshlrev_b32 v48, 16, v48
    v_lshlrev_b32 v49, 16, v49
    v_lshlrev_b32 v50, 16, v50
    v_mov_b32 v51, 0
    buffer_store_dwordx4 v[48:51], v24, s[{rP16}:{rP16+3}], 0 offen {ST}
    s_branch K1_SIDE_DONE
    K1_SIDE_PREP:
    s_cmp_gt_u32 s2, 26
    s_cbranch_scc1 K1_SIDE_DONE
    """)
    srd(a,rY,sWS,f"{WS_WT:#x}",WT_SIZE)
    a(f"""
    s_cmp_eq_u32 s2, 26
    s_cbranch_scc1 K1_SIDE_WD
    s_lshr_b32 s{sT2}, s2, 1
    s_cmp_eq_u32 s{sT2}, 4
    s_cbranch_scc1 K1_SIDE_W3
    """)
    for i in range(4): a(f"v_lshl_or_b32 v{56+i}, v{49+2*i}, 16, v{48+2*i}")
    a("s_branch K1_SIDE_ST\nK1_SIDE_W3:")
    for j in range(8): a(f"v_lshlrev_b32 v{48+j}, 16, v{48+j}\nv_mul_f32 v{48+j}, s{sL}, v{48+j}")
    for i in range(4): a(f"v_cvt_pk_bf16_f32 v{56+i}, v{48+2*i}, v{49+2*i}")
    a(f"""
    K1_SIDE_ST:
    s_lshl_b32 s{sT2}, s2, 10
    v_lshl_add_u32 v16, v2, 4, s{sT2}
    buffer_store_dwordx4 v[56:59], v16, s[{rY}:{rY+3}], 0 offen {ST}
    s_branch K1_SIDE_DONE
    K1_SIDE_WD:
    v_lshlrev_b32 v48, 16, v48
    v_mul_f32 v48, s{sL}, v48
    v_cvt_pk_bf16_f32 v50, v48, v48
    v_and_b32 v51, 0xffff0000, v50
    v_sub_f32 v51, v48, v51
    v_cvt_pk_bf16_f32 v50, v48, v51
    v_lshlrev_b32 v49, 16, v49
    v_mul_f32 v49, {LN2_NEG:#x}, v49
    v_lshlrev_b32 v16, 2, v2
    v_add_u32 v16, {WT_WDT}, v16
    buffer_store_dword v50, v16, s[{rY}:{rY+3}], 0 offen {ST}
    buffer_store_dword v49, v16, s[{rY}:{rY+3}], 0 offen offset:{WT_WXT-WT_WDT} {ST}
    K1_SIDE_DONE:
    s_sub_u32 s{sT2}, 15, s{sW}
    s_lshl_b32 s{sT2}, s{sT2}, 12
    """)
    rows_out()
    if EARLY:
        a(f"s_cmp_lg_u32 s{sW}, 13\ns_cbranch_scc1 K1_G3")
        gemm(HB3,False)
        a(f"K1_G3:\ns_mov_b32 s{sT3}, {SLW}")
        slot_out_prep(56)
        a("s_barrier")
        stamp(a,opt,2)
        slot_out("",56,24)
        a(f"s_cmp_lg_u32 s{sW}, 13\ns_cbranch_scc1 K1_FIN\ns_mov_b32 s{sT2}, {3*4096}")
    else:
        a(f"s_cmp_lg_u32 s{sW}, 13\ns_cbranch_scc1 K1_FIN\ns_mov_b32 s{sT2}, {3*4096}")
        gemm(HB3,False)
    rows_out()
    a("K1_FIN:")
    stamp(a,opt,5)
    if opt.get('stamp'): a("s_waitcnt vmcnt(0)")
    stamp(a,opt,6)
    stamp(a,opt,7)
    stamp_out(a,opt,0,sWS,sW,32,40)
    a(f"""
    K1_END:
    s_endpgm
    """)
    return a
```

```python
from asmlib import *
from cfg import *
from k1 import srd, wave_scan, stamp, stamp_out, STREG

CNT=0; BASE=1024; MAXC=2048; KEYS=2112; WDL=2304; WXL=2560; OHT=2944; PDT=3072; W3L=4864
LCAP=3712; L0=6912; L1=L0+4*LCAP; SX=L1+4*LCAP; BST=SX+32768; BSTW=4352
WHL=BST+16*BSTW; W1L=WHL+16384; K2_LDS=W1L+8192
assert L0%256==0 and L1%256==0 and K2_LDS<=163840 and L1//256<256
D1=0; D2=32; W3=64; AG=72; ID=80; EE=88; T0=96; T1=100; EA=104; OH=108; PS=112; TMP=115
cDMA=116; aTR=117; aSXR=118; aSXW=119; cPD=120; cHH=121; W0E=122; SXA=123; aL4=124; aLE=125; aEA=126; TID=127
sH,sEAP,sOUT,sWS=4,6,8,10
rTAB,rREC,rBT,rEA,rP16,rH,rWT,rOUT,rOUTP=12,16,20,24,28,32,36,40,44
sW,sLayer,sBlo,sBhi,sMaxc,sNT,sT0,sT1,sT2,sT3=48,51,52,53,54,55,56,57,58,59
sNode0,sCnt=58,59
rSLOT=92; sCH=96; sG=0; sGs=49; sPad=50
sM0=60; sHI=64; sONE=66; sMASK=68; sFirst=69; sK=70; sQ3=72; sTot=74; sGb=75; sV=76

def mf(d,a_,b,c=None):
    return f"v_mfma_f32_32x32x16_bf16 {vr(d,16)}, {vr(a_,4)}, {vr(b,4)}, {'0' if c is None else vr(c,16)}"
XNS=0
def exp4(p,b,h):
    if XNS: return f"v_mov_b32 v{EE+4*h}, v{D1+16*p+8*b+4*h}"
    return exp4_(p,b,h)
def rcp4(h):
    if XNS: return "s_nop 0"
    return rcp4_(h)
def exp4_(p,b,h): return "\n".join(f"v_exp_f32 v{EE+4*h+i}, v{D1+16*p+8*b+4*h+i}" for i in range(4))
def rcp4_(h): return "\n".join(f"v_rcp_f32 v{EE+4*h+i}, v{EE+4*h+i}" for i in range(4))
def padd(): return "\n".join(f"v_pk_add_f32 {vr(EE+2*i,2)}, {vr(EE+2*i,2)}, s[{sONE}:{sONE+1}]" for i in range(4))
def pmulcvt(p,b):
    y=D1+16*p+8*b
    return "\n".join([f"v_pk_mul_f32 {vr(EE+2*i,2)}, {vr(y+2*i,2)}, {vr(EE+2*i,2)}" for i in range(4)]+
                     [f"v_cvt_pk_bf16_f32 v{y+i}, v{EE+2*i}, v{EE+2*i+1}" for i in range(4)])
def bst_reads(p):
    return "\n".join(f"ds_read_b64_tr_b16 {vr((T0,T1)[s]+2*jj,2)}, v{aTR} offset:{s*2176+jj*256+64*p}" for s in range(2) for jj in range(2))
def sx_reads(n=2):
    return "\n".join(f"ds_read_b64_tr_b16 {vr((T0,T1)[s]+2*jj,2)}, v{aSXR} offset:{s*1024+jj*512}" for s in range(n) for jj in range(2))
def idx_reads():
    return f"ds_read_b128 {vr(OH,4)}, v{aL4}\nds_read_b32 v{W0E}, v{aLE}\nds_read_b32 v{aEA}, v{aLE} offset:{L1-L0}"
def issue_loads(opt):
    EP=opt.get('ea_pol','')
    s="\n".join(f"v_and_or_b32 v{OH+i}, v{OH+i}, {'0' if opt.get('x_nob') else 's%d'%sMASK}, v{cDMA}" for i in range(4))
    if opt.get('x_noea'): s+=f"\nv_mov_b32 v{aEA}, v{cHH}"
    else: s+=f"\nv_add_u32 v{aEA}, v{aEA}, v{cHH}"
    s+=f"\nv_and_b32 v{TMP}, {'0' if opt.get('x_nopos') else 's%d'%sMASK}, v{W0E}\nv_lshrrev_b32 v{TMP}, 3, v{TMP}\n"
    for i in range(4):
        s+=f"s_mov_b32 m0, s{sM0+i}\n"
        if i==0: s+=f"v_and_b32 v{W0E}, 7, v{W0E}\n"
        s+=f"buffer_load_dwordx4 v{OH+i}, s[{rBT}:{rBT+3}], 0 offen lds\n"
    s+=f"s_mov_b64 exec, s[{sHI}:{sHI+1}]\nbuffer_load_dwordx3 {vr(PS,3)}, v{TMP}, s[{rP16}:{rP16+3}], 0 offen\ns_mov_b64 exec, -1\n"
    s+=f"buffer_load_dwordx4 {vr(EA,4)}, v{aEA}, s[{rEA}:{rEA+3}], 0 offen {EP}\n"
    return s
def oh_read():
    return f"v_lshl_add_u32 v{TMP}, v{W0E}, 4, v{cPD}\nds_read_b128 {vr(OH,4)}, v{TMP}\nv_add_u32 v{aL4}, 128, v{aL4}\nv_add_u32 v{aLE}, 128, v{aLE}"
def edge():
    return f"""s_mov_b64 exec, s[{sHI}:{sHI+1}]
    v_sub_f32 v{OH}, v{OH}, v{PS}
    v_sub_f32 v{OH+1}, v{OH+1}, v{PS+1}
    v_sub_f32 v{OH+2}, v{OH+2}, v{PS+2}
    v_mul_f32 v{PS}, v{OH}, v{OH}
    v_fmac_f32 v{PS}, v{OH+1}, v{OH+1}
    v_fmac_f32 v{PS}, v{OH+2}, v{OH+2}
    v_cvt_pk_bf16_f32 v{OH}, 1.0, v{OH}
    v_cvt_pk_bf16_f32 v{OH+1}, v{OH+1}, v{OH+2}
    v_cvt_pk_bf16_f32 v{OH+2}, v{PS}, v{PS}
    s_mov_b64 exec, -1"""
def sx_zero(): return f"ds_write2_b32 v{SXA}, v{OH+3}, v{OH+3} offset0:0 offset1:1"
def g2(p,s): return mf(D2+16*p, D1+16*p+8*s, (T0,T1)[s], D2+16*p)

def fin_loads():
    return f"""v_mbcnt_lo_u32_b32 v{aL4}, -1, 0
    v_mbcnt_hi_u32_b32 v{aL4}, -1, v{aL4}
    v_bfe_u32 v{aLE}, v{aL4}, 2, 2
    v_and_b32 v{aEA}, 1, v{aL4}
    v_lshl_add_u32 v{aLE}, v{aLE}, 1, v{aEA}
    v_lshrrev_b32 v{aEA}, 4, v{aL4}
    v_lshlrev_b32 v{PS}, 4, v{aEA}
    v_lshl_add_u32 v{PS}, v{aLE}, 7, v{PS}
    v_and_b32 v{aL4}, 15, v{aL4}
    v_lshlrev_b32 v{aL4}, 3, v{aL4}
    v_lshl_add_u32 v{aL4}, v{aEA}, 8, v{aL4}
    buffer_load_dwordx4 {vr(EA,4)}, v{PS}, s[{rH}:{rH+3}], 0 offen
    buffer_load_dwordx4 {vr(PS,4)}, v{PS}, s[{rH}:{rH+3}], 0 offen offset:64
    buffer_load_dwordx2 {vr(aEA,2)}, v{aL4}, s[{rH}:{rH+3}], 0 offen offset:128
    buffer_load_dwordx2 {vr(aL4,2)}, v{aL4}, s[{rH}:{rH+3}], 0 offen"""

def phaseX(a,opt,last,half=False):
    d=D1+16
    a("s_waitcnt lgkmcnt(2)"); a(g2(1,0)); a(exp4(0,0,0))
    a("s_waitcnt lgkmcnt(0)"); a(g2(1,1)); a(exp4(0,0,1))
    a(f"s_mov_b64 exec, s[{sHI}:{sHI+1}]"); a(sx_zero())
    a(f"v_lshl_add_u32 v{SXA}, v{W0E}, 3, v{aSXW}\nds_write_b64 v{SXA}, {vr(OH,2)}\ns_mov_b64 exec, -1")
    a(bst_reads(1)); a(padd())
    a(mf(d,OH,AG+4)); a(rcp4(0)); a(mf(d,EA,W3+4,d))
    if not last: a(idx_reads())
    a(rcp4(1))
    if half:
        a(pmulcvt(0,0))
        a("s_waitcnt lgkmcnt(2)"); a(mf(d,ID,T0,d)); a(fin_loads())
        a("s_waitcnt lgkmcnt(0)"); a(mf(d,ID+4,T1,d))
        a(sx_reads(1))
        return
    a(pmulcvt(0,0))
    a(f"s_waitcnt lgkmcnt({2 if last else 5})"); a(mf(d,ID,T0,d)); a(exp4(0,1,0))
    a(f"s_waitcnt lgkmcnt({0 if last else 3})"); a(mf(d,ID+4,T1,d)); a(exp4(0,1,1))
    if not last:
        a("s_waitcnt lgkmcnt(0)"); a(issue_loads(opt))
    else: a(fin_loads())
    a(padd()); a(rcp4(0))
    if not last: a(oh_read())
    a(sx_reads())
    a(rcp4(1)); a(pmulcvt(0,1))

def phaseY(a,opt,last,half=False):
    d=D1
    SPF=opt.get('spf',0); BPF=opt.get('bpf',0)
    if half:
        a("s_waitcnt lgkmcnt(0)"); a(g2(0,0)); a(exp4(1,0,0)); a(exp4(1,0,1))
        a(padd()); a(rcp4(0)); a(rcp4(1)); a(pmulcvt(1,0))
        a(g2(1,0))
        return
    a("s_waitcnt lgkmcnt(2)"); a(g2(0,0)); a(exp4(1,0,0))
    a("s_waitcnt lgkmcnt(0)"); a(g2(0,1)); a(exp4(1,0,1))
    if not last:
        if SPF: a(f"ds_read_b32 v{TID}, v{aLE} offset:{L1-L0}")
        a("s_waitcnt vmcnt(1)"); a(bst_reads(0)); a(edge())
    a(padd())
    if not last: a("s_waitcnt lgkmcnt(2)"); a(mf(d,ID,T0))
    a(rcp4(0))
    if not last: a("s_waitcnt lgkmcnt(0)"); a(mf(d,ID+4,T1,d))
    if SPF and not last:
        a(f"s_cmp_le_u32 s{sNT}, 2\ns_cbranch_scc1 K2_NOSPF")
        for i in range(SPF): a(f"v_readlane_b32 s{sV+i}, v{TID}, {i}")
        for i in range(SPF): a(f"s_buffer_load_dword s{sTot}, s[{rEA}:{rEA+3}], s{sV+i}")
        a("K2_NOSPF:")
    if BPF and not last:
        for i in range(BPF): a(f"s_buffer_load_dword s{sTot}, s[{rBT}:{rBT+3}], s{sGb} offset:{(i%4)*128+(i//4)*262144}")
        a(f"s_add_u32 s{sGb}, s{sGb}, {(BPF//4)*262144}")
    a(rcp4(1)); a(pmulcvt(1,0))
    if last: a(g2(1,0))
    else: a(mf(d,OH,AG,d))
    a(exp4(1,1,0))
    if not last: a("s_waitcnt vmcnt(0)"); a(mf(d,EA,W3,d))
    a(exp4(1,1,1))
    if not last: a(sx_reads())
    a(padd()); a(rcp4(0)); a(rcp4(1)); a(pmulcvt(1,1))
    if last: a(g2(1,1))

def xfilter(a,n0,opt):
    import re
    pats=opt.get('x_drop')
    if pats: a.l[n0:]=[l for l in a.l[n0:] if not re.search(pats,l)]
def slot_loads(a):
    a(f"""
    v_lshlrev_b32 v91, 4, v{TID}
    buffer_load_dwordx4 v[0:3], v91, s[{rSLOT}:{rSLOT+3}], 0 offen
    v_and_b32 v93, 3, v{TID}
    v_lshrrev_b32 v90, 2, v{TID}
    """)
def ov_prep(a):
    a(f"""
    v_subrev_u32 v90, s2, v90
    v_and_b32 v90, 0xff, v90
    s_lshl_b32 s{sT0}, s{sLayer}, 5
    v_lshl_add_u32 v91, v93, 1, s{sT0}
    v_mul_u32_u24 v94, {CH}, v90
    v_add_u32 v90, v94, v91
    v_lshlrev_b32 v93, 2, v93
    s_cmp_ge_u32 s{sW}, s{sBlo}
    s_cselect_b32 s{sT0}, -1, 0
    s_cmp_lt_u32 s{sW}, s{sBhi}
    s_cselect_b32 s{sT0}, s{sT0}, 0
    """)
RW=[(0,4),(1,5),(2,6),(3,7),(8,9),(10,11),(12,13),(14,15)]
def ov_loads(a,deep):
    global OVN
    OVN+=1
    a(f"""
    v_and_b32 v92, 0xffff, v88
    v_lshrrev_b32 v88, 16, v88
    v_sub_u32 v91, v92, v91
    v_add_lshl_u32 v88, v88, v90, 3
    v_and_b32 v91, s{sT0}, v91
    """)
    for j in range(2,4):
        a(f"v_cmp_lt_i32 s[{sV+4*j}:{sV+4*j+1}], {8*j}, v91\nv_cmp_lt_i32 s[{sV+4*j+2}:{sV+4*j+3}], {8*j+1}, v91")
    if deep:
        for j in range(2):
            a(f"v_cmp_lt_i32 s[{sV+4*j}:{sV+4*j+1}], {8*j}, v91\nv_cmp_lt_i32 s[{sV+4*j+2}:{sV+4*j+3}], {8*j+1}, v91")
        for j in range(2):
            a(f"s_mov_b64 exec, s[{sV+4*j}:{sV+4*j+1}]\nbuffer_load_dwordx4 {vr(16+4*j,4)}, v88, s[{rREC}:{rREC+3}], 0 offen offset:{64*j}")
    for j in range(2,4):
        a(f"s_mov_b64 exec, s[{sV+4*j}:{sV+4*j+1}]\ns_cbranch_execz K2_OV{OVN}\nbuffer_load_dwordx4 {vr(4*j,4)}, v88, s[{rREC}:{rREC+3}], 0 offen offset:{64*j}")
    a(f"K2_OV{OVN}:\ns_mov_b64 exec, -1")
    if not deep:
        a(f"""
        v_sub_u32 v91, v92, v93
        v_and_b32 v91, s{sT0}, v91
        v_lshlrev_b32 v93, 1, v93
        v_lshrrev_b32 v89, v93, v89
        """)
        for k in range(4): a(f"v_cmp_lt_i32 s[{sV+2*k}:{sV+2*k+1}], {k}, v91")
def slot_w1(a):
    for k in range(4):
        a(f"""
        v_lshrrev_b32 v{4+k}, 26, v{k}
        v_bfe_u32 v90, v{k}, 3, 4
        v_lshl_or_b32 v{4+k}, v{4+k}, 4, v90
        v_bfe_u32 v90, v89, {2*k}, 2
        v_lshl_or_b32 v{4+k}, v90, 10, v{4+k}
        v_add_lshl_u32 v{4+k}, v{4+k}, v94, 5
        """)
OVN=0

def gen_k2(opt):
    global XNS
    XNS=opt.get('x_nosilu',0)
    STREG.update(regs=[97,98,99,100,101,3,1,6],tmp=4)
    BAL=opt.get('bal',1); HALF=opt.get('half',1)
    HA=32
    a=Asm()
    a(f"""
    s_cmp_ge_u32 s2, {NBK}
    s_cbranch_scc1 K2_END
    s_load_dwordx2 s[10:11], s[0:1], 80
    s_load_dwordx2 s[4:5], s[0:1], 0
    s_load_dwordx2 s[6:7], s[0:1], 16
    s_load_dwordx2 s[8:9], s[0:1], 64
    v_mov_b32 v{TID}, v0
    v_lshrrev_b32 v1, 6, v0
    v_and_b32 v2, 0x3fc, v0
    v_lshlrev_b32 v2, 1, v2
    v_readfirstlane_b32 s{sW}, v1
    s_lshl_b32 s{sT0}, s2, 11
    s_add_u32 s{sT0}, s{sT0}, {WS_TAB:#x}
    s_mov_b32 s{sLayer}, 0
    s_mov_b32 s{sBlo}, 0
    s_mov_b32 s{sBhi}, 16
    s_mov_b32 s{sFirst}, 1
    s_waitcnt lgkmcnt(0)
    """)
    stamp(a,opt,0)
    srd(a,rTAB,sWS,f"s{sT0}",2048)
    a(f"buffer_load_dwordx2 v[88:89], v2, s[{rTAB}:{rTAB+3}], 0 offen")
    a(f"s_lshl_b32 s{sT0}, s2, 14\ns_add_u32 s{sT0}, s{sT0}, {WS_SLOT:#x}")
    srd(a,rSLOT,sWS,f"s{sT0}",16384)
    a(f"v_lshlrev_b32 v16, 2, v0")
    slot_loads(a)
    srd(a,rREC,sWS,f"{WS_REC-128:#x}",NBK*CH*8+128)
    ov_prep(a)
    a(f"""
    v_mov_b32 v17, 0
    s_mov_b32 s{sT3}, s{sT0}
    s_cmp_gt_u32 s{sW}, 8
    s_cbranch_scc1 K2_NOZ
    ds_write_b32 v16, v17 offset:{CNT}
    K2_NOZ:
    s_mov_b32 s{sHI}, 0
    s_mov_b32 s{sHI+1}, -1
    s_mov_b32 s{sONE}, 1.0
    s_mov_b32 s{sONE+1}, 1.0
    s_mov_b32 s{sMASK}, 0x3fff80
    s_mov_b32 s{sQ3}, 0x88888888
    s_mov_b32 s{sQ3+1}, 0x88888888
    s_mul_i32 s{sM0}, s{sW}, {BSTW}
    s_add_u32 s{sM0}, s{sM0}, {BST}
    s_add_u32 s{sM0+1}, s{sM0}, 1088
    s_add_u32 s{sM0+2}, s{sM0}, 2176
    s_add_u32 s{sM0+3}, s{sM0}, 3264
    """)
    srd(a,rP16,sWS,f"{WS_P16:#x}",N*16)
    srd(a,rWT,sWS,f"{WS_WT:#x}",WT_SIZE)
    srd(a,rBT,sWS,f"{WS_BT:#x}",N*128)
    srd(a,rEA,sEAP,None,E*32)
    srd(a,rH,sH,None,0); srd(a,rOUT,sOUT,None,0); srd(a,rOUTP,sOUT,None,0)
    a(f"""
    v_and_b32 v18, 63, v{TID}
    v_and_b32 v{cDMA}, 7, v18
    v_lshlrev_b32 v{cDMA}, 4, v{cDMA}
    v_lshrrev_b32 v{cHH}, 5, v18
    v_lshlrev_b32 v{cHH}, 4, v{cHH}
    s_cmp_lg_u32 s{sW}, 13
    s_cbranch_scc1 K2_NOOH
    v_bfe_u32 v19, v18, 2, 1
    v_lshlrev_b32 v19, 4, v19
    v_mov_b32 v20, 0x3f80
    v_lshlrev_b32 v19, v19, v20
    v_bfe_u32 v20, v18, 3, 2
    v_and_b32 v21, 3, v18
    v_cmp_eq_u32 vcc, v20, v21
    v_mov_b32 v20, {LN2_NEG:#x}
    v_lshlrev_b32 v21, 2, v18
    v_cndmask_b32 v19, 0, v19, vcc
    s_mov_b32 exec_hi, 0
    ds_write_b32 v21, v19 offset:{OHT}
    ds_write_b32 v21, v20 offset:{WXL+256}
    s_mov_b64 exec, -1
    K2_NOOH:
    v_lshlrev_b32 v19, 4, v{TID}
    v_lshlrev_b32 v18, 4, v18
    s_mov_b32 s{sT0}, s{sT3}
    s_waitcnt lgkmcnt(0)
    s_barrier
    s_waitcnt vmcnt(1)
    """)
    stamp(a,opt,1)
    ov_loads(a,False)
    a(f"""
    s_lshl_b32 s{sT0}, s{sW}, 10
    s_add_u32 m0, s{sT0}, {WHL}
    s_mov_b32 s{sT1}, {WT_WHT}
    buffer_load_dwordx4 v19, s[{rWT}:{rWT+3}], s{sT1} offen lds
    s_cmp_ge_u32 s{sW}, 10
    s_cbranch_scc1 K2_DM1
    s_add_u32 s{sT1}, s{sT0}, {W1L}
    s_add_u32 s{sT2}, s{sT0}, {W3L-8192}
    s_cmp_ge_u32 s{sW}, 8
    s_cselect_b32 m0, s{sT2}, s{sT1}
    s_nop 0
    buffer_load_dwordx4 v19, s[{rWT}:{rWT+3}], 0 offen lds
    s_waitcnt vmcnt(2)
    s_branch K2_HAVE
    K2_DM1:
    s_cmp_ge_u32 s{sW}, 12
    s_cbranch_scc1 K2_DM2
    s_sub_u32 s{sT0}, s{sT0}, {10*1024}
    s_add_u32 m0, s{sT0}, {PDT}
    s_mul_i32 s{sT1}, s2, {NB*16}
    s_add_u32 s{sT1}, s{sT1}, s{sT0}
    v_add_u32 v18, s{sT1}, v18
    s_cmp_eq_u32 s{sW}, 11
    s_cselect_b32 exec_hi, 0xff, -1
    buffer_load_dwordx4 v18, s[{rP16}:{rP16+3}], 0 offen lds
    s_mov_b64 exec, -1
    s_waitcnt vmcnt(2)
    s_branch K2_HAVE
    K2_DM2:
    s_cmp_lg_u32 s{sW}, 12
    s_cbranch_scc1 K2_DM3
    s_mov_b32 m0, {WDL}
    s_mov_b32 s{sT1}, {WT_WDT}
    s_mov_b32 exec_hi, 0
    buffer_load_dwordx4 v18, s[{rWT}:{rWT+3}], s{sT1} offen lds
    s_mov_b64 exec, -1
    s_waitcnt vmcnt(2)
    s_branch K2_HAVE
    K2_DM3:
    s_waitcnt vmcnt(1)
    s_branch K2_HAVE
    K2_ROUND:
    s_waitcnt vmcnt(0)
    s_barrier
    v_mbcnt_lo_u32_b32 v2, -1, 0
    v_mbcnt_hi_u32_b32 v2, -1, v2
    s_lshl_b32 s{sT0}, s{sW}, 6
    v_add_u32 v{TID}, s{sT0}, v2
    v_and_b32 v2, 0x3fc, v{TID}
    v_lshlrev_b32 v2, 1, v2
    buffer_load_dwordx2 v[88:89], v2, s[{rTAB}:{rTAB+3}], 0 offen
    v_mov_b32 v17, 0
    v_lshlrev_b32 v16, 2, v{TID}
    s_cmp_ge_u32 s{sW}, 4
    s_cbranch_scc1 K2_NOZ2
    ds_write_b32 v16, v17 offset:{CNT}
    K2_NOZ2:
    """)
    slot_loads(a); ov_prep(a)
    a(f"""
    s_waitcnt vmcnt(0)
    s_cmp_eq_u32 s{sLayer}, 0
    s_cbranch_scc0 K2_DEEP
    """)
    ov_loads(a,False)
    a(f"""
    s_waitcnt lgkmcnt(0)
    s_barrier
    s_waitcnt vmcnt(0)
    s_branch K2_HAVE
    K2_DEEP:
    """)
    ov_loads(a,True)
    a(f"""
    s_waitcnt lgkmcnt(0)
    s_barrier
    s_waitcnt vmcnt(0)
    """)
    for k in range(4): a(f"v_mov_b32 v{k}, v{16+2*k}\nv_mov_b32 v{4+k}, v{17+2*k}")
    a(f"""
    K2_HAVE:
    """)
    stamp(a,opt,2)
    a(f"""
    v_cmp_lt_u32 vcc, 32, v92
    v_mov_b32 v93, {MAXC}
    v_mov_b32 v95, 1
    s_mov_b64 exec, vcc
    s_cbranch_execz K2_NOMAX
    ds_max_u32 v93, v92
    K2_NOMAX:
    """)
    for k in range(8):
        a(f"""
        s_mov_b64 exec, s[{sV+2*k}:{sV+2*k+1}]
        s_cbranch_execz {'K2_ATOM_MID' if k<4 else 'K2_ATOM_DONE'}
        v_lshrrev_b32 v{16+k}, 16, v{RW[k][0]}
        v_and_b32 v{16+k}, 0x3fc, v{16+k}
        ds_add_rtn_u32 v{24+k}, v{16+k}, v95 offset:{CNT}
        """)
        if k==3: a("K2_ATOM_MID:")
    a(f"""
    K2_ATOM_DONE:
    s_mov_b64 exec, -1
    s_cmp_lg_u32 s{sLayer}, 0
    s_cbranch_scc1 K2_NOW1R
    """)
    slot_w1(a)
    a(f"""
    K2_NOW1R:
    v_and_b32 v100, 63, v{TID}
    v_lshlrev_b32 v101, 4, v100
    """)
    EPF=opt.get('epf',0)
    if EPF:
        a(f"s_cmp_lg_u32 s{sFirst}, 1\ns_cbranch_scc1 K2_NOEPF")
        for k in range(4):
            a(f"""
            v_bfe_u32 v95, v{2*k}, 18, 4
            v_cmp_gt_u32 vcc, {EPF}, v95
            s_and_b64 exec, vcc, s[{sV+2*k}:{sV+2*k+1}]
            buffer_load_dword v{80+k}, v{2*k+1}, s[{rEA}:{rEA+3}], 0 offen
            s_mov_b64 exec, -1
            """)
        a("K2_NOEPF:")
    if opt.get('vpf'):
        nb=opt.get('vpf')
        a(f"""
        s_cmp_lg_u32 s{sFirst}, 1
        s_cbranch_scc1 K2_NOVPF
        s_lshr_b32 s{sT0}, s2, 3
        s_lshl_b32 s{sT0}, s{sT0}, 4
        s_add_u32 s{sT0}, s{sT0}, s{sW}
        s_lshl_b32 s{sT0}, s{sT0}, 9
        v_and_b32 v95, 3, v100
        v_lshrrev_b32 v96, 2, v100
        v_lshlrev_b32 v96, 18, v96
        v_lshl_add_u32 v95, v95, 7, v96
        v_add_u32 v95, s{sT0}, v95
        s_mov_b32 exec_hi, {((1<<(4*nb))-1)>>32:#x}
        s_mov_b32 exec_lo, {((1<<(4*nb))-1)&0xffffffff:#x}
        buffer_load_dword v84, v95, s[{rBT}:{rBT+3}], 0 offen
        s_mov_b64 exec, -1
        K2_NOVPF:
        """)
    stamp(a,opt,3,2)
    a(f"""
    s_waitcnt lgkmcnt(0)
    s_barrier
    """)
    stamp(a,opt,4,2)
    a(f"""
    ds_read_b128 v[88:91], v101 offset:{CNT}
    ds_read_b32 v102, v93
    s_waitcnt lgkmcnt(0)
    v_readfirstlane_b32 s{sMaxc}, v102
    v_add_u32 v89, v88, v89
    v_add_u32 v90, v89, v90
    v_add_u32 v91, v90, v91
    v_add_u32_dpp v92, v91, v91 quad_perm:[1,0,3,2] row_mask:0xf bank_mask:0xf
    v_lshrrev_b32 v102, 2, v100
    v_add_u32_dpp v92, v92, v92 quad_perm:[2,3,0,1] row_mask:0xf bank_mask:0xf
    """)
    if BAL:
        a(f"""
        v_lshl_add_u32 v104, v92, 4, v102
        v_and_b32 v105, 0x3c, v100
        v_and_b32 v106, 3, v100
        v_lshlrev_b32 v106, 4, v106
        ds_write_b32 v105, v104 offset:{KEYS}
        ds_read_b128 v[108:111], v106 offset:{KEYS}
        """)
    a(f"""
    v_sub_u32 v93, 0, v92
    v_and_b32 v93, 31, v93
    v_cndmask_b32 v93, 0, v93, s[{sQ3}:{sQ3+1}]
    v_add_u32 v94, v91, v93
    v_mov_b32 v103, v94
    """)
    wave_scan(a,103)
    a(f"""
    v_sub_u32 v96, v103, v94
    v_add_u32 v97, v96, v88
    v_add_u32 v98, v96, v89
    v_add_u32 v99, v96, v90
    ds_write_b128 v101, v[96:99] offset:{BASE}
    v_readlane_b32 s{sTot}, v103, 63
    s_cmp_le_u32 s{sTot}, {LCAP}
    s_cbranch_scc1 K2_FITS
    s_add_u32 s{sBhi}, s{sBlo}, 4
    s_waitcnt lgkmcnt(0)
    s_branch K2_ROUND
    K2_FITS:
    """)
    stamp(a,opt,5,2)
    for k in range(8):
        a(f"""
        s_mov_b64 exec, s[{sV+2*k}:{sV+2*k+1}]
        s_cbranch_execz {'K2_BR_MID' if k<4 else 'K2_BR_DONE'}
        ds_read_b32 v{16+k}, v{16+k} offset:{BASE}
        """)
        if k==3: a("K2_BR_MID:")
    a(f"""
    K2_BR_DONE:
    s_mov_b64 exec, -1
    s_cmp_eq_u32 s{sFirst}, 0
    s_cbranch_scc1 K2_NFG
    """)
    if BAL:
        a(f"""
        s_lshr_b32 s{sT0}, s{sW}, 2
        s_and_b32 s{sT1}, s{sT0}, 1
        s_mul_i32 s{sT1}, s{sT1}, 3
        s_xor_b32 s{sT0}, s{sW}, s{sT1}
        s_waitcnt lgkmcnt(0)
        v_cmp_gt_u32 vcc, v108, v104
        v_cmp_gt_u32 s[{sK}:{sK+1}], v109, v104
        v_addc_co_u32 v105, vcc, 0, 0, vcc
        v_addc_co_u32 v105, s[{sK}:{sK+1}], 0, v105, s[{sK}:{sK+1}]
        v_cmp_gt_u32 vcc, v110, v104
        v_cmp_gt_u32 s[{sK}:{sK+1}], v111, v104
        v_addc_co_u32 v105, vcc, 0, v105, vcc
        v_addc_co_u32 v105, s[{sK}:{sK+1}], 0, v105, s[{sK}:{sK+1}]
        v_add_u32_dpp v105, v105, v105 quad_perm:[1,0,3,2] row_mask:0xf bank_mask:0xf
        v_add_u32_dpp v105, v105, v105 quad_perm:[2,3,0,1] row_mask:0xf bank_mask:0xf
        v_cmp_eq_u32 vcc, s{sT0}, v105
        s_ff1_i32_b64 s{sG}, vcc
        s_lshr_b32 s{sG}, s{sG}, 2
        s_and_b32 s{sG}, s{sG}, 15
        """)
    else:
        a(f"""
        s_lshr_b32 s{sT1}, s{sW}, 3
        s_sub_u32 s{sT2}, s{sW}, s{sT1}
        s_and_b32 s{sT2}, s{sT2}, 7
        s_lshl_b32 s{sT1}, s{sT1}, 3
        s_add_u32 s{sG}, s{sT1}, s{sT2}
        """)
    a(f"""
    s_and_b32 s{sT1}, s{sG}, 7
    s_cmp_eq_u32 s{sT1}, 0
    s_cselect_b32 s{sCnt}, 7, 6
    s_mul_i32 s{sGs}, s{sG}, 49
    s_add_u32 s{sGs}, s{sGs}, 7
    s_lshr_b32 s{sGs}, s{sGs}, 3
    s_mul_i32 s{sNode0}, s2, {NB}
    s_add_u32 s{sNode0}, s{sNode0}, s{sGs}
    s_lshl_b32 s{sGs}, s{sGs}, 4
    s_add_u32 s{sGs}, s{sGs}, {PDT}
    s_sub_i32 s{sT1}, {N}, s{sNode0}
    s_max_i32 s{sT1}, s{sT1}, 0
    s_min_u32 s{sCnt}, s{sCnt}, s{sT1}
    s_min_u32 s{sNode0}, s{sNode0}, {N}
    s_lshl_b32 s{sT0}, s{sNode0}, 7
    s_lshl_b32 s{sT1}, s{sCnt}, 7
    """)
    srd(a,rH,sH,f"s{sT0}",f"s{sT1}")
    def ha_loads():
        a(f"""
        v_and_b32 v105, 3, v100
        v_bfe_u32 v106, v100, 3, 2
        v_lshl_add_u32 v105, v106, 2, v105
        v_lshl_add_u32 v105, v105, 7, v{cHH}
        s_mov_b32 exec_lo, 0xf0f
        s_mov_b32 exec_hi, 0xf0f
        """)
        for s_ in range(4): a(f"buffer_load_dwordx4 {vr(HA+4*s_,4)}, v105, s[{rH}:{rH+3}], 0 offen offset:{32*s_}")
        a("s_mov_b64 exec, -1")
    HLATE=opt.get('halate',0)
    if not HLATE: ha_loads()
    a(f"""
    s_mov_b64 exec, -1
    v_mov_b32 v{cPD}, {OHT}
    v_mov_b32 v105, s{sGs}
    v_cndmask_b32 v{cPD}, v{cPD}, v105, s[{sHI}:{sHI+1}]
    """)
    srd(a,rOUT,sOUT,f"s{sT0}",f"s{sT1}")
    a(f"s_mul_i32 s{sT0}, s{sNode0}, 6\ns_add_u32 s{sT0}, s{sT0}, {N*128}\ns_mul_i32 s{sT1}, s{sCnt}, 6")
    srd(a,rOUTP,sOUT,f"s{sT0}",f"s{sT1}")
    a(f"""
    K2_NFG:
    s_lshl_b32 s{sT0}, s{sG}, 2
    v_readlane_b32 s{sGb}, v96, s{sT0}
    v_readlane_b32 s{sNT}, v92, s{sT0}
    v_mov_b32 v102, 7
    v_mov_b32 v103, 0
    s_add_u32 s{sT1}, s{sGb}, s{sNT}
    s_sub_u32 s{sPad}, 0, s{sNT}
    s_and_b32 s{sPad}, s{sPad}, 31
    v_add_lshl_u32 v101, s{sT1}, v100, 2
    v_cmp_gt_u32 vcc, s{sPad}, v100
    s_mov_b64 exec, vcc
    ds_write2st64_b32 v101, v102, v103 offset0:{L0//256} offset1:{L1//256}
    s_waitcnt lgkmcnt(1)
    """)
    for k in range(8):
        a(f"""
        s_mov_b64 exec, s[{sV+2*k}:{sV+2*k+1}]
        s_cbranch_execz {'K2_LW_MID' if k<4 else 'K2_LW_DONE'}
        v_add_lshl_u32 v{16+k}, v{16+k}, v{24+k}, 2
        ds_write2st64_b32 v{16+k}, v{RW[k][0]}, v{RW[k][1]} offset0:{L0//256} offset1:{L1//256}
        """)
        if k==3: a("K2_LW_MID:")
    a(f"""
    K2_LW_DONE:
    s_mov_b64 exec, -1
    """)
    stamp(a,opt,6,2)
    a(f"""
    s_lshl_b32 s{sT0}, s{sGb}, 2
    s_add_u32 s{sT0}, s{sT0}, {L0}
    v_lshrrev_b32 v101, 3, v100
    v_lshl_add_u32 v{aL4}, v101, 4, s{sT0}
    v_and_b32 v101, 31, v100
    v_lshl_add_u32 v{aLE}, v101, 2, s{sT0}
    s_add_u32 s{sNT}, s{sNT}, 31
    s_lshr_b32 s{sNT}, s{sNT}, 5
    s_waitcnt vmcnt({(0 if HLATE else 4)+(4 if EPF else 0)+(1 if opt.get('vpf') else 0)}) lgkmcnt(0)
    s_barrier
    """)
    stamp(a,opt,3,1)
    stamp(a,opt,7,2)
    if opt.get('prio'): a('s_setprio 3')
    if opt.get('bpf'):
        a(f"""
        s_lshr_b32 s{sGb}, s2, 3
        s_lshl_b32 s{sGb}, s{sGb}, 4
        s_add_u32 s{sGb}, s{sGb}, s{sW}
        s_lshl_b32 s{sGb}, s{sGb}, 9
        s_add_u32 s{sGb}, s{sGb}, {opt.get('bpf0',3)*262144}
        """)
    a(idx_reads())
    if HLATE:
        a(f"s_cmp_eq_u32 s{sFirst}, 0\ns_cbranch_scc1 K2_NOHL")
        ha_loads()
        a("K2_NOHL:")
    a("s_waitcnt lgkmcnt(0)")
    a(issue_loads(opt)); a(oh_read())
    a(f"""
    s_cmp_eq_u32 s{sFirst}, 0
    s_cbranch_scc1 K2_NF2
    s_mov_b32 s{sFirst}, 0
    v_lshlrev_b32 v18, 4, v100
    v_add_u32 v48, {W1L}, v18
    v_lshlrev_b32 v19, 2, v101
    ds_read_b128 {vr(W3,4)}, v18 offset:{W3L}
    ds_read_b128 {vr(W3+4,4)}, v18 offset:{W3L+1024}
    ds_read_b32 v{AG+2}, v19 offset:{WDL}
    ds_read_b32 v{AG+6}, v19 offset:{WDL+128}
    """)
    a(f"""
    v_mov_b32 v16, v100
    v_mov_b32 v20, v101
    v_lshrrev_b32 v21, 5, v16
    v_and_b32 v24, 3, v16
    v_pk_mov_b32 v[28:29], 0, 0
    v_pk_mov_b32 v[30:31], 0, 0
    s_lshl_b32 s{sT0}, s{sW}, 11
    s_add_u32 s{sT0}, s{sT0}, {SX}
    v_add_u32 v18, s{sT0}, v18
    ds_write_b128 v18, v[28:31]
    ds_write_b128 v18, v[28:31] offset:1024
    """)
    WB=(88,92,96,100,52,56,60,88)
    for i in range(7): a(f"ds_read_b128 {vr(WB[i],4)}, v48 offset:{1024*i}")
    cons=f"""v_bfe_u32 v22, v16, 4, 1
    v_bfe_u32 v23, v16, 2, 2
    v_lshl_add_u32 v{aSXW}, v20, 6, s{sT0}
    v_lshl_add_u32 v25, v21, 2, v23
    v_lshl_add_u32 v{aSXR}, v25, 6, s{sT0}
    v_lshl_add_u32 v25, v22, 2, v24
    v_lshl_add_u32 v{aSXR}, v25, 3, v{aSXR}
    v_lshrrev_b32 v25, 1, v23
    v_mul_u32_u24 v{aTR}, 1088, v25
    v_and_b32 v25, 1, v23
    v_lshl_add_u32 v25, v21, 2, v25
    v_lshl_add_u32 v{aTR}, v25, 7, v{aTR}
    v_lshl_add_u32 v{aTR}, v22, 5, v{aTR}
    v_lshl_add_u32 v{aTR}, v24, 3, v{aTR}
    v_add_u32 v{aTR}, s{sM0}, v{aTR}
    v_bfe_u32 v25, v20, 1, 1
    v_bfe_u32 v26, v20, 3, 1
    v_lshl_add_u32 v25, v25, 1, v26
    v_and_b32 v26, 1, v20
    v_lshl_add_u32 v49, v25, 1, v26
    v_xor_b32 v26, v21, v22
    v_lshl_add_u32 v49, v26, 3, v49
    v_bfe_u32 v26, v20, 2, 1
    v_lshlrev_b32 v26, 4, v26
    v_mov_b32 v27, 0x3f80
    v_lshlrev_b32 v50, v26, v27"""
    a(cons)
    idl=[]
    for i in range(0,8,2):
        idl.append(f"v_cmp_eq_u32 vcc, {i}, v49\nv_cmp_eq_u32 s[{sK}:{sK+1}], {i+1}, v49\ns_nop 0\nv_cndmask_b32 v{ID+i}, 0, v50, vcc\nv_cndmask_b32 v{ID+i+1}, 0, v50, s[{sK}:{sK+1}]")
    a("s_waitcnt vmcnt(6)")
    for i in range(8):
        s_,p=i//2,i%2
        a(f"s_waitcnt lgkmcnt({(6,6,5,4,3,2,1,0)[i]})")
        a(mf(D1+16*p, HA+4*s_, WB[i], None if s_==0 else D1+16*p))
        if i==0: a(f"ds_read_b128 {vr(WB[7],4)}, v48 offset:{1024*7}")
        if 1<=i<=4: a(idl[i-1])
    a(f"s_mov_b32 s{sK}, {LOG2E_NEG:#x}\ns_mov_b32 s{sK+1}, {LOG2E_NEG:#x}")
    a(f"s_mov_b64 exec, s[{sHI}:{sHI+1}]")
    for p in range(2):
        for i in (0,1,3): a(f"v_mov_b32 v{AG+4*p+i}, 0")
    a("s_mov_b64 exec, -1")
    a("v_pk_mov_b32 v[88:89], 0, 0\nv_pk_mov_b32 v[90:91], 0, 0")
    a(mf(D2,88,88)); a(mf(D2+16,88,88))
    a("s_mov_b32 exec_hi, 0")
    for p in range(2):
        for i in range(4): a(f"v_pk_mul_f32 {vr(D1+16*p+2*i,2)}, {vr(D1+16*p+2*i,2)}, s[{sK}:{sK+1}]")
    for p in range(2):
        for i in range(4): a(f"v_cvt_pk_bf16_f32 v{AG+4*p+i}, v{D1+16*p+2*i}, v{D1+16*p+2*i+1}")
    a("s_mov_b64 exec, -1\nK2_NF2:")
    a(f"v_mov_b32 v{SXA}, v{aSXW}")
    for i in (0,2,8,10): a(f"v_pk_mov_b32 {vr(D1+16+i,2)}, 0, 0")
    a(f"""
    s_cmp_eq_u32 s{sNT}, 0
    s_cbranch_scc1 K2_EMPTY
    s_waitcnt vmcnt(1)
    """)
    stamp(a,opt,4,1)
    a(bst_reads(0)); a("s_waitcnt lgkmcnt(4)"); a(edge())
    a("s_waitcnt lgkmcnt(2)"); a(mf(D1,ID,T0)); a("s_waitcnt lgkmcnt(0)"); a(mf(D1,ID+4,T1,D1)); a(mf(D1,OH,AG,D1)); a("s_waitcnt vmcnt(0)"); a(mf(D1,EA,W3,D1))
    a(sx_reads())
    a(f"""
    s_nop 3
    s_cmp_eq_u32 s{sNT}, 1
    s_cbranch_scc1 K2_LAST
    .p2align 3
    K2_TILE:
    """)
    n0=len(a.l)
    phaseX(a,opt,False); phaseY(a,opt,False)
    xfilter(a,n0,opt)
    a(f"s_sub_u32 s{sNT}, s{sNT}, 1")
    if opt.get('prio'):
        th=opt.get('prio_th',[5,3,1])
        for i,t in enumerate(th):
            a(f"s_cmp_eq_u32 s{sNT}, {t}\ns_cbranch_scc0 K2_P{i}\ns_setprio {2-i}\nK2_P{i}:")
    a(f"""
    s_cmp_lg_u32 s{sNT}, 1
    s_cbranch_scc1 K2_TILE
    K2_LAST:
    """)
    if HALF:
        a(f"s_cmp_ge_u32 s{sPad}, 16\ns_cbranch_scc1 K2_LASTH")
    n0=len(a.l)
    phaseX(a,opt,True); phaseY(a,opt,True)
    xfilter(a,n0,opt)
    if HALF:
        a("s_branch K2_TAIL\nK2_LASTH:")
        n0=len(a.l)
        phaseX(a,opt,True,True); phaseY(a,opt,True,True)
        xfilter(a,n0,opt)
    a(f"K2_TAIL:\ns_mov_b64 exec, s[{sHI}:{sHI+1}]"); a(sx_zero()); a("s_mov_b64 exec, -1")
    a("s_branch K2_RND_END\nK2_EMPTY:\ns_waitcnt vmcnt(0) lgkmcnt(0)")
    a(fin_loads())
    a(f"""
    K2_RND_END:
    s_waitcnt lgkmcnt(0)
    s_cmp_ge_u32 s{sBhi}, 16
    s_cbranch_scc1 K2_NEXTLAYER
    s_mov_b32 s{sBlo}, s{sBhi}
    s_add_u32 s{sBhi}, s{sBhi}, 4
    s_branch K2_ROUND
    K2_NEXTLAYER:
    s_add_u32 s{sLayer}, s{sLayer}, 1
    s_mov_b32 s{sBlo}, 0
    s_lshl_b32 s{sT0}, s{sLayer}, 5
    s_cmp_lt_u32 s{sT0}, s{sMaxc}
    s_cbranch_scc1 K2_ROUND
    """)
    stamp(a,opt,5,1)
    WH=[64+4*i for i in range(10)]+[0,4,8,116,108,120]
    a(f"""
    v_mbcnt_lo_u32_b32 v31, -1, 0
    v_mbcnt_hi_u32_b32 v31, -1, v31
    v_lshlrev_b32 v28, 4, v31
    v_add_u32 v28, {WHL}, v28
    """)
    for i in range(12): a(f"ds_read_b128 {vr(WH[i],4)}, v28 offset:{1024*i}")
    a(f"""
    v_and_b32 v12, 15, v31
    v_lshrrev_b32 v13, 4, v31
    v_lshrrev_b32 v14, 2, v12
    v_and_b32 v15, 1, v31
    v_lshl_add_u32 v14, v14, 1, v15
    v_lshlrev_b32 v29, 8, v13
    v_lshl_add_u32 v29, v12, 3, v29
    s_waitcnt lgkmcnt(6)
    """)
    for i in range(12,16): a(f"ds_read_b128 {vr(WH[i],4)}, v28 offset:{1024*i}")
    a(f"""
    v_mul_u32_u24 v30, 144, v14
    v_lshl_add_u32 v30, v13, 4, v30
    v_add_u32 v30, s{sM0}, v30
    v_lshrrev_b32 v13, 5, v31
    v_lshlrev_b32 v28, 7, v13
    v_and_b32 v12, 3, v31
    v_cmp_eq_u32 vcc, 0, v12
    v_mov_b32 v14, 256
    v_cndmask_b32 v28, v28, v14, vcc
    s_mov_b64 s[{sV}:{sV+1}], vcc
    """)
    for p in range(2):
        for q in range(4): a(f"ds_read_b128 {vr(12+4*q,4)}, v28 offset:{WXL+64*p+16*q}")
        a("s_waitcnt lgkmcnt(0)")
        for i in range(8): a(f"v_pk_mul_f32 {vr(D2+16*p+2*i,2)}, {vr(D2+16*p+2*i,2)}, {vr(12+2*i,2)}")
    a(f"""
    v_bfe_u32 v12, v31, 2, 3
    v_mul_u32_u24 v28, 144, v12
    v_lshrrev_b32 v13, 5, v31
    v_lshl_add_u32 v28, v13, 3, v28
    v_add_u32 v28, s{sM0}, v28
    v_and_b32 v14, 3, v31
    v_lshlrev_b32 v15, 4, v12
    v_lshl_add_u32 v15, v14, 2, v15
    s_sub_u32 s{sT1}, s{sGs}, 4
    v_add_u32 v15, s{sT1}, v15
    ds_read_b32 v16, v15
    v_mul_u32_u24 v12, 6, v12
    v_lshl_add_u32 v12, v14, 1, v12
    v_subrev_u32 v12, 2, v12
    s_mov_b64 exec, s[{sV}:{sV+1}]
    """)
    for p in range(2):
        for q in range(4):
            b=D2+16*p+4*q
            a(f"v_cvt_pk_bf16_f32 v{b}, v{b}, v{b+1}\nv_cvt_pk_bf16_f32 v{b+1}, v{b+2}, v{b+3}\nds_write_b64 v28, {vr(b,2)} offset:{64*p+16*q}")
    a(f"s_not_b64 exec, exec")
    st=16
    while st>=2:
        for i in range(0,st,2): a(f"v_pk_add_f32 {vr(D2+i,2)}, {vr(D2+i,2)}, {vr(D2+st+i,2)}")
        st//=2
    a(f"""
    v_add_f32 v32, v32, v33
    s_mov_b64 exec, -1
    v_mov_b32 v33, v32
    v_permlane32_swap_b32 v32, v33
    v_add_f32 v32, v32, v33
    s_waitcnt lgkmcnt(0)
    v_add_f32 v32, v32, v16
    v_cvt_pk_bf16_f32 v32, v32, v32
    s_mov_b32 exec_lo, 0xeeeeeeee
    s_mov_b32 exec_hi, 0
    buffer_store_short v32, v12, s[{rOUTP}:{rOUTP+3}], 0 offen {opt.get('outp_pol','')}
    s_mov_b64 exec, -1
    ds_read_b128 v[36:39], v30
    ds_read_b128 v[40:43], v30 offset:64
    s_waitcnt vmcnt(1)
    """)
    D3=44
    XA=(EA,PS,36,40)
    for s in range(4):
        if s==2: a("s_waitcnt lgkmcnt(0)")
        for q in range(4):
            c="0" if s==0 else vr(D3+4*q,4)
            a(f"v_mfma_f32_16x16x32_bf16 {vr(D3+4*q,4)}, {vr(XA[s],4)}, {vr(WH[4*s+q],4)}, {c}")
    for r in range(2):
        a(f"""
        v_lshlrev_b32 v{12+4*r}, 16, v{124+2*r}
        v_and_b32 v{13+4*r}, 0xffff0000, v{124+2*r}
        v_lshlrev_b32 v{14+4*r}, 16, v{125+2*r}
        v_and_b32 v{15+4*r}, 0xffff0000, v{125+2*r}
        """)
    Z=[(r,q) for r in range(2) for q in range(4)]
    for k,(r,q) in enumerate(Z): a(f"v_mul_f32 v{20+k}, {LOG2E_NEG:#x}, v{D3+4*q+r}")
    for k in range(8): a(f"v_exp_f32 v{20+k}, v{20+k}")
    for k in range(8): a(f"v_add_f32 v{20+k}, 1.0, v{20+k}")
    for k in range(8): a(f"v_rcp_f32 v{20+k}, v{20+k}")
    for k,(r,q) in enumerate(Z): a(f"v_fmac_f32 v{12+k}, v{20+k}, v{D3+4*q+r}")
    for r in range(2):
        a(f"""
        v_cvt_pk_bf16_f32 v{20+2*r}, v{12+4*r}, v{13+4*r}
        v_cvt_pk_bf16_f32 v{21+2*r}, v{14+4*r}, v{15+4*r}
        buffer_store_dwordx2 {vr(20+2*r,2)}, v29, s[{rOUT}:{rOUT+3}], 0 offen offset:{128*r} {opt.get('out_pol','')}
        """)
    stamp(a,opt,6,1)
    if opt.get('stamp'): a("s_waitcnt vmcnt(0)")
    stamp(a,opt,7,1)
    stamp_out(a,opt,1,sWS,sW,32,40)
    a("K2_END:\ns_endpgm")
    return a
```

```python
from asmlib import *
from cfg import *

def srd(a, s, base_lo, off=None, size=None, w1or=0):
    if off is None:
        a(f"s_mov_b32 s{s}, s{base_lo}\ns_mov_b32 s{s+1}, s{base_lo+1}")
    else:
        a(f"s_add_u32 s{s}, s{base_lo}, {off}\ns_addc_u32 s{s+1}, s{base_lo+1}, 0")
    if w1or: a(f"s_or_b32 s{s+1}, s{s+1}, {w1or:#x}")
    a(f"s_mov_b32 s{s+2}, {size}\ns_mov_b32 s{s+3}, 0x20000")

def wave_scan(a, v):
    for sh in (1,2,4,8):
        a(f"v_add_u32_dpp v{v}, v{v}, v{v} row_shr:{sh} row_mask:0xf bank_mask:0xf bound_ctrl:1")
    a(f"v_add_u32_dpp v{v}, v{v}, v{v} row_bcast:15 row_mask:0xa bank_mask:0xf")
    a(f"v_add_u32_dpp v{v}, v{v}, v{v} row_bcast:31 row_mask:0xc bank_mask:0xf")

STREG={'regs':None,'tmp':None}
def stamp(a,opt,k,mode=None):
    if opt.get('stamp') and (mode is None or opt.get('stamp')==mode):
        R=STREG['regs']
        a(f"{'s_memtime' if opt.get('clk') else 's_memrealtime'} vcc\ns_waitcnt lgkmcnt(0)\ns_mov_b32 s{R[k]}, vcc_lo")
        if k==0:
            for i in range(1,6): a(f"s_mov_b32 s{R[i]}, vcc_lo")
def stamp_out(a,opt,which,sWS,sW,v0,v1):
    if opt.get('stamp'):
        R=STREG['regs']; t=STREG['tmp']
        a(f"s_lshl_b32 s{t}, s2, 4\ns_add_u32 s{t}, s{t}, s{sW}\ns_lshl_b32 s{t}, s{t}, 5\ns_add_u32 s{t}, s{t}, {WS_ST+which*131072}")
        a(f"s_add_u32 s{t}, s{sWS}, s{t}\ns_addc_u32 s{t+1}, s{sWS+1}, 0\nv_mov_b32 v{v1}, 0")
        for i in range(8): a(f"v_mov_b32 v{v0+i}, s{R[i]}")
        a(f"s_mov_b64 exec, 1\nglobal_store_dwordx4 v{v1}, v[{v0}:{v0+3}], s[{t}:{t+1}]\nglobal_store_dwordx4 v{v1}, v[{v0+4}:{v0+7}], s[{t}:{t+1}] offset:16")

CNT=0; XB=1024; BASE=2048; W2L=3072; BOUT=W2L+8192; SLOTS=BOUT+3*4096; SLW=80; K1_LDS=SLOTS+256*SLW

def gen_k1(opt):
    a=Asm()
    STREG.update(regs=[90,91,92,93,94,95,96,97],tmp=98)
    ST=opt.get('k1_store','sc1'); LD=opt.get('k1_load','nt'); TP=opt.get('tab_store','')
    sH,sPOSP,sSRC,sDST,sWE,sWX,sWH,sWS=4,6,8,10,12,14,16,18
    rDST,rSRC,rH,rPOS,rWE,rREC,rTAB,rBT,rP16,rX,rY,rSLOT=20,24,28,32,36,40,44,48,52,56,60,76
    sW,sN,sNN,sT0,sT1,sT2,sT3,sM=64,65,66,67,68,69,70,71
    ROT=opt.get('k1_rot',832)
    sL=72
    sVAL=74
    sHI2=3
    sPL,sPI=88,89
    sOV=80
    a(f"""
    s_cmp_ge_u32 s2, {NBK}
    s_cbranch_scc1 K1_END
    s_load_dwordx4 s[8:11], s[0:1], 24
    s_load_dwordx4 s[12:15], s[0:1], 40
    s_load_dwordx4 s[4:7], s[0:1], 0
    s_load_dwordx2 s[16:17], s[0:1], 56
    s_load_dwordx2 s[18:19], s[0:1], 80
    v_add_u32 v0, {ROT}, v0
    v_and_b32 v0, 0x3ff, v0
    v_lshrrev_b32 v1, 6, v0
    v_and_b32 v2, 63, v0
    v_readfirstlane_b32 s{sW}, v1
    v_lshlrev_b32 v3, 4, v0
    s_mul_i32 s{sT0}, s2, {CH}
    s_sub_u32 s{sN}, {E}, s{sT0}
    s_min_u32 s{sN}, s{sN}, {CH}
    s_mul_i32 s{sT1}, s2, {NB}
    s_sub_u32 s{sNN}, {N}, s{sT1}
    s_min_u32 s{sNN}, s{sNN}, {NB}
    s_lshl_b32 s{sT2}, s{sT0}, 2
    s_lshl_b32 s{sT3}, s{sN}, 2
    s_and_b32 s{sPL}, s2, 7
    s_lshl_b32 s{sPL}, s{sPL}, 1
    s_lshr_b32 s{sPI}, s2, 7
    s_add_u32 s{sPL}, s{sPL}, s{sPI}
    s_bfe_u32 s{sPI}, s2, 0x40003
    s_cmp_ge_u32 s{sW}, 13
    s_waitcnt lgkmcnt(0)
    """)
    stamp(a,opt,0)
    a("s_cbranch_scc1 K1_G0")
    srd(a,rDST,sDST,f"s{sT2}",f"s{sT3}")
    a(f"buffer_load_dwordx4 v[8:11], v3, s[{rDST}:{rDST+3}], 0 offen {LD}")
    srd(a,rSRC,sSRC,f"s{sT2}",f"s{sT3}")
    a(f"buffer_load_dwordx4 v[12:15], v3, s[{rSRC}:{rSRC+3}], 0 offen {LD}")
    a(f"""
    v_mov_b32 v20, 0
    s_cmp_ge_u32 s{sW}, 8
    s_cbranch_scc1 K1_NOZ
    v_lshlrev_b32 v21, 2, v0
    ds_write_b32 v21, v20 offset:{CNT}
    K1_NOZ:
    s_lshl_b32 s{sT2}, s{sT0}, 3
    s_add_u32 s{sT2}, s{sT2}, {WS_REC-128:#x}
    s_lshl_b32 s{sT3}, s{sN}, 3
    s_add_u32 s{sT3}, s{sT3}, 128
    """)
    srd(a,rREC,sWS,f"s{sT2}",f"s{sT3}")
    srd(a,rTAB,sWS,f"{WS_TAB:#x}",NBK*2048)
    srd(a,rSLOT,sWS,f"{WS_SLOT:#x}",NBK*16384)
    a(f"""
    s_lshr_b32 s{sT2}, s{sN}, 2
    v_cmp_gt_u32 s[{sVAL}:{sVAL+1}], s{sT2}, v0
    s_lshl_b32 s{sT2}, s{sT0}, 5
    v_lshl_add_u32 v53, v0, 7, s{sT2}
    v_add_u32 v55, 32, v53
    v_add_u32 v57, 64, v53
    v_add_u32 v59, 96, v53
    v_lshlrev_b32 v23, 24, v0
    v_and_b32 v23, 0xfc000000, v23
    v_and_b32 v21, 3, v0
    v_lshl_or_b32 v23, v21, 5, v23
    s_lshr_b32 s{sHI2}, s{sW}, 2
    s_mov_b32 s{sM}, 171196
    v_mov_b32 v22, 8192
    v_mov_b32 v20, 1
    s_waitcnt lgkmcnt(0)
    s_barrier
    s_mov_b64 exec, s[{sVAL}:{sVAL+1}]
    s_waitcnt vmcnt(1)
    """)
    stamp(a,opt,1)
    for j in range(4):
        a(f"""
        v_mad_u32_u24 v{16+j}, v{8+j}, s{sM}, v22
        v_lshrrev_b32 v{16+j}, 20, v{16+j}
        v_lshrrev_b32 v{28+j}, 2, v{16+j}
        v_and_b32 v{28+j}, 0x3fc, v{28+j}
        ds_add_rtn_u32 v{24+j}, v{28+j}, v20 offset:{CNT}
        """)
    for j in range(4):
        a(f"""
        v_mad_u32_u24 v21, v{16+j}, 49, 7
        v_lshrrev_b32 v21, 3, v21
        v_sub_u32 v{8+j}, v{8+j}, v21
        """)
    for j in range(4):
        a(f"""
        v_and_b32 v{16+j}, 15, v{16+j}
        v_lshl_or_b32 v{8+j}, v{16+j}, 22, v{8+j}
        v_add3_u32 v{8+j}, v{8+j}, v23, {8*j}
        """)
    a("s_waitcnt vmcnt(0)")
    for j in range(4): a(f"v_lshl_or_b32 v{52+2*j}, v{12+j}, 7, v{8+j}")
    for j in range(4):
        a(f"""
        s_waitcnt lgkmcnt({3+j})
        v_cmp_gt_u32 vcc, 16, v{24+j}
        v_lshlrev_b32 v{12+j}, 1, v{24+j}
        v_lshlrev_b32 v{24+j}, 2, v{24+j}
        v_mad_u32_u24 v21, v{28+j}, {SLW//4}, v{24+j}
        v_lshlrev_b32 v{12+j}, v{12+j}, s{sHI2}
        s_andn2_b64 s[{sOV+2*j}:{sOV+2*j+1}], exec, vcc
        s_mov_b64 exec, vcc
        ds_write_b32 v21, v{52+2*j} offset:{SLOTS}
        ds_or_b32 v{28+j}, v{12+j} offset:{XB}
        s_mov_b64 exec, {'-1' if j==3 else 's[%d:%d]'%(sVAL,sVAL+1)}
        """)
    def slot_out_prep(r=16):
        a(f"""
        v_lshrrev_b32 v{r}, 2, v0
        v_and_b32 v{r+3}, 0x30, v3
        v_mad_u32_u24 v{r+1}, v{r}, s{sT3}, v{r+3}
        v_add_u32 v{r+2}, s{sPL}, v{r}
        v_and_b32 v{r+2}, 15, v{r+2}
        v_lshl_add_u32 v{r+2}, v{r}, 4, v{r+2}
        v_lshl_add_u32 v{r+2}, v{r+2}, 4, s{sPI}
        v_lshl_add_u32 v{r+2}, v{r+2}, 6, v{r+3}
        """)
    def slot_out(extra,r=16,d2=None):
        a(f"""
        ds_read_b128 v[60:63], v{r+1} offset:{SLOTS}
        {extra}
        s_waitcnt lgkmcnt({extra.count('ds_')})
        buffer_store_dwordx4 v[60:63], v{r+2}, s[{rSLOT}:{rSLOT+3}], 0 offen {ST}
        """)
    a(f"s_mov_b32 s{sT3}, {SLW}")
    slot_out_prep()
    a(f"""
    v_lshlrev_b32 v4, 4, v2
    s_waitcnt lgkmcnt(0)
    s_barrier
    """)
    stamp(a,opt,2)
    slot_out(f"ds_read_b128 v[8:11], v4 offset:{CNT}\nds_read_b128 v[20:23], v4 offset:{XB}")
    a("s_waitcnt lgkmcnt(0)")
    for j in range(4): a(f"v_subrev_u32 v{12+j}, 16, v{8+j}")
    for j in range(4): a(f"v_max_i32 v{12+j}, 0, v{12+j}")
    a(f"""
    v_add_u32 v13, v12, v13
    v_add_u32 v14, v13, v14
    v_add_u32 v15, v14, v15
    v_mov_b32 v5, v15
    """)
    wave_scan(a,5)
    a(f"""
    v_sub_u32 v16, v5, v15
    v_add_u32 v17, v16, v12
    v_add_u32 v18, v16, v13
    v_add_u32 v19, v16, v14
    ds_write_b128 v4, v[16:19] offset:{BASE}
    """)
    for j in range(4):
        a(f"s_mov_b64 exec, s[{sOV+2*j}:{sOV+2*j+1}]\nds_read_b32 v{28+j}, v{28+j} offset:{BASE}")
    a(f"""
    s_mov_b64 exec, -1
    s_cmp_ge_u32 s{sW}, 4
    s_cbranch_scc1 K1_NOTAB
    v_lshl_add_u32 v5, v2, 2, s{sW}
    v_add_u32 v6, s{sPL}, v5
    v_and_b32 v6, 15, v6
    v_lshl_add_u32 v5, v5, 4, v6
    v_lshl_add_u32 v5, v5, 4, s{sPI}
    v_lshlrev_b32 v5, 3, v5
    """)
    for j in range(4):
        a(f"""
        s_cmp_lg_u32 s{sW}, {j}
        s_cbranch_scc1 K1_TB{j}
        v_lshl_or_b32 v6, v{16+j}, 16, v{8+j}
        v_mov_b32 v7, v{20+j}
        K1_TB{j}:
        """)
    a(f"buffer_store_dwordx2 v[6:7], v5, s[{rTAB}:{rTAB+3}], 0 offen {TP}")
    a("K1_NOTAB:\ns_waitcnt lgkmcnt(0)")
    for j in range(4):
        a(f"""
        s_mov_b64 exec, s[{sOV+2*j}:{sOV+2*j+1}]
        s_cbranch_execz K1_NOOV{j}
        v_lshl_add_u32 v{28+j}, v{28+j}, 2, v{24+j}
        v_lshlrev_b32 v{28+j}, 1, v{28+j}
        buffer_store_dwordx2 v[{52+2*j}:{53+2*j}], v{28+j}, s[{rREC}:{rREC+3}], 0 offen {ST}
        K1_NOOV{j}:
        """)
    a("s_mov_b64 exec, -1\ns_branch K1_FIN")
    a("K1_G0:")
    srd(a,rWE,sWE,None,145*128)
    a(f"s_lshl_b32 s{sT2}, s{sT1}, 7\ns_lshl_b32 s{sT3}, s{sNN}, 7")
    srd(a,rH,sH,f"s{sT2}",f"s{sT3}")
    a(f"s_add_u32 s{sT2}, s{sT2}, {WS_BT:#x}")
    srd(a,rBT,sWS,f"s{sT2}",f"s{sT3}")
    srd(a,rSLOT,sWS,f"{WS_SLOT:#x}",NBK*16384)
    HB=32; HB3=8; WA=64; DD=96
    a(f"s_lshl_b32 s{sT2}, s{sT1}, 4\ns_add_u32 s{sT2}, s{sT2}, {WS_P16:#x}\ns_lshl_b32 s{sT3}, s{sNN}, 4")
    srd(a,rP16,sWS,f"s{sT2}",f"s{sT3}")
    a(f"""
    s_sub_u32 s{sT2}, s{sW}, 13
    s_mul_i32 s{sT2}, s{sT2}, 3072
    s_add_u32 m0, s{sT2}, {W2L}
    s_add_u32 s{sT2}, s{sT2}, {64*128}
    v_lshlrev_b32 v4, 4, v2
    """)
    for i in range(3): a(f"buffer_load_dwordx4 v4, s[{rWE}:{rWE+3}], s{sT2} offen offset:{1024*i} lds")
    a(f"""
    s_sub_u32 s{sT2}, 15, s{sW}
    s_lshl_b32 s{sT2}, s{sT2}, 12
    v_and_b32 v5, 31, v2
    v_lshrrev_b32 v6, 5, v2
    v_lshlrev_b32 v7, 7, v5
    v_lshl_add_u32 v7, v6, 4, v7
    v_add_u32 v7, s{sT2}, v7
    s_mov_b32 s{sL}, {LOG2E_NEG:#x}
    s_mov_b32 s{sL+1}, {LOG2E_NEG:#x}
    """)
    for s in range(4): a(f"buffer_load_dwordx4 v[{HB+4*s}:{HB+4*s+3}], v7, s[{rH}:{rH+3}], 0 offen offset:{32*s}")
    a(f"""
    v_subrev_u32 v24, {13*64}, v0
    {"" if opt.get('k1_early',1) else "s_barrier"}
    s_cmp_eq_u32 s{sW}, 15
    s_cbranch_scc1 K1_PREP
    s_mul_i32 s{sT2}, s{sT1}, 6
    s_mul_i32 s{sT3}, s{sNN}, 6
    """)
    srd(a,rPOS,sPOSP,f"s{sT2}",f"s{sT3}")
    a(f"""
    v_mul_u32_u24 v25, 6, v24
    buffer_load_ushort v48, v25, s[{rPOS}:{rPOS+3}], 0 offen
    buffer_load_ushort v49, v25, s[{rPOS}:{rPOS+3}], 0 offen offset:2
    buffer_load_ushort v50, v25, s[{rPOS}:{rPOS+3}], 0 offen offset:4
    s_cmp_lg_u32 s{sW}, 13
    s_cbranch_scc1 K1_W7
    v_add_u32 v7, 4096, v7
    """)
    for s in range(4): a(f"buffer_load_dwordx4 v[{HB3+4*s}:{HB3+4*s+3}], v7, s[{rH}:{rH+3}], 0 offen offset:{32*s}")
    a(f"""
    s_waitcnt vmcnt(11)
    s_branch K1_G2
    K1_W7:
    s_waitcnt vmcnt(7)
    s_branch K1_G2
    K1_PREP:
    s_cmp_ge_u32 s2, 26
    s_cbranch_scc1 K1_PREP2
    """)
    a(f"""
    s_cmp_ge_u32 s2, 10
    s_cbranch_scc1 K1_PWH
    s_lshr_b32 s{sT2}, s2, 1
    s_lshl_b32 s{sT2}, s{sT2}, 4
    s_cmp_ge_u32 s2, 8
    s_cselect_b32 s{sT2}, 129, s{sT2}
    s_and_b32 s{sT3}, s2, 1
    s_lshl_b32 s{sT3}, s{sT3}, 6
    s_lshl_b32 s{sT2}, s{sT2}, 7
    s_add_u32 s{sT2}, s{sT2}, s{sT3}
    v_lshlrev_b32 v17, 10, v6
    v_lshl_add_u32 v17, v5, 1, v17
    v_add_u32 v17, s{sT2}, v17
    s_mov_b32 s{rX}, s{sWE}
    s_mov_b32 s{rX+1}, s{sWE+1}
    s_mov_b32 s{rX+2}, {145*128}
    s_branch K1_PLD
    K1_PWH:
    s_sub_u32 s{sT2}, s2, 10
    s_and_b32 s{sT3}, s{sT2}, 3
    s_lshr_b32 s{sT2}, s{sT2}, 2
    s_lshl_b32 s{sT2}, s{sT2}, 12
    s_lshl_b32 s{sT3}, s{sT3}, 1
    s_add_u32 s{sT2}, s{sT2}, s{sT3}
    v_lshrrev_b32 v17, 4, v2
    v_lshlrev_b32 v17, 10, v17
    v_and_b32 v18, 15, v2
    v_lshl_add_u32 v17, v18, 3, v17
    v_add_u32 v17, s{sT2}, v17
    s_mov_b32 s{rX}, s{sWH}
    s_mov_b32 s{rX+1}, s{sWH+1}
    s_mov_b32 s{rX+2}, {128*128}
    K1_PLD:
    s_mov_b32 s{rX+3}, 0x20000
    """)
    for j in range(8): a(f"buffer_load_ushort v{48+j}, v17, s[{rX}:{rX+3}], 0 offen offset:{128*j}")
    a(f"""
    s_waitcnt vmcnt(12)
    s_branch K1_G2
    K1_PREP2:
    s_cmp_lg_u32 s2, 26
    s_cbranch_scc1 K1_W4
    """)
    srd(a,rX,sWX,None,128)
    a(f"""
    v_lshlrev_b32 v17, 1, v2
    v_add_u32 v17, {128*128}, v17
    buffer_load_ushort v48, v17, s[{rWE}:{rWE+3}], 0 offen
    v_and_b32 v18, 3, v2
    v_bfe_u32 v19, v2, 2, 2
    v_lshl_add_u32 v18, v19, 3, v18
    v_lshl_add_u32 v18, v6, 2, v18
    v_bfe_u32 v19, v2, 4, 1
    v_lshl_add_u32 v18, v19, 5, v18
    v_lshlrev_b32 v18, 1, v18
    buffer_load_ushort v49, v18, s[{rX}:{rX+3}], 0 offen
    K1_W4:
    s_waitcnt vmcnt(4)
    K1_G2:
    """)
    a(f"""
    v_bfe_u32 v26, v2, 2, 2
    v_lshl_add_u32 v26, v6, 3, v26
    v_lshlrev_b32 v26, 7, v26
    v_and_b32 v27, 1, v2
    v_lshl_add_u32 v26, v27, 5, v26
    v_bfe_u32 v27, v2, 4, 1
    v_lshl_add_u32 v26, v27, 4, v26
    v_bfe_u32 v27, v2, 1, 1
    v_lshl_add_u32 v26, v27, 3, v26
    s_sub_u32 s{sT2}, s{sW}, 13
    s_lshl_b32 s{sT2}, s{sT2}, 12
    v_lshl_add_u32 v28, v5, 7, s{sT2}
    v_and_b32 v27, 7, v5
    v_lshlrev_b32 v29, 1, v6
    v_xor_b32 v29, v29, v27
    v_lshl_add_u32 v28, v29, 4, v28
    v_lshl_add_u32 v30, v2, 4, s{sT2}
    v_lshrrev_b32 v31, 3, v2
    v_lshlrev_b32 v31, 4, v31
    v_lshlrev_b32 v27, 4, v2
    v_xor_b32 v31, v31, v27
    s_mov_b32 s{sT3}, {SLW}
    """)
    EARLY=opt.get('k1_early',1)
    if EARLY:
        a("s_barrier")
        stamp(a,opt,1)
    else:
        slot_out_prep(56)
        stamp(a,opt,1)
        a("s_barrier")
        stamp(a,opt,2)
        slot_out("",56)
    for p in range(2):
        for s in range(4):
            for jj in range(2):
                a(f"ds_read_b64_tr_b16 v[{WA+16*p+4*s+2*jj}:{WA+16*p+4*s+2*jj+1}], v26 offset:{W2L+s*2048+jj*512+64*p}")
    def gemm(hb,first):
        for p in range(2):
            if first: a(f"s_waitcnt lgkmcnt({8-8*p})"+((" vmcnt(0)" if EARLY else " vmcnt(1)") if p==0 else ""))
            for s in range(4):
                c = "0" if s==0 else vr(DD+16*p,16)
                a(f"v_mfma_f32_32x32x16_bf16 {vr(DD+16*p,16)}, {vr(WA+16*p+4*s,4)}, {vr(hb+4*s,4)}, {c}")
    def rows_out():
        for p in range(2):
            for i in range(8): a(f"v_pk_mul_f32 {vr(DD+16*p+2*i,2)}, {vr(DD+16*p+2*i,2)}, s[{sL}:{sL+1}]")
            for i in range(8): a(f"v_cvt_pk_bf16_f32 v{DD+16*p+i}, v{DD+16*p+2*i}, v{DD+16*p+2*i+1}")
            for i in range(2):
                if 4*p+i: a(f"v_xor_b32 v29, {16*(4*p+i)}, v28")
                a(f"ds_write_b128 v{29 if 4*p+i else 28}, {vr(DD+16*p+4*i,4)} offset:{BOUT}")
        for i in range(4): a(f"ds_read_b128 {vr(DD+4*i,4)}, v30 offset:{BOUT+1024*i}")
        a(f"v_add_u32 v27, s{sT2}, v31")
        for i in range(4):
            a(f"s_waitcnt lgkmcnt({3-i})\nbuffer_store_dwordx4 {vr(DD+4*i,4)}, v27, s[{rBT}:{rBT+3}], 0 offen offset:{1024*i} {ST}")
    gemm(HB,True)
    a(f"""
    s_cmp_eq_u32 s{sW}, 15
    s_cbranch_scc1 K1_SIDE_PREP
    v_lshlrev_b32 v24, 4, v24
    v_lshlrev_b32 v48, 16, v48
    v_lshlrev_b32 v49, 16, v49
    v_lshlrev_b32 v50, 16, v50
    v_mov_b32 v51, 0
    buffer_store_dwordx4 v[48:51], v24, s[{rP16}:{rP16+3}], 0 offen {ST}
    s_branch K1_SIDE_DONE
    K1_SIDE_PREP:
    s_cmp_gt_u32 s2, 26
    s_cbranch_scc1 K1_SIDE_DONE
    """)
    srd(a,rY,sWS,f"{WS_WT:#x}",WT_SIZE)
    a(f"""
    s_cmp_eq_u32 s2, 26
    s_cbranch_scc1 K1_SIDE_WD
    s_lshr_b32 s{sT2}, s2, 1
    s_cmp_eq_u32 s{sT2}, 4
    s_cbranch_scc1 K1_SIDE_W3
    """)
    for i in range(4): a(f"v_lshl_or_b32 v{56+i}, v{49+2*i}, 16, v{48+2*i}")
    a("s_branch K1_SIDE_ST\nK1_SIDE_W3:")
    for j in range(8): a(f"v_lshlrev_b32 v{48+j}, 16, v{48+j}\nv_mul_f32 v{48+j}, s{sL}, v{48+j}")
    for i in range(4): a(f"v_cvt_pk_bf16_f32 v{56+i}, v{48+2*i}, v{49+2*i}")
    a(f"""
    K1_SIDE_ST:
    s_lshl_b32 s{sT2}, s2, 10
    v_lshl_add_u32 v16, v2, 4, s{sT2}
    buffer_store_dwordx4 v[56:59], v16, s[{rY}:{rY+3}], 0 offen {ST}
    s_branch K1_SIDE_DONE
    K1_SIDE_WD:
    v_lshlrev_b32 v48, 16, v48
    v_mul_f32 v48, s{sL}, v48
    v_cvt_pk_bf16_f32 v50, v48, v48
    v_and_b32 v51, 0xffff0000, v50
    v_sub_f32 v51, v48, v51
    v_cvt_pk_bf16_f32 v50, v48, v51
    v_lshlrev_b32 v49, 16, v49
    v_mul_f32 v49, {LN2_NEG:#x}, v49
    v_lshlrev_b32 v16, 2, v2
    v_add_u32 v16, {WT_WDT}, v16
    buffer_store_dword v50, v16, s[{rY}:{rY+3}], 0 offen {ST}
    buffer_store_dword v49, v16, s[{rY}:{rY+3}], 0 offen offset:{WT_WXT-WT_WDT} {ST}
    K1_SIDE_DONE:
    s_sub_u32 s{sT2}, 15, s{sW}
    s_lshl_b32 s{sT2}, s{sT2}, 12
    """)
    rows_out()
    if EARLY:
        a(f"s_cmp_lg_u32 s{sW}, 13\ns_cbranch_scc1 K1_G3")
        gemm(HB3,False)
        a(f"K1_G3:\ns_mov_b32 s{sT3}, {SLW}")
        slot_out_prep(56)
        a("s_barrier")
        stamp(a,opt,2)
        slot_out("",56,24)
        a(f"s_cmp_lg_u32 s{sW}, 13\ns_cbranch_scc1 K1_FIN\ns_mov_b32 s{sT2}, {3*4096}")
    else:
        a(f"s_cmp_lg_u32 s{sW}, 13\ns_cbranch_scc1 K1_FIN\ns_mov_b32 s{sT2}, {3*4096}")
        gemm(HB3,False)
    rows_out()
    a("K1_FIN:")
    stamp(a,opt,5)
    if opt.get('stamp'): a("s_waitcnt vmcnt(0)")
    stamp(a,opt,6)
    stamp(a,opt,7)
    stamp_out(a,opt,0,sWS,sW,32,40)
    a(f"""
    K1_END:
    s_endpgm
    """)
    return a
```

```python
from asmlib import *
from cfg import *
from k1 import srd, wave_scan, stamp, stamp_out, STREG

CNT=0; BASE=1024; MAXC=2048; KEYS=2112; WDL=2304; WXL=2560; OHT=2944; PDT=3072; W3L=4864
LCAP=3712; L0=6912; L1=L0+4*LCAP; SX=L1+4*LCAP; BST=SX+32768; BSTW=4352
WHL=BST+16*BSTW; W1L=WHL+16384; K2_LDS=W1L+8192
assert L0%256==0 and L1%256==0 and K2_LDS<=163840 and L1//256<256
D1=0; D2=32; W3=64; AG=72; ID=80; EE=88; T0=96; T1=100; EA=104; OH=108; PS=112; TMP=115
cDMA=116; aTR=117; aSXR=118; aSXW=119; cPD=120; cHH=121; W0E=122; SXA=123; aL4=124; aLE=125; aEA=126; TID=127
sH,sEAP,sOUT,sWS=4,6,8,10
rTAB,rREC,rBT,rEA,rP16,rH,rWT,rOUT,rOUTP=12,16,20,24,28,32,36,40,44
sW,sLayer,sBlo,sBhi,sMaxc,sNT,sT0,sT1,sT2,sT3=48,51,52,53,54,55,56,57,58,59
sNode0,sCnt=58,59
rSLOT=92; sCH=96; sG=0; sGs=49; sPad=50
sM0=60; sHI=64; sONE=66; sMASK=68; sFirst=69; sK=70; sQ3=72; sTot=74; sGb=75; sV=76

def mf(d,a_,b,c=None):
    return f"v_mfma_f32_32x32x16_bf16 {vr(d,16)}, {vr(a_,4)}, {vr(b,4)}, {'0' if c is None else vr(c,16)}"
XNS=0
def exp4(p,b,h):
    if XNS: return f"v_mov_b32 v{EE+4*h}, v{D1+16*p+8*b+4*h}"
    return exp4_(p,b,h)
def rcp4(h):
    if XNS: return "s_nop 0"
    return rcp4_(h)
def exp4_(p,b,h): return "\n".join(f"v_exp_f32 v{EE+4*h+i}, v{D1+16*p+8*b+4*h+i}" for i in range(4))
def rcp4_(h): return "\n".join(f"v_rcp_f32 v{EE+4*h+i}, v{EE+4*h+i}" for i in range(4))
def padd(): return "\n".join(f"v_pk_add_f32 {vr(EE+2*i,2)}, {vr(EE+2*i,2)}, s[{sONE}:{sONE+1}]" for i in range(4))
def pmulcvt(p,b):
    y=D1+16*p+8*b
    return "\n".join([f"v_pk_mul_f32 {vr(EE+2*i,2)}, {vr(y+2*i,2)}, {vr(EE+2*i,2)}" for i in range(4)]+
                     [f"v_cvt_pk_bf16_f32 v{y+i}, v{EE+2*i}, v{EE+2*i+1}" for i in range(4)])
def bst_reads(p):
    return "\n".join(f"ds_read_b64_tr_b16 {vr((T0,T1)[s]+2*jj,2)}, v{aTR} offset:{s*2176+jj*256+64*p}" for s in range(2) for jj in range(2))
def sx_reads(n=2):
    return "\n".join(f"ds_read_b64_tr_b16 {vr((T0,T1)[s]+2*jj,2)}, v{aSXR} offset:{s*1024+jj*512}" for s in range(n) for jj in range(2))
def idx_reads():
    return f"ds_read_b128 {vr(OH,4)}, v{aL4}\nds_read_b32 v{W0E}, v{aLE}\nds_read_b32 v{aEA}, v{aLE} offset:{L1-L0}"
def issue_loads(opt):
    EP=opt.get('ea_pol','')
    s="\n".join(f"v_and_or_b32 v{OH+i}, v{OH+i}, {'0' if opt.get('x_nob') else 's%d'%sMASK}, v{cDMA}" for i in range(4))
    if opt.get('x_noea'): s+=f"\nv_mov_b32 v{aEA}, v{cHH}"
    else: s+=f"\nv_add_u32 v{aEA}, v{aEA}, v{cHH}"
    s+=f"\nv_and_b32 v{TMP}, {'0' if opt.get('x_nopos') else 's%d'%sMASK}, v{W0E}\nv_lshrrev_b32 v{TMP}, 3, v{TMP}\n"
    for i in range(4):
        s+=f"s_mov_b32 m0, s{sM0+i}\n"
        if i==0: s+=f"v_and_b32 v{W0E}, 7, v{W0E}\n"
        s+=f"buffer_load_dwordx4 v{OH+i}, s[{rBT}:{rBT+3}], 0 offen lds\n"
    s+=f"s_mov_b64 exec, s[{sHI}:{sHI+1}]\nbuffer_load_dwordx3 {vr(PS,3)}, v{TMP}, s[{rP16}:{rP16+3}], 0 offen\ns_mov_b64 exec, -1\n"
    s+=f"buffer_load_dwordx4 {vr(EA,4)}, v{aEA}, s[{rEA}:{rEA+3}], 0 offen {EP}\n"
    return s
def oh_read():
    return f"v_lshl_add_u32 v{TMP}, v{W0E}, 4, v{cPD}\nds_read_b128 {vr(OH,4)}, v{TMP}\nv_add_u32 v{aL4}, 128, v{aL4}\nv_add_u32 v{aLE}, 128, v{aLE}"
def edge():
    return f"""s_mov_b64 exec, s[{sHI}:{sHI+1}]
    v_sub_f32 v{OH}, v{OH}, v{PS}
    v_sub_f32 v{OH+1}, v{OH+1}, v{PS+1}
    v_sub_f32 v{OH+2}, v{OH+2}, v{PS+2}
    v_mul_f32 v{PS}, v{OH}, v{OH}
    v_fmac_f32 v{PS}, v{OH+1}, v{OH+1}
    v_fmac_f32 v{PS}, v{OH+2}, v{OH+2}
    v_cvt_pk_bf16_f32 v{OH}, 1.0, v{OH}
    v_cvt_pk_bf16_f32 v{OH+1}, v{OH+1}, v{OH+2}
    v_cvt_pk_bf16_f32 v{OH+2}, v{PS}, v{PS}
    s_mov_b64 exec, -1"""
def sx_zero(): return f"ds_write2_b32 v{SXA}, v{OH+3}, v{OH+3} offset0:0 offset1:1"
def g2(p,s): return mf(D2+16*p, D1+16*p+8*s, (T0,T1)[s], D2+16*p)

def fin_loads():
    return f"""v_mbcnt_lo_u32_b32 v{aL4}, -1, 0
    v_mbcnt_hi_u32_b32 v{aL4}, -1, v{aL4}
    v_bfe_u32 v{aLE}, v{aL4}, 2, 2
    v_and_b32 v{aEA}, 1, v{aL4}
    v_lshl_add_u32 v{aLE}, v{aLE}, 1, v{aEA}
    v_lshrrev_b32 v{aEA}, 4, v{aL4}
    v_lshlrev_b32 v{PS}, 4, v{aEA}
    v_lshl_add_u32 v{PS}, v{aLE}, 7, v{PS}
    v_and_b32 v{aL4}, 15, v{aL4}
    v_lshlrev_b32 v{aL4}, 3, v{aL4}
    v_lshl_add_u32 v{aL4}, v{aEA}, 8, v{aL4}
    buffer_load_dwordx4 {vr(EA,4)}, v{PS}, s[{rH}:{rH+3}], 0 offen
    buffer_load_dwordx4 {vr(PS,4)}, v{PS}, s[{rH}:{rH+3}], 0 offen offset:64
    buffer_load_dwordx2 {vr(aEA,2)}, v{aL4}, s[{rH}:{rH+3}], 0 offen offset:128
    buffer_load_dwordx2 {vr(aL4,2)}, v{aL4}, s[{rH}:{rH+3}], 0 offen"""

def phaseX(a,opt,last,half=False):
    d=D1+16
    a("s_waitcnt lgkmcnt(2)"); a(g2(1,0)); a(exp4(0,0,0))
    a("s_waitcnt lgkmcnt(0)"); a(g2(1,1)); a(exp4(0,0,1))
    a(f"s_mov_b64 exec, s[{sHI}:{sHI+1}]"); a(sx_zero())
    a(f"v_lshl_add_u32 v{SXA}, v{W0E}, 3, v{aSXW}\nds_write_b64 v{SXA}, {vr(OH,2)}\ns_mov_b64 exec, -1")
    a(bst_reads(1)); a(padd())
    a(mf(d,OH,AG+4)); a(rcp4(0)); a(mf(d,EA,W3+4,d))
    if not last: a(idx_reads())
    a(rcp4(1))
    if half:
        a(pmulcvt(0,0))
        a("s_waitcnt lgkmcnt(2)"); a(mf(d,ID,T0,d)); a(fin_loads())
        a("s_waitcnt lgkmcnt(0)"); a(mf(d,ID+4,T1,d))
        a(sx_reads(1))
        return
    a(pmulcvt(0,0))
    a(f"s_waitcnt lgkmcnt({2 if last else 5})"); a(mf(d,ID,T0,d)); a(exp4(0,1,0))
    a(f"s_waitcnt lgkmcnt({0 if last else 3})"); a(mf(d,ID+4,T1,d)); a(exp4(0,1,1))
    if not last:
        a("s_waitcnt lgkmcnt(0)"); a(issue_loads(opt))
    else: a(fin_loads())
    a(padd()); a(rcp4(0))
    if not last: a(oh_read())
    a(sx_reads())
    a(rcp4(1)); a(pmulcvt(0,1))

def phaseY(a,opt,last,half=False):
    d=D1
    SPF=opt.get('spf',0); BPF=opt.get('bpf',0)
    if half:
        a("s_waitcnt lgkmcnt(0)"); a(g2(0,0)); a(exp4(1,0,0)); a(exp4(1,0,1))
        a(padd()); a(rcp4(0)); a(rcp4(1)); a(pmulcvt(1,0))
        a(g2(1,0))
        return
    a("s_waitcnt lgkmcnt(2)"); a(g2(0,0)); a(exp4(1,0,0))
    a("s_waitcnt lgkmcnt(0)"); a(g2(0,1)); a(exp4(1,0,1))
    if not last:
        if SPF: a(f"ds_read_b32 v{TID}, v{aLE} offset:{L1-L0}")
        a("s_waitcnt vmcnt(1)"); a(bst_reads(0)); a(edge())
    a(padd())
    if not last: a("s_waitcnt lgkmcnt(2)"); a(mf(d,ID,T0))
    a(rcp4(0))
    if not last: a("s_waitcnt lgkmcnt(0)"); a(mf(d,ID+4,T1,d))
    if SPF and not last:
        a(f"s_cmp_le_u32 s{sNT}, 2\ns_cbranch_scc1 K2_NOSPF")
        for i in range(SPF): a(f"v_readlane_b32 s{sV+i}, v{TID}, {i}")
        for i in range(SPF): a(f"s_buffer_load_dword s{sTot}, s[{rEA}:{rEA+3}], s{sV+i}")
        a("K2_NOSPF:")
    if BPF and not last:
        for i in range(BPF): a(f"s_buffer_load_dword s{sTot}, s[{rBT}:{rBT+3}], s{sGb} offset:{(i%4)*128+(i//4)*262144}")
        a(f"s_add_u32 s{sGb}, s{sGb}, {(BPF//4)*262144}")
    a(rcp4(1)); a(pmulcvt(1,0))
    if last: a(g2(1,0))
    else: a(mf(d,OH,AG,d))
    a(exp4(1,1,0))
    if not last: a("s_waitcnt vmcnt(0)"); a(mf(d,EA,W3,d))
    a(exp4(1,1,1))
    if not last: a(sx_reads())
    a(padd()); a(rcp4(0)); a(rcp4(1)); a(pmulcvt(1,1))
    if last: a(g2(1,1))

def xfilter(a,n0,opt):
    import re
    pats=opt.get('x_drop')
    if pats: a.l[n0:]=[l for l in a.l[n0:] if not re.search(pats,l)]
def slot_loads(a):
    a(f"""
    v_lshlrev_b32 v91, 4, v{TID}
    buffer_load_dwordx4 v[0:3], v91, s[{rSLOT}:{rSLOT+3}], 0 offen
    v_and_b32 v93, 3, v{TID}
    v_lshrrev_b32 v90, 2, v{TID}
    """)
def ov_prep(a):
    a(f"""
    v_lshrrev_b32 v91, 4, v90
    v_subrev_u32 v91, s2, v91
    v_and_b32 v90, 15, v90
    v_bfe_u32 v94, v91, 1, 3
    v_lshl_add_u32 v90, v90, 3, v94
    v_and_b32 v91, 1, v91
    v_lshl_add_u32 v90, v91, 7, v90
    s_lshl_b32 s{sT0}, s{sLayer}, 5
    v_lshl_add_u32 v91, v93, 1, s{sT0}
    v_mul_u32_u24 v94, {CH}, v90
    v_add_u32 v90, v94, v91
    v_lshlrev_b32 v93, 2, v93
    s_cmp_ge_u32 s{sW}, s{sBlo}
    s_cselect_b32 s{sT0}, -1, 0
    s_cmp_lt_u32 s{sW}, s{sBhi}
    s_cselect_b32 s{sT0}, s{sT0}, 0
    """)
RW=[(0,4),(1,5),(2,6),(3,7),(8,9),(10,11),(12,13),(14,15)]
def ov_loads(a,deep):
    global OVN
    OVN+=1
    a(f"""
    v_and_b32 v92, 0xffff, v88
    v_lshrrev_b32 v88, 16, v88
    v_sub_u32 v91, v92, v91
    v_add_lshl_u32 v88, v88, v90, 3
    v_and_b32 v91, s{sT0}, v91
    """)
    for j in range(2,4):
        a(f"v_cmp_lt_i32 s[{sV+4*j}:{sV+4*j+1}], {8*j}, v91\nv_cmp_lt_i32 s[{sV+4*j+2}:{sV+4*j+3}], {8*j+1}, v91")
    if deep:
        for j in range(2):
            a(f"v_cmp_lt_i32 s[{sV+4*j}:{sV+4*j+1}], {8*j}, v91\nv_cmp_lt_i32 s[{sV+4*j+2}:{sV+4*j+3}], {8*j+1}, v91")
        for j in range(2):
            a(f"s_mov_b64 exec, s[{sV+4*j}:{sV+4*j+1}]\nbuffer_load_dwordx4 {vr(16+4*j,4)}, v88, s[{rREC}:{rREC+3}], 0 offen offset:{64*j}")
    for j in range(2,4):
        a(f"s_mov_b64 exec, s[{sV+4*j}:{sV+4*j+1}]\ns_cbranch_execz K2_OV{OVN}\nbuffer_load_dwordx4 {vr(4*j,4)}, v88, s[{rREC}:{rREC+3}], 0 offen offset:{64*j}")
    a(f"K2_OV{OVN}:\ns_mov_b64 exec, -1")
    if not deep:
        a(f"""
        v_sub_u32 v91, v92, v93
        v_and_b32 v91, s{sT0}, v91
        v_lshlrev_b32 v93, 1, v93
        v_lshrrev_b32 v89, v93, v89
        """)
        for k in range(4): a(f"v_cmp_lt_i32 s[{sV+2*k}:{sV+2*k+1}], {k}, v91")
def slot_w1(a):
    for k in range(4):
        a(f"""
        v_lshrrev_b32 v{4+k}, 26, v{k}
        v_bfe_u32 v90, v{k}, 3, 4
        v_lshl_or_b32 v{4+k}, v{4+k}, 4, v90
        v_bfe_u32 v90, v89, {2*k}, 2
        v_lshl_or_b32 v{4+k}, v90, 10, v{4+k}
        v_add_lshl_u32 v{4+k}, v{4+k}, v94, 5
        """)
OVN=0

def gen_k2(opt):
    global XNS
    XNS=opt.get('x_nosilu',0)
    STREG.update(regs=[97,98,99,100,101,3,1,6],tmp=4)
    BAL=opt.get('bal',1); HALF=opt.get('half',1)
    HA=32
    a=Asm()
    a(f"""
    s_cmp_ge_u32 s2, {NBK}
    s_cbranch_scc1 K2_END
    s_load_dwordx2 s[10:11], s[0:1], 80
    s_load_dwordx2 s[4:5], s[0:1], 0
    s_load_dwordx2 s[6:7], s[0:1], 16
    s_load_dwordx2 s[8:9], s[0:1], 64
    v_mov_b32 v{TID}, v0
    v_lshrrev_b32 v1, 6, v0
    v_and_b32 v2, 0x3fc, v0
    v_lshlrev_b32 v2, 1, v2
    v_readfirstlane_b32 s{sW}, v1
    s_lshl_b32 s{sT0}, s2, 11
    s_add_u32 s{sT0}, s{sT0}, {WS_TAB:#x}
    s_mov_b32 s{sLayer}, 0
    s_mov_b32 s{sBlo}, 0
    s_mov_b32 s{sBhi}, 16
    s_mov_b32 s{sFirst}, 1
    s_waitcnt lgkmcnt(0)
    """)
    stamp(a,opt,0)
    srd(a,rTAB,sWS,f"s{sT0}",2048)
    a(f"buffer_load_dwordx2 v[88:89], v2, s[{rTAB}:{rTAB+3}], 0 offen")
    a(f"s_lshl_b32 s{sT0}, s2, 14\ns_add_u32 s{sT0}, s{sT0}, {WS_SLOT:#x}")
    srd(a,rSLOT,sWS,f"s{sT0}",16384)
    a(f"v_lshlrev_b32 v16, 2, v0")
    slot_loads(a)
    srd(a,rREC,sWS,f"{WS_REC-128:#x}",NBK*CH*8+128)
    ov_prep(a)
    a(f"""
    v_mov_b32 v17, 0
    s_mov_b32 s{sT3}, s{sT0}
    s_cmp_gt_u32 s{sW}, 8
    s_cbranch_scc1 K2_NOZ
    ds_write_b32 v16, v17 offset:{CNT}
    K2_NOZ:
    s_mov_b32 s{sHI}, 0
    s_mov_b32 s{sHI+1}, -1
    s_mov_b32 s{sONE}, 1.0
    s_mov_b32 s{sONE+1}, 1.0
    s_mov_b32 s{sMASK}, 0x3fff80
    s_mov_b32 s{sQ3}, 0x88888888
    s_mov_b32 s{sQ3+1}, 0x88888888
    s_mul_i32 s{sM0}, s{sW}, {BSTW}
    s_add_u32 s{sM0}, s{sM0}, {BST}
    s_add_u32 s{sM0+1}, s{sM0}, 1088
    s_add_u32 s{sM0+2}, s{sM0}, 2176
    s_add_u32 s{sM0+3}, s{sM0}, 3264
    """)
    srd(a,rP16,sWS,f"{WS_P16:#x}",N*16)
    srd(a,rWT,sWS,f"{WS_WT:#x}",WT_SIZE)
    srd(a,rBT,sWS,f"{WS_BT:#x}",N*128)
    srd(a,rEA,sEAP,None,E*32)
    srd(a,rH,sH,None,0); srd(a,rOUT,sOUT,None,0); srd(a,rOUTP,sOUT,None,0)
    a(f"""
    v_and_b32 v18, 63, v{TID}
    v_and_b32 v{cDMA}, 7, v18
    v_lshlrev_b32 v{cDMA}, 4, v{cDMA}
    v_lshrrev_b32 v{cHH}, 5, v18
    v_lshlrev_b32 v{cHH}, 4, v{cHH}
    s_cmp_lg_u32 s{sW}, 13
    s_cbranch_scc1 K2_NOOH
    v_bfe_u32 v19, v18, 2, 1
    v_lshlrev_b32 v19, 4, v19
    v_mov_b32 v20, 0x3f80
    v_lshlrev_b32 v19, v19, v20
    v_bfe_u32 v20, v18, 3, 2
    v_and_b32 v21, 3, v18
    v_cmp_eq_u32 vcc, v20, v21
    v_mov_b32 v20, {LN2_NEG:#x}
    v_lshlrev_b32 v21, 2, v18
    v_cndmask_b32 v19, 0, v19, vcc
    s_mov_b32 exec_hi, 0
    ds_write_b32 v21, v19 offset:{OHT}
    ds_write_b32 v21, v20 offset:{WXL+256}
    s_mov_b64 exec, -1
    K2_NOOH:
    v_lshlrev_b32 v19, 4, v{TID}
    v_lshlrev_b32 v18, 4, v18
    s_mov_b32 s{sT0}, s{sT3}
    s_waitcnt lgkmcnt(0)
    s_barrier
    s_waitcnt vmcnt(1)
    """)
    stamp(a,opt,1)
    ov_loads(a,False)
    a(f"""
    s_lshl_b32 s{sT0}, s{sW}, 10
    s_add_u32 m0, s{sT0}, {WHL}
    s_mov_b32 s{sT1}, {WT_WHT}
    buffer_load_dwordx4 v19, s[{rWT}:{rWT+3}], s{sT1} offen lds
    s_cmp_ge_u32 s{sW}, 10
    s_cbranch_scc1 K2_DM1
    s_add_u32 s{sT1}, s{sT0}, {W1L}
    s_add_u32 s{sT2}, s{sT0}, {W3L-8192}
    s_cmp_ge_u32 s{sW}, 8
    s_cselect_b32 m0, s{sT2}, s{sT1}
    s_nop 0
    buffer_load_dwordx4 v19, s[{rWT}:{rWT+3}], 0 offen lds
    s_waitcnt vmcnt(2)
    s_branch K2_HAVE
    K2_DM1:
    s_cmp_ge_u32 s{sW}, 12
    s_cbranch_scc1 K2_DM2
    s_sub_u32 s{sT0}, s{sT0}, {10*1024}
    s_add_u32 m0, s{sT0}, {PDT}
    s_mul_i32 s{sT1}, s2, {NB*16}
    s_add_u32 s{sT1}, s{sT1}, s{sT0}
    v_add_u32 v18, s{sT1}, v18
    s_cmp_eq_u32 s{sW}, 11
    s_cselect_b32 exec_hi, 0xff, -1
    buffer_load_dwordx4 v18, s[{rP16}:{rP16+3}], 0 offen lds
    s_mov_b64 exec, -1
    s_waitcnt vmcnt(2)
    s_branch K2_HAVE
    K2_DM2:
    s_cmp_lg_u32 s{sW}, 12
    s_cbranch_scc1 K2_DM3
    s_mov_b32 m0, {WDL}
    s_mov_b32 s{sT1}, {WT_WDT}
    s_mov_b32 exec_hi, 0
    buffer_load_dwordx4 v18, s[{rWT}:{rWT+3}], s{sT1} offen lds
    s_mov_b64 exec, -1
    s_waitcnt vmcnt(2)
    s_branch K2_HAVE
    K2_DM3:
    s_waitcnt vmcnt(1)
    s_branch K2_HAVE
    K2_ROUND:
    s_waitcnt vmcnt(0)
    s_barrier
    v_mbcnt_lo_u32_b32 v2, -1, 0
    v_mbcnt_hi_u32_b32 v2, -1, v2
    s_lshl_b32 s{sT0}, s{sW}, 6
    v_add_u32 v{TID}, s{sT0}, v2
    v_and_b32 v2, 0x3fc, v{TID}
    v_lshlrev_b32 v2, 1, v2
    buffer_load_dwordx2 v[88:89], v2, s[{rTAB}:{rTAB+3}], 0 offen
    v_mov_b32 v17, 0
    v_lshlrev_b32 v16, 2, v{TID}
    s_cmp_ge_u32 s{sW}, 4
    s_cbranch_scc1 K2_NOZ2
    ds_write_b32 v16, v17 offset:{CNT}
    K2_NOZ2:
    """)
    slot_loads(a); ov_prep(a)
    a(f"""
    s_waitcnt vmcnt(0)
    s_cmp_eq_u32 s{sLayer}, 0
    s_cbranch_scc0 K2_DEEP
    """)
    ov_loads(a,False)
    a(f"""
    s_waitcnt lgkmcnt(0)
    s_barrier
    s_waitcnt vmcnt(0)
    s_branch K2_HAVE
    K2_DEEP:
    """)
    ov_loads(a,True)
    a(f"""
    s_waitcnt lgkmcnt(0)
    s_barrier
    s_waitcnt vmcnt(0)
    """)
    for k in range(4): a(f"v_mov_b32 v{k}, v{16+2*k}\nv_mov_b32 v{4+k}, v{17+2*k}")
    a(f"""
    K2_HAVE:
    """)
    stamp(a,opt,2)
    a(f"""
    v_cmp_lt_u32 vcc, 32, v92
    v_mov_b32 v93, {MAXC}
    v_mov_b32 v95, 1
    s_mov_b64 exec, vcc
    s_cbranch_execz K2_NOMAX
    ds_max_u32 v93, v92
    K2_NOMAX:
    """)
    for k in range(8):
        a(f"""
        s_mov_b64 exec, s[{sV+2*k}:{sV+2*k+1}]
        s_cbranch_execz {'K2_ATOM_MID' if k<4 else 'K2_ATOM_DONE'}
        v_lshrrev_b32 v{16+k}, 16, v{RW[k][0]}
        v_and_b32 v{16+k}, 0x3fc, v{16+k}
        ds_add_rtn_u32 v{24+k}, v{16+k}, v95 offset:{CNT}
        """)
        if k==3: a("K2_ATOM_MID:")
    a(f"""
    K2_ATOM_DONE:
    s_mov_b64 exec, -1
    s_cmp_lg_u32 s{sLayer}, 0
    s_cbranch_scc1 K2_NOW1R
    """)
    slot_w1(a)
    a(f"""
    K2_NOW1R:
    v_and_b32 v100, 63, v{TID}
    v_lshlrev_b32 v101, 4, v100
    """)
    EPF=opt.get('epf',0)
    if EPF:
        a(f"s_cmp_lg_u32 s{sFirst}, 1\ns_cbranch_scc1 K2_NOEPF")
        for k in range(4):
            a(f"""
            v_bfe_u32 v95, v{2*k}, 18, 4
            v_cmp_gt_u32 vcc, {EPF}, v95
            s_and_b64 exec, vcc, s[{sV+2*k}:{sV+2*k+1}]
            buffer_load_dword v{80+k}, v{2*k+1}, s[{rEA}:{rEA+3}], 0 offen
            s_mov_b64 exec, -1
            """)
        a("K2_NOEPF:")
    if opt.get('vpf'):
        nb=opt.get('vpf')
        a(f"""
        s_cmp_lg_u32 s{sFirst}, 1
        s_cbranch_scc1 K2_NOVPF
        s_lshr_b32 s{sT0}, s2, 3
        s_lshl_b32 s{sT0}, s{sT0}, 4
        s_add_u32 s{sT0}, s{sT0}, s{sW}
        s_lshl_b32 s{sT0}, s{sT0}, 9
        v_and_b32 v95, 3, v100
        v_lshrrev_b32 v96, 2, v100
        v_lshlrev_b32 v96, 18, v96
        v_lshl_add_u32 v95, v95, 7, v96
        v_add_u32 v95, s{sT0}, v95
        s_mov_b32 exec_hi, {((1<<(4*nb))-1)>>32:#x}
        s_mov_b32 exec_lo, {((1<<(4*nb))-1)&0xffffffff:#x}
        buffer_load_dword v84, v95, s[{rBT}:{rBT+3}], 0 offen
        s_mov_b64 exec, -1
        K2_NOVPF:
        """)
    stamp(a,opt,3,2)
    a(f"""
    s_waitcnt lgkmcnt(0)
    s_barrier
    """)
    stamp(a,opt,4,2)
    a(f"""
    ds_read_b128 v[88:91], v101 offset:{CNT}
    ds_read_b32 v102, v93
    s_waitcnt lgkmcnt(0)
    v_readfirstlane_b32 s{sMaxc}, v102
    v_add_u32 v89, v88, v89
    v_add_u32 v90, v89, v90
    v_add_u32 v91, v90, v91
    v_add_u32_dpp v92, v91, v91 quad_perm:[1,0,3,2] row_mask:0xf bank_mask:0xf
    v_lshrrev_b32 v102, 2, v100
    v_add_u32_dpp v92, v92, v92 quad_perm:[2,3,0,1] row_mask:0xf bank_mask:0xf
    """)
    if BAL:
        a(f"""
        v_lshl_add_u32 v104, v92, 4, v102
        v_and_b32 v105, 0x3c, v100
        v_and_b32 v106, 3, v100
        v_lshlrev_b32 v106, 4, v106
        ds_write_b32 v105, v104 offset:{KEYS}
        ds_read_b128 v[108:111], v106 offset:{KEYS}
        """)
    a(f"""
    v_sub_u32 v93, 0, v92
    v_and_b32 v93, 31, v93
    v_cndmask_b32 v93, 0, v93, s[{sQ3}:{sQ3+1}]
    v_add_u32 v94, v91, v93
    v_mov_b32 v103, v94
    """)
    wave_scan(a,103)
    a(f"""
    v_sub_u32 v96, v103, v94
    v_add_u32 v97, v96, v88
    v_add_u32 v98, v96, v89
    v_add_u32 v99, v96, v90
    ds_write_b128 v101, v[96:99] offset:{BASE}
    v_readlane_b32 s{sTot}, v103, 63
    s_cmp_le_u32 s{sTot}, {LCAP}
    s_cbranch_scc1 K2_FITS
    s_add_u32 s{sBhi}, s{sBlo}, 4
    s_waitcnt lgkmcnt(0)
    s_branch K2_ROUND
    K2_FITS:
    """)
    stamp(a,opt,5,2)
    for k in range(8):
        a(f"""
        s_mov_b64 exec, s[{sV+2*k}:{sV+2*k+1}]
        s_cbranch_execz {'K2_BR_MID' if k<4 else 'K2_BR_DONE'}
        ds_read_b32 v{16+k}, v{16+k} offset:{BASE}
        """)
        if k==3: a("K2_BR_MID:")
    a(f"""
    K2_BR_DONE:
    s_mov_b64 exec, -1
    s_cmp_eq_u32 s{sFirst}, 0
    s_cbranch_scc1 K2_NFG
    """)
    if BAL:
        a(f"""
        s_lshr_b32 s{sT0}, s{sW}, 2
        s_and_b32 s{sT1}, s{sT0}, 1
        s_mul_i32 s{sT1}, s{sT1}, 3
        s_xor_b32 s{sT0}, s{sW}, s{sT1}
        s_waitcnt lgkmcnt(0)
        v_cmp_gt_u32 vcc, v108, v104
        v_cmp_gt_u32 s[{sK}:{sK+1}], v109, v104
        v_addc_co_u32 v105, vcc, 0, 0, vcc
        v_addc_co_u32 v105, s[{sK}:{sK+1}], 0, v105, s[{sK}:{sK+1}]
        v_cmp_gt_u32 vcc, v110, v104
        v_cmp_gt_u32 s[{sK}:{sK+1}], v111, v104
        v_addc_co_u32 v105, vcc, 0, v105, vcc
        v_addc_co_u32 v105, s[{sK}:{sK+1}], 0, v105, s[{sK}:{sK+1}]
        v_add_u32_dpp v105, v105, v105 quad_perm:[1,0,3,2] row_mask:0xf bank_mask:0xf
        v_add_u32_dpp v105, v105, v105 quad_perm:[2,3,0,1] row_mask:0xf bank_mask:0xf
        v_cmp_eq_u32 vcc, s{sT0}, v105
        s_ff1_i32_b64 s{sG}, vcc
        s_lshr_b32 s{sG}, s{sG}, 2
        s_and_b32 s{sG}, s{sG}, 15
        """)
    else:
        a(f"""
        s_lshr_b32 s{sT1}, s{sW}, 3
        s_sub_u32 s{sT2}, s{sW}, s{sT1}
        s_and_b32 s{sT2}, s{sT2}, 7
        s_lshl_b32 s{sT1}, s{sT1}, 3
        s_add_u32 s{sG}, s{sT1}, s{sT2}
        """)
    a(f"""
    s_and_b32 s{sT1}, s{sG}, 7
    s_cmp_eq_u32 s{sT1}, 0
    s_cselect_b32 s{sCnt}, 7, 6
    s_mul_i32 s{sGs}, s{sG}, 49
    s_add_u32 s{sGs}, s{sGs}, 7
    s_lshr_b32 s{sGs}, s{sGs}, 3
    s_mul_i32 s{sNode0}, s2, {NB}
    s_add_u32 s{sNode0}, s{sNode0}, s{sGs}
    s_lshl_b32 s{sGs}, s{sGs}, 4
    s_add_u32 s{sGs}, s{sGs}, {PDT}
    s_sub_i32 s{sT1}, {N}, s{sNode0}
    s_max_i32 s{sT1}, s{sT1}, 0
    s_min_u32 s{sCnt}, s{sCnt}, s{sT1}
    s_min_u32 s{sNode0}, s{sNode0}, {N}
    s_lshl_b32 s{sT0}, s{sNode0}, 7
    s_lshl_b32 s{sT1}, s{sCnt}, 7
    """)
    srd(a,rH,sH,f"s{sT0}",f"s{sT1}")
    def ha_loads():
        a(f"""
        v_and_b32 v105, 3, v100
        v_bfe_u32 v106, v100, 3, 2
        v_lshl_add_u32 v105, v106, 2, v105
        v_lshl_add_u32 v105, v105, 7, v{cHH}
        s_mov_b32 exec_lo, 0xf0f
        s_mov_b32 exec_hi, 0xf0f
        """)
        for s_ in range(4): a(f"buffer_load_dwordx4 {vr(HA+4*s_,4)}, v105, s[{rH}:{rH+3}], 0 offen offset:{32*s_}")
        a("s_mov_b64 exec, -1")
    HLATE=opt.get('halate',0)
    if not HLATE: ha_loads()
    a(f"""
    s_mov_b64 exec, -1
    v_mov_b32 v{cPD}, {OHT}
    v_mov_b32 v105, s{sGs}
    v_cndmask_b32 v{cPD}, v{cPD}, v105, s[{sHI}:{sHI+1}]
    """)
    srd(a,rOUT,sOUT,f"s{sT0}",f"s{sT1}")
    a(f"s_mul_i32 s{sT0}, s{sNode0}, 6\ns_add_u32 s{sT0}, s{sT0}, {N*128}\ns_mul_i32 s{sT1}, s{sCnt}, 6")
    srd(a,rOUTP,sOUT,f"s{sT0}",f"s{sT1}")
    a(f"""
    K2_NFG:
    s_lshl_b32 s{sT0}, s{sG}, 2
    v_readlane_b32 s{sGb}, v96, s{sT0}
    v_readlane_b32 s{sNT}, v92, s{sT0}
    v_mov_b32 v102, 7
    v_mov_b32 v103, 0
    s_add_u32 s{sT1}, s{sGb}, s{sNT}
    s_sub_u32 s{sPad}, 0, s{sNT}
    s_and_b32 s{sPad}, s{sPad}, 31
    v_add_lshl_u32 v101, s{sT1}, v100, 2
    v_cmp_gt_u32 vcc, s{sPad}, v100
    s_mov_b64 exec, vcc
    ds_write2st64_b32 v101, v102, v103 offset0:{L0//256} offset1:{L1//256}
    s_waitcnt lgkmcnt(1)
    """)
    for k in range(8):
        a(f"""
        s_mov_b64 exec, s[{sV+2*k}:{sV+2*k+1}]
        s_cbranch_execz {'K2_LW_MID' if k<4 else 'K2_LW_DONE'}
        v_add_lshl_u32 v{16+k}, v{16+k}, v{24+k}, 2
        ds_write2st64_b32 v{16+k}, v{RW[k][0]}, v{RW[k][1]} offset0:{L0//256} offset1:{L1//256}
        """)
        if k==3: a("K2_LW_MID:")
    a(f"""
    K2_LW_DONE:
    s_mov_b64 exec, -1
    """)
    stamp(a,opt,6,2)
    a(f"""
    s_lshl_b32 s{sT0}, s{sGb}, 2
    s_add_u32 s{sT0}, s{sT0}, {L0}
    v_lshrrev_b32 v101, 3, v100
    v_lshl_add_u32 v{aL4}, v101, 4, s{sT0}
    v_and_b32 v101, 31, v100
    v_lshl_add_u32 v{aLE}, v101, 2, s{sT0}
    s_add_u32 s{sNT}, s{sNT}, 31
    s_lshr_b32 s{sNT}, s{sNT}, 5
    s_waitcnt vmcnt({(0 if HLATE else 4)+(4 if EPF else 0)+(1 if opt.get('vpf') else 0)}) lgkmcnt(0)
    s_barrier
    """)
    stamp(a,opt,3,1)
    stamp(a,opt,7,2)
    if opt.get('prio'): a('s_setprio 3')
    if opt.get('bpf'):
        a(f"""
        s_lshr_b32 s{sGb}, s2, 3
        s_lshl_b32 s{sGb}, s{sGb}, 4
        s_add_u32 s{sGb}, s{sGb}, s{sW}
        s_lshl_b32 s{sGb}, s{sGb}, 9
        s_add_u32 s{sGb}, s{sGb}, {opt.get('bpf0',3)*262144}
        """)
    a(idx_reads())
    if HLATE:
        a(f"s_cmp_eq_u32 s{sFirst}, 0\ns_cbranch_scc1 K2_NOHL")
        ha_loads()
        a("K2_NOHL:")
    a("s_waitcnt lgkmcnt(0)")
    a(issue_loads(opt)); a(oh_read())
    a(f"""
    s_cmp_eq_u32 s{sFirst}, 0
    s_cbranch_scc1 K2_NF2
    s_mov_b32 s{sFirst}, 0
    v_lshlrev_b32 v18, 4, v100
    v_add_u32 v48, {W1L}, v18
    v_lshlrev_b32 v19, 2, v101
    ds_read_b128 {vr(W3,4)}, v18 offset:{W3L}
    ds_read_b128 {vr(W3+4,4)}, v18 offset:{W3L+1024}
    ds_read_b32 v{AG+2}, v19 offset:{WDL}
    ds_read_b32 v{AG+6}, v19 offset:{WDL+128}
    """)
    a(f"""
    v_mov_b32 v16, v100
    v_mov_b32 v20, v101
    v_lshrrev_b32 v21, 5, v16
    v_and_b32 v24, 3, v16
    v_pk_mov_b32 v[28:29], 0, 0
    v_pk_mov_b32 v[30:31], 0, 0
    s_lshl_b32 s{sT0}, s{sW}, 11
    s_add_u32 s{sT0}, s{sT0}, {SX}
    v_add_u32 v18, s{sT0}, v18
    ds_write_b128 v18, v[28:31]
    ds_write_b128 v18, v[28:31] offset:1024
    """)
    WB=(88,92,96,100,52,56,60,88)
    for i in range(7): a(f"ds_read_b128 {vr(WB[i],4)}, v48 offset:{1024*i}")
    cons=f"""v_bfe_u32 v22, v16, 4, 1
    v_bfe_u32 v23, v16, 2, 2
    v_lshl_add_u32 v{aSXW}, v20, 6, s{sT0}
    v_lshl_add_u32 v25, v21, 2, v23
    v_lshl_add_u32 v{aSXR}, v25, 6, s{sT0}
    v_lshl_add_u32 v25, v22, 2, v24
    v_lshl_add_u32 v{aSXR}, v25, 3, v{aSXR}
    v_lshrrev_b32 v25, 1, v23
    v_mul_u32_u24 v{aTR}, 1088, v25
    v_and_b32 v25, 1, v23
    v_lshl_add_u32 v25, v21, 2, v25
    v_lshl_add_u32 v{aTR}, v25, 7, v{aTR}
    v_lshl_add_u32 v{aTR}, v22, 5, v{aTR}
    v_lshl_add_u32 v{aTR}, v24, 3, v{aTR}
    v_add_u32 v{aTR}, s{sM0}, v{aTR}
    v_bfe_u32 v25, v20, 1, 1
    v_bfe_u32 v26, v20, 3, 1
    v_lshl_add_u32 v25, v25, 1, v26
    v_and_b32 v26, 1, v20
    v_lshl_add_u32 v49, v25, 1, v26
    v_xor_b32 v26, v21, v22
    v_lshl_add_u32 v49, v26, 3, v49
    v_bfe_u32 v26, v20, 2, 1
    v_lshlrev_b32 v26, 4, v26
    v_mov_b32 v27, 0x3f80
    v_lshlrev_b32 v50, v26, v27"""
    a(cons)
    idl=[]
    for i in range(0,8,2):
        idl.append(f"v_cmp_eq_u32 vcc, {i}, v49\nv_cmp_eq_u32 s[{sK}:{sK+1}], {i+1}, v49\ns_nop 0\nv_cndmask_b32 v{ID+i}, 0, v50, vcc\nv_cndmask_b32 v{ID+i+1}, 0, v50, s[{sK}:{sK+1}]")
    a("s_waitcnt vmcnt(6)")
    for i in range(8):
        s_,p=i//2,i%2
        a(f"s_waitcnt lgkmcnt({(6,6,5,4,3,2,1,0)[i]})")
        a(mf(D1+16*p, HA+4*s_, WB[i], None if s_==0 else D1+16*p))
        if i==0: a(f"ds_read_b128 {vr(WB[7],4)}, v48 offset:{1024*7}")
        if 1<=i<=4: a(idl[i-1])
    a(f"s_mov_b32 s{sK}, {LOG2E_NEG:#x}\ns_mov_b32 s{sK+1}, {LOG2E_NEG:#x}")
    a(f"s_mov_b64 exec, s[{sHI}:{sHI+1}]")
    for p in range(2):
        for i in (0,1,3): a(f"v_mov_b32 v{AG+4*p+i}, 0")
    a("s_mov_b64 exec, -1")
    a("v_pk_mov_b32 v[88:89], 0, 0\nv_pk_mov_b32 v[90:91], 0, 0")
    a(mf(D2,88,88)); a(mf(D2+16,88,88))
    a("s_mov_b32 exec_hi, 0")
    for p in range(2):
        for i in range(4): a(f"v_pk_mul_f32 {vr(D1+16*p+2*i,2)}, {vr(D1+16*p+2*i,2)}, s[{sK}:{sK+1}]")
    for p in range(2):
        for i in range(4): a(f"v_cvt_pk_bf16_f32 v{AG+4*p+i}, v{D1+16*p+2*i}, v{D1+16*p+2*i+1}")
    a("s_mov_b64 exec, -1\nK2_NF2:")
    a(f"v_mov_b32 v{SXA}, v{aSXW}")
    for i in (0,2,8,10): a(f"v_pk_mov_b32 {vr(D1+16+i,2)}, 0, 0")
    a(f"""
    s_cmp_eq_u32 s{sNT}, 0
    s_cbranch_scc1 K2_EMPTY
    s_waitcnt vmcnt(1)
    """)
    stamp(a,opt,4,1)
    a(bst_reads(0)); a("s_waitcnt lgkmcnt(4)"); a(edge())
    a("s_waitcnt lgkmcnt(2)"); a(mf(D1,ID,T0)); a("s_waitcnt lgkmcnt(0)"); a(mf(D1,ID+4,T1,D1)); a(mf(D1,OH,AG,D1)); a("s_waitcnt vmcnt(0)"); a(mf(D1,EA,W3,D1))
    a(sx_reads())
    a(f"""
    s_nop 3
    s_cmp_eq_u32 s{sNT}, 1
    s_cbranch_scc1 K2_LAST
    .p2align 3
    K2_TILE:
    """)
    n0=len(a.l)
    phaseX(a,opt,False); phaseY(a,opt,False)
    xfilter(a,n0,opt)
    a(f"s_sub_u32 s{sNT}, s{sNT}, 1")
    if opt.get('prio'):
        th=opt.get('prio_th',[5,3,1])
        for i,t in enumerate(th):
            a(f"s_cmp_eq_u32 s{sNT}, {t}\ns_cbranch_scc0 K2_P{i}\ns_setprio {2-i}\nK2_P{i}:")
    a(f"""
    s_cmp_lg_u32 s{sNT}, 1
    s_cbranch_scc1 K2_TILE
    K2_LAST:
    """)
    if HALF:
        a(f"s_cmp_ge_u32 s{sPad}, 16\ns_cbranch_scc1 K2_LASTH")
    n0=len(a.l)
    phaseX(a,opt,True); phaseY(a,opt,True)
    xfilter(a,n0,opt)
    if HALF:
        a("s_branch K2_TAIL\nK2_LASTH:")
        n0=len(a.l)
        phaseX(a,opt,True,True); phaseY(a,opt,True,True)
        xfilter(a,n0,opt)
    a(f"K2_TAIL:\ns_mov_b64 exec, s[{sHI}:{sHI+1}]"); a(sx_zero()); a("s_mov_b64 exec, -1")
    a("s_branch K2_RND_END\nK2_EMPTY:\ns_waitcnt vmcnt(0) lgkmcnt(0)")
    a(fin_loads())
    a(f"""
    K2_RND_END:
    s_waitcnt lgkmcnt(0)
    s_cmp_ge_u32 s{sBhi}, 16
    s_cbranch_scc1 K2_NEXTLAYER
    s_mov_b32 s{sBlo}, s{sBhi}
    s_add_u32 s{sBhi}, s{sBhi}, 4
    s_branch K2_ROUND
    K2_NEXTLAYER:
    s_add_u32 s{sLayer}, s{sLayer}, 1
    s_mov_b32 s{sBlo}, 0
    s_lshl_b32 s{sT0}, s{sLayer}, 5
    s_cmp_lt_u32 s{sT0}, s{sMaxc}
    s_cbranch_scc1 K2_ROUND
    """)
    stamp(a,opt,5,1)
    WH=[64+4*i for i in range(10)]+[0,4,8,116,108,120]
    a(f"""
    v_mbcnt_lo_u32_b32 v31, -1, 0
    v_mbcnt_hi_u32_b32 v31, -1, v31
    v_lshlrev_b32 v28, 4, v31
    v_add_u32 v28, {WHL}, v28
    """)
    for i in range(12): a(f"ds_read_b128 {vr(WH[i],4)}, v28 offset:{1024*i}")
    a(f"""
    v_and_b32 v12, 15, v31
    v_lshrrev_b32 v13, 4, v31
    v_lshrrev_b32 v14, 2, v12
    v_and_b32 v15, 1, v31
    v_lshl_add_u32 v14, v14, 1, v15
    v_lshlrev_b32 v29, 8, v13
    v_lshl_add_u32 v29, v12, 3, v29
    s_waitcnt lgkmcnt(6)
    """)
    for i in range(12,16): a(f"ds_read_b128 {vr(WH[i],4)}, v28 offset:{1024*i}")
    a(f"""
    v_mul_u32_u24 v30, 144, v14
    v_lshl_add_u32 v30, v13, 4, v30
    v_add_u32 v30, s{sM0}, v30
    v_lshrrev_b32 v13, 5, v31
    v_lshlrev_b32 v28, 7, v13
    v_and_b32 v12, 3, v31
    v_cmp_eq_u32 vcc, 0, v12
    v_mov_b32 v14, 256
    v_cndmask_b32 v28, v28, v14, vcc
    s_mov_b64 s[{sV}:{sV+1}], vcc
    """)
    for p in range(2):
        for q in range(4): a(f"ds_read_b128 {vr(12+4*q,4)}, v28 offset:{WXL+64*p+16*q}")
        a("s_waitcnt lgkmcnt(0)")
        for i in range(8): a(f"v_pk_mul_f32 {vr(D2+16*p+2*i,2)}, {vr(D2+16*p+2*i,2)}, {vr(12+2*i,2)}")
    a(f"""
    v_bfe_u32 v12, v31, 2, 3
    v_mul_u32_u24 v28, 144, v12
    v_lshrrev_b32 v13, 5, v31
    v_lshl_add_u32 v28, v13, 3, v28
    v_add_u32 v28, s{sM0}, v28
    v_and_b32 v14, 3, v31
    v_lshlrev_b32 v15, 4, v12
    v_lshl_add_u32 v15, v14, 2, v15
    s_sub_u32 s{sT1}, s{sGs}, 4
    v_add_u32 v15, s{sT1}, v15
    ds_read_b32 v16, v15
    v_mul_u32_u24 v12, 6, v12
    v_lshl_add_u32 v12, v14, 1, v12
    v_subrev_u32 v12, 2, v12
    s_mov_b64 exec, s[{sV}:{sV+1}]
    """)
    for p in range(2):
        for q in range(4):
            b=D2+16*p+4*q
            a(f"v_cvt_pk_bf16_f32 v{b}, v{b}, v{b+1}\nv_cvt_pk_bf16_f32 v{b+1}, v{b+2}, v{b+3}\nds_write_b64 v28, {vr(b,2)} offset:{64*p+16*q}")
    a(f"s_not_b64 exec, exec")
    st=16
    while st>=2:
        for i in range(0,st,2): a(f"v_pk_add_f32 {vr(D2+i,2)}, {vr(D2+i,2)}, {vr(D2+st+i,2)}")
        st//=2
    a(f"""
    v_add_f32 v32, v32, v33
    s_mov_b64 exec, -1
    v_mov_b32 v33, v32
    v_permlane32_swap_b32 v32, v33
    v_add_f32 v32, v32, v33
    s_waitcnt lgkmcnt(0)
    v_add_f32 v32, v32, v16
    v_cvt_pk_bf16_f32 v32, v32, v32
    s_mov_b32 exec_lo, 0xeeeeeeee
    s_mov_b32 exec_hi, 0
    buffer_store_short v32, v12, s[{rOUTP}:{rOUTP+3}], 0 offen {opt.get('outp_pol','')}
    s_mov_b64 exec, -1
    ds_read_b128 v[36:39], v30
    ds_read_b128 v[40:43], v30 offset:64
    s_waitcnt vmcnt(1)
    """)
    D3=44
    XA=(EA,PS,36,40)
    for s in range(4):
        if s==2: a("s_waitcnt lgkmcnt(0)")
        for q in range(4):
            c="0" if s==0 else vr(D3+4*q,4)
            a(f"v_mfma_f32_16x16x32_bf16 {vr(D3+4*q,4)}, {vr(XA[s],4)}, {vr(WH[4*s+q],4)}, {c}")
    for r in range(2):
        a(f"""
        v_lshlrev_b32 v{12+4*r}, 16, v{124+2*r}
        v_and_b32 v{13+4*r}, 0xffff0000, v{124+2*r}
        v_lshlrev_b32 v{14+4*r}, 16, v{125+2*r}
        v_and_b32 v{15+4*r}, 0xffff0000, v{125+2*r}
        """)
    Z=[(r,q) for r in range(2) for q in range(4)]
    for k,(r,q) in enumerate(Z): a(f"v_mul_f32 v{20+k}, {LOG2E_NEG:#x}, v{D3+4*q+r}")
    for k in range(8): a(f"v_exp_f32 v{20+k}, v{20+k}")
    for k in range(8): a(f"v_add_f32 v{20+k}, 1.0, v{20+k}")
    for k in range(8): a(f"v_rcp_f32 v{20+k}, v{20+k}")
    for k,(r,q) in enumerate(Z): a(f"v_fmac_f32 v{12+k}, v{20+k}, v{D3+4*q+r}")
    for r in range(2):
        a(f"""
        v_cvt_pk_bf16_f32 v{20+2*r}, v{12+4*r}, v{13+4*r}
        v_cvt_pk_bf16_f32 v{21+2*r}, v{14+4*r}, v{15+4*r}
        buffer_store_dwordx2 {vr(20+2*r,2)}, v29, s[{rOUT}:{rOUT+3}], 0 offen offset:{128*r} {opt.get('out_pol','')}
        """)
    stamp(a,opt,6,1)
    if opt.get('stamp'): a("s_waitcnt vmcnt(0)")
    stamp(a,opt,7,1)
    stamp_out(a,opt,1,sWS,sW,32,40)
    a("K2_END:\ns_endpgm")
    return a
```

```python
from asmlib import *
from cfg import *

def srd(a, s, base_lo, off=None, size=None, w1or=0):
    if off is None:
        a(f"s_mov_b32 s{s}, s{base_lo}\ns_mov_b32 s{s+1}, s{base_lo+1}")
    else:
        a(f"s_add_u32 s{s}, s{base_lo}, {off}\ns_addc_u32 s{s+1}, s{base_lo+1}, 0")
    if w1or: a(f"s_or_b32 s{s+1}, s{s+1}, {w1or:#x}")
    a(f"s_mov_b32 s{s+2}, {size}\ns_mov_b32 s{s+3}, 0x20000")

def wave_scan(a, v):
    for sh in (1,2,4,8):
        a(f"v_add_u32_dpp v{v}, v{v}, v{v} row_shr:{sh} row_mask:0xf bank_mask:0xf bound_ctrl:1")
    a(f"v_add_u32_dpp v{v}, v{v}, v{v} row_bcast:15 row_mask:0xa bank_mask:0xf")
    a(f"v_add_u32_dpp v{v}, v{v}, v{v} row_bcast:31 row_mask:0xc bank_mask:0xf")

STREG={'regs':None,'tmp':None}
def stamp(a,opt,k,mode=None):
    if opt.get('stamp') and (mode is None or opt.get('stamp')==mode):
        R=STREG['regs']
        a(f"{'s_memtime' if opt.get('clk') else 's_memrealtime'} vcc\ns_waitcnt lgkmcnt(0)\ns_mov_b32 s{R[k]}, vcc_lo")
        if k==0:
            for i in range(1,6): a(f"s_mov_b32 s{R[i]}, vcc_lo")
def stamp_out(a,opt,which,sWS,sW,v0,v1):
    if opt.get('stamp'):
        R=STREG['regs']; t=STREG['tmp']
        a(f"s_lshl_b32 s{t}, s2, 4\ns_add_u32 s{t}, s{t}, s{sW}\ns_lshl_b32 s{t}, s{t}, 5\ns_add_u32 s{t}, s{t}, {WS_ST+which*131072}")
        a(f"s_add_u32 s{t}, s{sWS}, s{t}\ns_addc_u32 s{t+1}, s{sWS+1}, 0\nv_mov_b32 v{v1}, 0")
        for i in range(8): a(f"v_mov_b32 v{v0+i}, s{R[i]}")
        a(f"s_mov_b64 exec, 1\nglobal_store_dwordx4 v{v1}, v[{v0}:{v0+3}], s[{t}:{t+1}]\nglobal_store_dwordx4 v{v1}, v[{v0+4}:{v0+7}], s[{t}:{t+1}] offset:16")

CNT=0; XB=1024; BASE=2048; W2L=3072; BOUT=W2L+8192; SLOTS=BOUT+3*4096; SLW=80; K1_LDS=SLOTS+256*SLW

def gen_k1(opt):
    a=Asm()
    STREG.update(regs=[90,91,92,93,94,95,96,97],tmp=98)
    ST=opt.get('k1_store','sc1'); LD=opt.get('k1_load','nt'); TP=opt.get('tab_store','')
    sH,sPOSP,sSRC,sDST,sWE,sWX,sWH,sWS=4,6,8,10,12,14,16,18
    rDST,rSRC,rH,rPOS,rWE,rREC,rTAB,rBT,rP16,rX,rY,rSLOT=20,24,28,32,36,40,44,48,52,56,60,76
    sW,sN,sNN,sT0,sT1,sT2,sT3,sM=64,65,66,67,68,69,70,71
    ROT=opt.get('k1_rot',832)
    sL=72
    sVAL=74
    sHI2=3
    sPL,sPI=88,89
    sOV=80
    a(f"""
    s_cmp_ge_u32 s2, {NBK}
    s_cbranch_scc1 K1_END
    s_load_dwordx4 s[8:11], s[0:1], 24
    s_load_dwordx4 s[12:15], s[0:1], 40
    s_load_dwordx4 s[4:7], s[0:1], 0
    s_load_dwordx2 s[16:17], s[0:1], 56
    s_load_dwordx2 s[18:19], s[0:1], 80
    v_add_u32 v0, {ROT}, v0
    v_and_b32 v0, 0x3ff, v0
    v_lshrrev_b32 v1, 6, v0
    v_and_b32 v2, 63, v0
    v_readfirstlane_b32 s{sW}, v1
    v_lshlrev_b32 v3, 4, v0
    s_mul_i32 s{sT0}, s2, {CH}
    s_sub_u32 s{sN}, {E}, s{sT0}
    s_min_u32 s{sN}, s{sN}, {CH}
    s_mul_i32 s{sT1}, s2, {NB}
    s_sub_u32 s{sNN}, {N}, s{sT1}
    s_min_u32 s{sNN}, s{sNN}, {NB}
    s_lshl_b32 s{sT2}, s{sT0}, 2
    s_lshl_b32 s{sT3}, s{sN}, 2
    s_and_b32 s{sPL}, s2, 7
    s_lshl_b32 s{sPL}, s{sPL}, 1
    s_lshr_b32 s{sPI}, s2, 7
    s_add_u32 s{sPL}, s{sPL}, s{sPI}
    s_bfe_u32 s{sPI}, s2, 0x40003
    s_cmp_ge_u32 s{sW}, 13
    s_waitcnt lgkmcnt(0)
    """)
    stamp(a,opt,0)
    a("s_cbranch_scc1 K1_G0")
    srd(a,rDST,sDST,f"s{sT2}",f"s{sT3}")
    a(f"buffer_load_dwordx4 v[8:11], v3, s[{rDST}:{rDST+3}], 0 offen {LD}")
    srd(a,rSRC,sSRC,f"s{sT2}",f"s{sT3}")
    a(f"buffer_load_dwordx4 v[12:15], v3, s[{rSRC}:{rSRC+3}], 0 offen {LD}")
    a(f"""
    v_mov_b32 v20, 0
    s_cmp_ge_u32 s{sW}, 8
    s_cbranch_scc1 K1_NOZ
    v_lshlrev_b32 v21, 2, v0
    ds_write_b32 v21, v20 offset:{CNT}
    K1_NOZ:
    s_lshl_b32 s{sT2}, s{sT0}, 3
    s_add_u32 s{sT2}, s{sT2}, {WS_REC-128:#x}
    s_lshl_b32 s{sT3}, s{sN}, 3
    s_add_u32 s{sT3}, s{sT3}, 128
    """)
    srd(a,rREC,sWS,f"s{sT2}",f"s{sT3}")
    srd(a,rTAB,sWS,f"{WS_TAB:#x}",NBK*2048)
    srd(a,rSLOT,sWS,f"{WS_SLOT:#x}",NBK*16384)
    a(f"""
    s_lshr_b32 s{sT2}, s{sN}, 2
    v_cmp_gt_u32 s[{sVAL}:{sVAL+1}], s{sT2}, v0
    s_lshl_b32 s{sT2}, s{sT0}, 5
    v_lshl_add_u32 v53, v0, 7, s{sT2}
    v_add_u32 v55, 32, v53
    v_add_u32 v57, 64, v53
    v_add_u32 v59, 96, v53
    v_lshlrev_b32 v23, 24, v0
    v_and_b32 v23, 0xfc000000, v23
    v_and_b32 v21, 3, v0
    v_lshl_or_b32 v23, v21, 5, v23
    s_lshr_b32 s{sHI2}, s{sW}, 2
    s_mov_b32 s{sM}, 171196
    v_mov_b32 v22, 8192
    v_mov_b32 v20, 1
    s_waitcnt lgkmcnt(0)
    s_barrier
    s_mov_b64 exec, s[{sVAL}:{sVAL+1}]
    s_waitcnt vmcnt(1)
    """)
    stamp(a,opt,1)
    for j in range(4):
        a(f"""
        v_mad_u32_u24 v{16+j}, v{8+j}, s{sM}, v22
        v_lshrrev_b32 v{16+j}, 20, v{16+j}
        v_lshrrev_b32 v{28+j}, 2, v{16+j}
        v_and_b32 v{28+j}, 0x3fc, v{28+j}
        ds_add_rtn_u32 v{24+j}, v{28+j}, v20 offset:{CNT}
        """)
    for j in range(4):
        a(f"""
        v_mad_u32_u24 v21, v{16+j}, 49, 7
        v_lshrrev_b32 v21, 3, v21
        v_sub_u32 v{8+j}, v{8+j}, v21
        """)
    for j in range(4):
        a(f"""
        v_and_b32 v{16+j}, 15, v{16+j}
        v_lshl_or_b32 v{8+j}, v{16+j}, 22, v{8+j}
        v_add3_u32 v{8+j}, v{8+j}, v23, {8*j}
        """)
    a("s_waitcnt vmcnt(0)")
    for j in range(4): a(f"v_lshl_or_b32 v{52+2*j}, v{12+j}, 7, v{8+j}")
    for j in range(4):
        a(f"""
        s_waitcnt lgkmcnt({3+j})
        v_cmp_gt_u32 vcc, 16, v{24+j}
        v_lshlrev_b32 v{12+j}, 1, v{24+j}
        v_lshlrev_b32 v{24+j}, 2, v{24+j}
        v_mad_u32_u24 v21, v{28+j}, {SLW//4}, v{24+j}
        v_lshlrev_b32 v{12+j}, v{12+j}, s{sHI2}
        s_andn2_b64 s[{sOV+2*j}:{sOV+2*j+1}], exec, vcc
        s_mov_b64 exec, vcc
        ds_write_b32 v21, v{52+2*j} offset:{SLOTS}
        ds_or_b32 v{28+j}, v{12+j} offset:{XB}
        s_mov_b64 exec, {'-1' if j==3 else 's[%d:%d]'%(sVAL,sVAL+1)}
        """)
    def slot_out_prep(r=16):
        a(f"""
        v_lshrrev_b32 v{r}, 2, v0
        v_and_b32 v{r+3}, 0x30, v3
        v_mad_u32_u24 v{r+1}, v{r}, s{sT3}, v{r+3}
        v_add_u32 v{r+2}, s{sPL}, v{r}
        v_and_b32 v{r+2}, 15, v{r+2}
        v_lshl_add_u32 v{r+2}, v{r}, 4, v{r+2}
        v_lshl_add_u32 v{r+2}, v{r+2}, 4, s{sPI}
        v_lshl_add_u32 v{r+2}, v{r+2}, 6, v{r+3}
        """)
    def slot_out(extra,r=16,d2=None):
        a(f"""
        ds_read_b128 v[60:63], v{r+1} offset:{SLOTS}
        {extra}
        s_waitcnt lgkmcnt({extra.count('ds_')})
        buffer_store_dwordx4 v[60:63], v{r+2}, s[{rSLOT}:{rSLOT+3}], 0 offen {ST}
        """)
    a(f"s_mov_b32 s{sT3}, {SLW}")
    slot_out_prep()
    a(f"""
    v_lshlrev_b32 v4, 4, v2
    s_waitcnt lgkmcnt(0)
    s_barrier
    """)
    stamp(a,opt,2)
    slot_out(f"ds_read_b128 v[8:11], v4 offset:{CNT}\nds_read_b128 v[20:23], v4 offset:{XB}")
    a("s_waitcnt lgkmcnt(0)")
    for j in range(4): a(f"v_subrev_u32 v{12+j}, 16, v{8+j}")
    for j in range(4): a(f"v_max_i32 v{12+j}, 0, v{12+j}")
    a(f"""
    v_add_u32 v13, v12, v13
    v_add_u32 v14, v13, v14
    v_add_u32 v15, v14, v15
    v_mov_b32 v5, v15
    """)
    wave_scan(a,5)
    a(f"""
    v_sub_u32 v16, v5, v15
    v_add_u32 v17, v16, v12
    v_add_u32 v18, v16, v13
    v_add_u32 v19, v16, v14
    ds_write_b128 v4, v[16:19] offset:{BASE}
    """)
    for j in range(4):
        a(f"s_mov_b64 exec, s[{sOV+2*j}:{sOV+2*j+1}]\nds_read_b32 v{28+j}, v{28+j} offset:{BASE}")
    a(f"""
    s_mov_b64 exec, -1
    s_cmp_ge_u32 s{sW}, 4
    s_cbranch_scc1 K1_NOTAB
    v_lshl_add_u32 v5, v2, 2, s{sW}
    v_add_u32 v6, s{sPL}, v5
    v_and_b32 v6, 15, v6
    v_lshl_add_u32 v5, v5, 4, v6
    v_lshl_add_u32 v5, v5, 4, s{sPI}
    v_lshlrev_b32 v5, 3, v5
    """)
    for j in range(4):
        a(f"""
        s_cmp_lg_u32 s{sW}, {j}
        s_cbranch_scc1 K1_TB{j}
        v_lshl_or_b32 v6, v{16+j}, 16, v{8+j}
        v_mov_b32 v7, v{20+j}
        K1_TB{j}:
        """)
    a(f"buffer_store_dwordx2 v[6:7], v5, s[{rTAB}:{rTAB+3}], 0 offen {TP}")
    a("K1_NOTAB:\ns_waitcnt lgkmcnt(0)")
    for j in range(4):
        a(f"""
        s_mov_b64 exec, s[{sOV+2*j}:{sOV+2*j+1}]
        s_cbranch_execz K1_NOOV{j}
        v_lshl_add_u32 v{28+j}, v{28+j}, 2, v{24+j}
        v_lshlrev_b32 v{28+j}, 1, v{28+j}
        buffer_store_dwordx2 v[{52+2*j}:{53+2*j}], v{28+j}, s[{rREC}:{rREC+3}], 0 offen {ST}
        K1_NOOV{j}:
        """)
    a("s_mov_b64 exec, -1\ns_branch K1_FIN")
    a("K1_G0:")
    srd(a,rWE,sWE,None,145*128)
    a(f"s_lshl_b32 s{sT2}, s{sT1}, 7\ns_lshl_b32 s{sT3}, s{sNN}, 7")
    srd(a,rH,sH,f"s{sT2}",f"s{sT3}")
    a(f"s_add_u32 s{sT2}, s{sT2}, {WS_BT:#x}")
    srd(a,rBT,sWS,f"s{sT2}",f"s{sT3}")
    srd(a,rSLOT,sWS,f"{WS_SLOT:#x}",NBK*16384)
    HB=32; HB3=8; WA=64; DD=96
    a(f"s_lshl_b32 s{sT2}, s{sT1}, 4\ns_add_u32 s{sT2}, s{sT2}, {WS_P16:#x}\ns_lshl_b32 s{sT3}, s{sNN}, 4")
    srd(a,rP16,sWS,f"s{sT2}",f"s{sT3}")
    a(f"""
    s_sub_u32 s{sT2}, s{sW}, 13
    s_mul_i32 s{sT2}, s{sT2}, 3072
    s_add_u32 m0, s{sT2}, {W2L}
    s_add_u32 s{sT2}, s{sT2}, {64*128}
    v_lshlrev_b32 v4, 4, v2
    """)
    for i in range(3): a(f"buffer_load_dwordx4 v4, s[{rWE}:{rWE+3}], s{sT2} offen offset:{1024*i} lds")
    a(f"""
    s_sub_u32 s{sT2}, 15, s{sW}
    s_lshl_b32 s{sT2}, s{sT2}, 12
    v_and_b32 v5, 31, v2
    v_lshrrev_b32 v6, 5, v2
    v_lshlrev_b32 v7, 7, v5
    v_lshl_add_u32 v7, v6, 4, v7
    v_add_u32 v7, s{sT2}, v7
    s_mov_b32 s{sL}, {LOG2E_NEG:#x}
    s_mov_b32 s{sL+1}, {LOG2E_NEG:#x}
    """)
    for s in range(4): a(f"buffer_load_dwordx4 v[{HB+4*s}:{HB+4*s+3}], v7, s[{rH}:{rH+3}], 0 offen offset:{32*s}")
    a(f"""
    v_subrev_u32 v24, {13*64}, v0
    {"" if opt.get('k1_early',1) else "s_barrier"}
    s_cmp_eq_u32 s{sW}, 15
    s_cbranch_scc1 K1_PREP
    s_mul_i32 s{sT2}, s{sT1}, 6
    s_mul_i32 s{sT3}, s{sNN}, 6
    """)
    srd(a,rPOS,sPOSP,f"s{sT2}",f"s{sT3}")
    a(f"""
    v_mul_u32_u24 v25, 6, v24
    buffer_load_ushort v48, v25, s[{rPOS}:{rPOS+3}], 0 offen
    buffer_load_ushort v49, v25, s[{rPOS}:{rPOS+3}], 0 offen offset:2
    buffer_load_ushort v50, v25, s[{rPOS}:{rPOS+3}], 0 offen offset:4
    s_cmp_lg_u32 s{sW}, 13
    s_cbranch_scc1 K1_W7
    v_add_u32 v7, 4096, v7
    """)
    for s in range(4): a(f"buffer_load_dwordx4 v[{HB3+4*s}:{HB3+4*s+3}], v7, s[{rH}:{rH+3}], 0 offen offset:{32*s}")
    a(f"""
    s_waitcnt vmcnt(11)
    s_branch K1_G2
    K1_W7:
    """)
    if opt.get('cpf'):
        a(f"""
        s_getpc_b64 s[{rX}:{rX+1}]
        K1_PC:
        s_add_u32 s{rX}, s{rX}, egnn_main_kernel-K1_PC
        s_addc_u32 s{rX+1}, s{rX+1}, 0
        v_lshlrev_b32 v8, 7, v2
        v_add_co_u32 v8, vcc, s{rX}, v8
        v_mov_b32 v9, s{rX+1}
        v_addc_co_u32 v9, vcc, 0, v9, vcc
        global_load_dword v10, v[8:9], off
        v_add_co_u32 v8, vcc, 0x2000, v8
        v_addc_co_u32 v9, vcc, 0, v9, vcc
        v_lshlrev_b32 v12, 7, v2
        v_cmp_gt_i32 vcc, K2_END-egnn_main_kernel-0x2000, v12
        s_mov_b64 exec, vcc
        global_load_dword v11, v[8:9], off
        s_mov_b64 exec, -1
        s_waitcnt vmcnt(9)
        s_branch K1_G2
        """)
    a(f"""
    s_waitcnt vmcnt(7)
    s_branch K1_G2
    K1_PREP:
    s_cmp_ge_u32 s2, 26
    s_cbranch_scc1 K1_PREP2
    """)
    a(f"""
    s_cmp_ge_u32 s2, 10
    s_cbranch_scc1 K1_PWH
    s_lshr_b32 s{sT2}, s2, 1
    s_lshl_b32 s{sT2}, s{sT2}, 4
    s_cmp_ge_u32 s2, 8
    s_cselect_b32 s{sT2}, 129, s{sT2}
    s_and_b32 s{sT3}, s2, 1
    s_lshl_b32 s{sT3}, s{sT3}, 6
    s_lshl_b32 s{sT2}, s{sT2}, 7
    s_add_u32 s{sT2}, s{sT2}, s{sT3}
    v_lshlrev_b32 v17, 10, v6
    v_lshl_add_u32 v17, v5, 1, v17
    v_add_u32 v17, s{sT2}, v17
    s_mov_b32 s{rX}, s{sWE}
    s_mov_b32 s{rX+1}, s{sWE+1}
    s_mov_b32 s{rX+2}, {145*128}
    s_branch K1_PLD
    K1_PWH:
    s_sub_u32 s{sT2}, s2, 10
    s_and_b32 s{sT3}, s{sT2}, 3
    s_lshr_b32 s{sT2}, s{sT2}, 2
    s_lshl_b32 s{sT2}, s{sT2}, 12
    s_lshl_b32 s{sT3}, s{sT3}, 1
    s_add_u32 s{sT2}, s{sT2}, s{sT3}
    v_lshrrev_b32 v17, 4, v2
    v_lshlrev_b32 v17, 10, v17
    v_and_b32 v18, 15, v2
    v_lshl_add_u32 v17, v18, 3, v17
    v_add_u32 v17, s{sT2}, v17
    s_mov_b32 s{rX}, s{sWH}
    s_mov_b32 s{rX+1}, s{sWH+1}
    s_mov_b32 s{rX+2}, {128*128}
    K1_PLD:
    s_mov_b32 s{rX+3}, 0x20000
    """)
    for j in range(8): a(f"buffer_load_ushort v{48+j}, v17, s[{rX}:{rX+3}], 0 offen offset:{128*j}")
    a(f"""
    s_waitcnt vmcnt(12)
    s_branch K1_G2
    K1_PREP2:
    s_cmp_lg_u32 s2, 26
    s_cbranch_scc1 K1_W4
    """)
    srd(a,rX,sWX,None,128)
    a(f"""
    v_lshlrev_b32 v17, 1, v2
    v_add_u32 v17, {128*128}, v17
    buffer_load_ushort v48, v17, s[{rWE}:{rWE+3}], 0 offen
    v_and_b32 v18, 3, v2
    v_bfe_u32 v19, v2, 2, 2
    v_lshl_add_u32 v18, v19, 3, v18
    v_lshl_add_u32 v18, v6, 2, v18
    v_bfe_u32 v19, v2, 4, 1
    v_lshl_add_u32 v18, v19, 5, v18
    v_lshlrev_b32 v18, 1, v18
    buffer_load_ushort v49, v18, s[{rX}:{rX+3}], 0 offen
    K1_W4:
    s_waitcnt vmcnt(4)
    K1_G2:
    """)
    a(f"""
    v_bfe_u32 v26, v2, 2, 2
    v_lshl_add_u32 v26, v6, 3, v26
    v_lshlrev_b32 v26, 7, v26
    v_and_b32 v27, 1, v2
    v_lshl_add_u32 v26, v27, 5, v26
    v_bfe_u32 v27, v2, 4, 1
    v_lshl_add_u32 v26, v27, 4, v26
    v_bfe_u32 v27, v2, 1, 1
    v_lshl_add_u32 v26, v27, 3, v26
    s_sub_u32 s{sT2}, s{sW}, 13
    s_lshl_b32 s{sT2}, s{sT2}, 12
    v_lshl_add_u32 v28, v5, 7, s{sT2}
    v_and_b32 v27, 7, v5
    v_lshlrev_b32 v29, 1, v6
    v_xor_b32 v29, v29, v27
    v_lshl_add_u32 v28, v29, 4, v28
    v_lshl_add_u32 v30, v2, 4, s{sT2}
    v_lshrrev_b32 v31, 3, v2
    v_lshlrev_b32 v31, 4, v31
    v_lshlrev_b32 v27, 4, v2
    v_xor_b32 v31, v31, v27
    s_mov_b32 s{sT3}, {SLW}
    """)
    EARLY=opt.get('k1_early',1)
    if EARLY:
        a("s_barrier")
        stamp(a,opt,1)
    else:
        slot_out_prep(56)
        stamp(a,opt,1)
        a("s_barrier")
        stamp(a,opt,2)
        slot_out("",56)
    for p in range(2):
        for s in range(4):
            for jj in range(2):
                a(f"ds_read_b64_tr_b16 v[{WA+16*p+4*s+2*jj}:{WA+16*p+4*s+2*jj+1}], v26 offset:{W2L+s*2048+jj*512+64*p}")
    def gemm(hb,first):
        for p in range(2):
            if first: a(f"s_waitcnt lgkmcnt({8-8*p})"+((" vmcnt(0)" if EARLY else " vmcnt(1)") if p==0 else ""))
            for s in range(4):
                c = "0" if s==0 else vr(DD+16*p,16)
                a(f"v_mfma_f32_32x32x16_bf16 {vr(DD+16*p,16)}, {vr(WA+16*p+4*s,4)}, {vr(hb+4*s,4)}, {c}")
    def rows_out():
        for p in range(2):
            for i in range(8): a(f"v_pk_mul_f32 {vr(DD+16*p+2*i,2)}, {vr(DD+16*p+2*i,2)}, s[{sL}:{sL+1}]")
            for i in range(8): a(f"v_cvt_pk_bf16_f32 v{DD+16*p+i}, v{DD+16*p+2*i}, v{DD+16*p+2*i+1}")
            for i in range(2):
                if 4*p+i: a(f"v_xor_b32 v29, {16*(4*p+i)}, v28")
                a(f"ds_write_b128 v{29 if 4*p+i else 28}, {vr(DD+16*p+4*i,4)} offset:{BOUT}")
        for i in range(4): a(f"ds_read_b128 {vr(DD+4*i,4)}, v30 offset:{BOUT+1024*i}")
        a(f"v_add_u32 v27, s{sT2}, v31")
        for i in range(4):
            a(f"s_waitcnt lgkmcnt({3-i})\nbuffer_store_dwordx4 {vr(DD+4*i,4)}, v27, s[{rBT}:{rBT+3}], 0 offen offset:{1024*i} {ST}")
    gemm(HB,True)
    a(f"""
    s_cmp_eq_u32 s{sW}, 15
    s_cbranch_scc1 K1_SIDE_PREP
    v_lshlrev_b32 v24, 4, v24
    v_lshlrev_b32 v48, 16, v48
    v_lshlrev_b32 v49, 16, v49
    v_lshlrev_b32 v50, 16, v50
    v_mov_b32 v51, 0
    buffer_store_dwordx4 v[48:51], v24, s[{rP16}:{rP16+3}], 0 offen {ST}
    s_branch K1_SIDE_DONE
    K1_SIDE_PREP:
    s_cmp_gt_u32 s2, 26
    s_cbranch_scc1 K1_SIDE_DONE
    """)
    srd(a,rY,sWS,f"{WS_WT:#x}",WT_SIZE)
    a(f"""
    s_cmp_eq_u32 s2, 26
    s_cbranch_scc1 K1_SIDE_WD
    s_lshr_b32 s{sT2}, s2, 1
    s_cmp_eq_u32 s{sT2}, 4
    s_cbranch_scc1 K1_SIDE_W3
    """)
    for i in range(4): a(f"v_lshl_or_b32 v{56+i}, v{49+2*i}, 16, v{48+2*i}")
    a("s_branch K1_SIDE_ST\nK1_SIDE_W3:")
    for j in range(8): a(f"v_lshlrev_b32 v{48+j}, 16, v{48+j}\nv_mul_f32 v{48+j}, s{sL}, v{48+j}")
    for i in range(4): a(f"v_cvt_pk_bf16_f32 v{56+i}, v{48+2*i}, v{49+2*i}")
    a(f"""
    K1_SIDE_ST:
    s_lshl_b32 s{sT2}, s2, 10
    v_lshl_add_u32 v16, v2, 4, s{sT2}
    buffer_store_dwordx4 v[56:59], v16, s[{rY}:{rY+3}], 0 offen {ST}
    s_branch K1_SIDE_DONE
    K1_SIDE_WD:
    v_lshlrev_b32 v48, 16, v48
    v_mul_f32 v48, s{sL}, v48
    v_cvt_pk_bf16_f32 v50, v48, v48
    v_and_b32 v51, 0xffff0000, v50
    v_sub_f32 v51, v48, v51
    v_cvt_pk_bf16_f32 v50, v48, v51
    v_lshlrev_b32 v49, 16, v49
    v_mul_f32 v49, {LN2_NEG:#x}, v49
    v_lshlrev_b32 v16, 2, v2
    v_add_u32 v16, {WT_WDT}, v16
    buffer_store_dword v50, v16, s[{rY}:{rY+3}], 0 offen {ST}
    buffer_store_dword v49, v16, s[{rY}:{rY+3}], 0 offen offset:{WT_WXT-WT_WDT} {ST}
    K1_SIDE_DONE:
    s_sub_u32 s{sT2}, 15, s{sW}
    s_lshl_b32 s{sT2}, s{sT2}, 12
    """)
    rows_out()
    if EARLY:
        a(f"s_cmp_lg_u32 s{sW}, 13\ns_cbranch_scc1 K1_G3")
        gemm(HB3,False)
        a(f"K1_G3:\ns_mov_b32 s{sT3}, {SLW}")
        slot_out_prep(56)
        a("s_barrier")
        stamp(a,opt,2)
        slot_out("",56,24)
        a(f"s_cmp_lg_u32 s{sW}, 13\ns_cbranch_scc1 K1_FIN\ns_mov_b32 s{sT2}, {3*4096}")
    else:
        a(f"s_cmp_lg_u32 s{sW}, 13\ns_cbranch_scc1 K1_FIN\ns_mov_b32 s{sT2}, {3*4096}")
        gemm(HB3,False)
    rows_out()
    a("K1_FIN:")
    if opt.get('eapf'):
        n=opt['eapf']
        a(f"""
        s_load_dwordx2 s[{rX}:{rX+1}], s[0:1], 16
        s_mul_i32 s{sT2}, s2, {CH*32}
        s_mul_i32 s{sT3}, s{sW}, {n*128}
        s_add_u32 s{sT2}, s{sT2}, s{sT3}
        v_lshl_add_u32 v8, v2, 7, s{sT2}
        s_mov_b32 s{rX+2}, {E*32}
        s_mov_b32 s{rX+3}, 0x20000
        s_mov_b32 exec_lo, {((1<<n)-1)&0xffffffff:#x}
        s_mov_b32 exec_hi, {((1<<n)-1)>>32:#x}
        s_waitcnt lgkmcnt(0)
        buffer_load_dword v9, v8, s[{rX}:{rX+3}], 0 offen
        s_mov_b64 exec, -1
        """)
    stamp(a,opt,5)
    if opt.get('stamp'): a("s_waitcnt vmcnt(0)")
    stamp(a,opt,6)
    stamp(a,opt,7)
    stamp_out(a,opt,0,sWS,sW,32,40)
    a(f"""
    K1_END:
    s_endpgm
    """)
    return a
```

```python
from asmlib import *
from cfg import *

def srd(a, s, base_lo, off=None, size=None, w1or=0):
    if off is None:
        a(f"s_mov_b32 s{s}, s{base_lo}\ns_mov_b32 s{s+1}, s{base_lo+1}")
    else:
        a(f"s_add_u32 s{s}, s{base_lo}, {off}\ns_addc_u32 s{s+1}, s{base_lo+1}, 0")
    if w1or: a(f"s_or_b32 s{s+1}, s{s+1}, {w1or:#x}")
    a(f"s_mov_b32 s{s+2}, {size}\ns_mov_b32 s{s+3}, 0x20000")

def wave_scan(a, v):
    for sh in (1,2,4,8):
        a(f"v_add_u32_dpp v{v}, v{v}, v{v} row_shr:{sh} row_mask:0xf bank_mask:0xf bound_ctrl:1")
    a(f"v_add_u32_dpp v{v}, v{v}, v{v} row_bcast:15 row_mask:0xa bank_mask:0xf")
    a(f"v_add_u32_dpp v{v}, v{v}, v{v} row_bcast:31 row_mask:0xc bank_mask:0xf")

STREG={'regs':None,'tmp':None}
def stamp(a,opt,k,mode=None):
    if opt.get('stamp') and (mode is None or opt.get('stamp')==mode):
        R=STREG['regs']
        a(f"{'s_memtime' if opt.get('clk') else 's_memrealtime'} vcc\ns_waitcnt lgkmcnt(0)\ns_mov_b32 s{R[k]}, vcc_lo")
        if k==0:
            for i in range(1,6): a(f"s_mov_b32 s{R[i]}, vcc_lo")
def stamp_out(a,opt,which,sWS,sW,v0,v1):
    if opt.get('stamp'):
        R=STREG['regs']; t=STREG['tmp']
        a(f"s_lshl_b32 s{t}, s2, 4\ns_add_u32 s{t}, s{t}, s{sW}\ns_lshl_b32 s{t}, s{t}, 5\ns_add_u32 s{t}, s{t}, {WS_ST+which*131072}")
        a(f"s_add_u32 s{t}, s{sWS}, s{t}\ns_addc_u32 s{t+1}, s{sWS+1}, 0\nv_mov_b32 v{v1}, 0")
        for i in range(8): a(f"v_mov_b32 v{v0+i}, s{R[i]}")
        a(f"s_mov_b64 exec, 1\nglobal_store_dwordx4 v{v1}, v[{v0}:{v0+3}], s[{t}:{t+1}]\nglobal_store_dwordx4 v{v1}, v[{v0+4}:{v0+7}], s[{t}:{t+1}] offset:16")

CNT=0; XB=1024; BASE=2048; W2L=3072; BOUT=W2L+8192; SLOTS=BOUT+3*4096; SLW=80; K1_LDS=SLOTS+256*SLW

def gen_k1(opt):
    a=Asm()
    STREG.update(regs=[90,91,92,93,94,95,96,97],tmp=98)
    ST=opt.get('k1_store','sc1'); LD=opt.get('k1_load','nt'); TP=opt.get('tab_store','')
    sH,sPOSP,sSRC,sDST,sWE,sWX,sWH,sWS=4,6,8,10,12,14,16,18
    rDST,rSRC,rH,rPOS,rWE,rREC,rTAB,rBT,rP16,rX,rY,rSLOT=20,24,28,32,36,40,44,48,52,56,60,76
    sW,sN,sNN,sT0,sT1,sT2,sT3,sM=64,65,66,67,68,69,70,71
    ROT=opt.get('k1_rot',832)
    sL=72
    sVAL=74
    sHI2=3
    sPL,sPI=88,89
    sOV=80
    a(f"""
    s_cmp_ge_u32 s2, {NBK}
    s_cbranch_scc1 K1_END
    s_load_dwordx4 s[8:11], s[0:1], 24
    s_load_dwordx4 s[12:15], s[0:1], 40
    s_load_dwordx4 s[4:7], s[0:1], 0
    s_load_dwordx2 s[16:17], s[0:1], 56
    s_load_dwordx2 s[18:19], s[0:1], 80
    v_add_u32 v0, {ROT}, v0
    v_and_b32 v0, 0x3ff, v0
    v_lshrrev_b32 v1, 6, v0
    v_and_b32 v2, 63, v0
    v_readfirstlane_b32 s{sW}, v1
    v_lshlrev_b32 v3, 4, v0
    s_mul_i32 s{sT0}, s2, {CH}
    s_sub_u32 s{sN}, {E}, s{sT0}
    s_min_u32 s{sN}, s{sN}, {CH}
    s_mul_i32 s{sT1}, s2, {NB}
    s_sub_u32 s{sNN}, {N}, s{sT1}
    s_min_u32 s{sNN}, s{sNN}, {NB}
    s_lshl_b32 s{sT2}, s{sT0}, 2
    s_lshl_b32 s{sT3}, s{sN}, 2
    s_and_b32 s{sPL}, s2, 7
    s_lshl_b32 s{sPL}, s{sPL}, 1
    s_lshr_b32 s{sPI}, s2, 7
    s_add_u32 s{sPL}, s{sPL}, s{sPI}
    s_bfe_u32 s{sPI}, s2, 0x40003
    s_cmp_ge_u32 s{sW}, 13
    s_waitcnt lgkmcnt(0)
    """)
    stamp(a,opt,0)
    a("s_cbranch_scc1 K1_G0")
    srd(a,rDST,sDST,f"s{sT2}",f"s{sT3}")
    a(f"buffer_load_dwordx4 v[8:11], v3, s[{rDST}:{rDST+3}], 0 offen {LD}")
    srd(a,rSRC,sSRC,f"s{sT2}",f"s{sT3}")
    a(f"buffer_load_dwordx4 v[12:15], v3, s[{rSRC}:{rSRC+3}], 0 offen {LD}")
    a(f"""
    v_mov_b32 v20, 0
    s_cmp_ge_u32 s{sW}, 8
    s_cbranch_scc1 K1_NOZ
    v_lshlrev_b32 v21, 2, v0
    ds_write_b32 v21, v20 offset:{CNT}
    K1_NOZ:
    s_lshl_b32 s{sT2}, s{sT0}, 3
    s_add_u32 s{sT2}, s{sT2}, {WS_REC-128:#x}
    s_lshl_b32 s{sT3}, s{sN}, 3
    s_add_u32 s{sT3}, s{sT3}, 128
    """)
    srd(a,rREC,sWS,f"s{sT2}",f"s{sT3}")
    srd(a,rTAB,sWS,f"{WS_TAB:#x}",NBK*2048)
    srd(a,rSLOT,sWS,f"{WS_SLOT:#x}",NBK*16384)
    a(f"""
    s_lshr_b32 s{sT2}, s{sN}, 2
    v_cmp_gt_u32 s[{sVAL}:{sVAL+1}], s{sT2}, v0
    s_lshl_b32 s{sT2}, s{sT0}, 5
    v_lshl_add_u32 v53, v0, 7, s{sT2}
    v_add_u32 v55, 32, v53
    v_add_u32 v57, 64, v53
    v_add_u32 v59, 96, v53
    v_lshlrev_b32 v23, 24, v0
    v_and_b32 v23, 0xfc000000, v23
    v_and_b32 v21, 3, v0
    v_lshl_or_b32 v23, v21, 5, v23
    s_lshr_b32 s{sHI2}, s{sW}, 2
    s_mov_b32 s{sM}, 171196
    v_mov_b32 v22, 8192
    v_mov_b32 v20, 1
    s_waitcnt lgkmcnt(0)
    s_barrier
    s_mov_b64 exec, s[{sVAL}:{sVAL+1}]
    s_waitcnt vmcnt(1)
    """)
    stamp(a,opt,1)
    for j in range(4):
        a(f"""
        v_mad_u32_u24 v{16+j}, v{8+j}, s{sM}, v22
        v_lshrrev_b32 v{16+j}, 20, v{16+j}
        v_lshrrev_b32 v{28+j}, 2, v{16+j}
        v_and_b32 v{28+j}, 0x3fc, v{28+j}
        ds_add_rtn_u32 v{24+j}, v{28+j}, v20 offset:{CNT}
        """)
    for j in range(4):
        a(f"""
        v_mad_u32_u24 v21, v{16+j}, 49, 7
        v_lshrrev_b32 v21, 3, v21
        v_sub_u32 v{8+j}, v{8+j}, v21
        """)
    for j in range(4):
        a(f"""
        v_and_b32 v{16+j}, 15, v{16+j}
        v_lshl_or_b32 v{8+j}, v{16+j}, 22, v{8+j}
        v_add3_u32 v{8+j}, v{8+j}, v23, {8*j}
        """)
    a("s_waitcnt vmcnt(0)")
    for j in range(4): a(f"v_lshl_or_b32 v{52+2*j}, v{12+j}, 7, v{8+j}")
    for j in range(4):
        a(f"""
        s_waitcnt lgkmcnt({3+j})
        v_cmp_gt_u32 vcc, 16, v{24+j}
        v_lshlrev_b32 v{12+j}, 1, v{24+j}
        v_lshlrev_b32 v{24+j}, 2, v{24+j}
        v_mad_u32_u24 v21, v{28+j}, {SLW//4}, v{24+j}
        v_lshlrev_b32 v{12+j}, v{12+j}, s{sHI2}
        s_andn2_b64 s[{sOV+2*j}:{sOV+2*j+1}], exec, vcc
        s_mov_b64 exec, vcc
        ds_write_b32 v21, v{52+2*j} offset:{SLOTS}
        ds_or_b32 v{28+j}, v{12+j} offset:{XB}
        s_mov_b64 exec, {'-1' if j==3 else 's[%d:%d]'%(sVAL,sVAL+1)}
        """)
    def slot_out_prep(r=16):
        a(f"""
        v_lshrrev_b32 v{r}, 2, v0
        v_and_b32 v{r+3}, 0x30, v3
        v_mad_u32_u24 v{r+1}, v{r}, s{sT3}, v{r+3}
        v_add_u32 v{r+2}, s{sPL}, v{r}
        v_and_b32 v{r+2}, 15, v{r+2}
        v_lshl_add_u32 v{r+2}, v{r}, 4, v{r+2}
        v_lshl_add_u32 v{r+2}, v{r+2}, 4, s{sPI}
        v_lshl_add_u32 v{r+2}, v{r+2}, 6, v{r+3}
        """)
    def slot_out(extra,r=16,d2=None):
        a(f"""
        ds_read_b128 v[60:63], v{r+1} offset:{SLOTS}
        {extra}
        s_waitcnt lgkmcnt({extra.count('ds_')})
        buffer_store_dwordx4 v[60:63], v{r+2}, s[{rSLOT}:{rSLOT+3}], 0 offen {ST}
        """)
    a(f"s_mov_b32 s{sT3}, {SLW}")
    slot_out_prep()
    a(f"""
    v_lshlrev_b32 v4, 4, v2
    s_waitcnt lgkmcnt(0)
    s_barrier
    """)
    stamp(a,opt,2)
    slot_out(f"ds_read_b128 v[8:11], v4 offset:{CNT}\nds_read_b128 v[20:23], v4 offset:{XB}")
    a("s_waitcnt lgkmcnt(0)")
    for j in range(4): a(f"v_subrev_u32 v{12+j}, 16, v{8+j}")
    for j in range(4): a(f"v_max_i32 v{12+j}, 0, v{12+j}")
    a(f"""
    v_add_u32 v13, v12, v13
    v_add_u32 v14, v13, v14
    v_add_u32 v15, v14, v15
    v_mov_b32 v5, v15
    """)
    wave_scan(a,5)
    a(f"""
    v_sub_u32 v16, v5, v15
    v_add_u32 v17, v16, v12
    v_add_u32 v18, v16, v13
    v_add_u32 v19, v16, v14
    ds_write_b128 v4, v[16:19] offset:{BASE}
    """)
    for j in range(4):
        a(f"s_mov_b64 exec, s[{sOV+2*j}:{sOV+2*j+1}]\nds_read_b32 v{28+j}, v{28+j} offset:{BASE}")
    a(f"""
    s_mov_b64 exec, -1
    s_cmp_ge_u32 s{sW}, 4
    s_cbranch_scc1 K1_NOTAB
    v_lshl_add_u32 v5, v2, 2, s{sW}
    v_add_u32 v6, s{sPL}, v5
    v_and_b32 v6, 15, v6
    v_lshl_add_u32 v5, v5, 4, v6
    v_lshl_add_u32 v5, v5, 4, s{sPI}
    v_lshlrev_b32 v5, 3, v5
    """)
    for j in range(4):
        a(f"""
        s_cmp_lg_u32 s{sW}, {j}
        s_cbranch_scc1 K1_TB{j}
        v_lshl_or_b32 v6, v{16+j}, 16, v{8+j}
        v_mov_b32 v7, v{20+j}
        K1_TB{j}:
        """)
    a(f"buffer_store_dwordx2 v[6:7], v5, s[{rTAB}:{rTAB+3}], 0 offen {TP}")
    a("K1_NOTAB:\ns_waitcnt lgkmcnt(0)")
    for j in range(4):
        a(f"""
        s_mov_b64 exec, s[{sOV+2*j}:{sOV+2*j+1}]
        s_cbranch_execz K1_NOOV{j}
        v_lshl_add_u32 v{28+j}, v{28+j}, 2, v{24+j}
        v_lshlrev_b32 v{28+j}, 1, v{28+j}
        buffer_store_dwordx2 v[{52+2*j}:{53+2*j}], v{28+j}, s[{rREC}:{rREC+3}], 0 offen {ST}
        K1_NOOV{j}:
        """)
    a("s_mov_b64 exec, -1\ns_branch K1_FIN")
    a("K1_G0:")
    srd(a,rWE,sWE,None,145*128)
    a(f"s_lshl_b32 s{sT2}, s{sT1}, 7\ns_lshl_b32 s{sT3}, s{sNN}, 7")
    srd(a,rH,sH,f"s{sT2}",f"s{sT3}")
    a(f"s_add_u32 s{sT2}, s{sT2}, {WS_BT:#x}")
    srd(a,rBT,sWS,f"s{sT2}",f"s{sT3}")
    srd(a,rSLOT,sWS,f"{WS_SLOT:#x}",NBK*16384)
    HB=32; HB3=8; WA=64; DD=96
    a(f"s_lshl_b32 s{sT2}, s{sT1}, 4\ns_add_u32 s{sT2}, s{sT2}, {WS_P16:#x}\ns_lshl_b32 s{sT3}, s{sNN}, 4")
    srd(a,rP16,sWS,f"s{sT2}",f"s{sT3}")
    a(f"""
    s_sub_u32 s{sT2}, s{sW}, 13
    s_mul_i32 s{sT2}, s{sT2}, 3072
    s_add_u32 m0, s{sT2}, {W2L}
    s_add_u32 s{sT2}, s{sT2}, {64*128}
    v_lshlrev_b32 v4, 4, v2
    """)
    for i in range(3): a(f"buffer_load_dwordx4 v4, s[{rWE}:{rWE+3}], s{sT2} offen offset:{1024*i} lds")
    a(f"""
    s_sub_u32 s{sT2}, 15, s{sW}
    s_lshl_b32 s{sT2}, s{sT2}, 12
    v_and_b32 v5, 31, v2
    v_lshrrev_b32 v6, 5, v2
    v_lshlrev_b32 v7, 7, v5
    v_lshl_add_u32 v7, v6, 4, v7
    v_add_u32 v7, s{sT2}, v7
    s_mov_b32 s{sL}, {LOG2E_NEG:#x}
    s_mov_b32 s{sL+1}, {LOG2E_NEG:#x}
    """)
    for s in range(4): a(f"buffer_load_dwordx4 v[{HB+4*s}:{HB+4*s+3}], v7, s[{rH}:{rH+3}], 0 offen offset:{32*s}")
    a(f"""
    v_subrev_u32 v24, {13*64}, v0
    {"" if opt.get('k1_early',1) else "s_barrier"}
    s_cmp_eq_u32 s{sW}, 15
    s_cbranch_scc1 K1_PREP
    s_mul_i32 s{sT2}, s{sT1}, 6
    s_mul_i32 s{sT3}, s{sNN}, 6
    """)
    srd(a,rPOS,sPOSP,f"s{sT2}",f"s{sT3}")
    a(f"""
    v_mul_u32_u24 v25, 6, v24
    buffer_load_ushort v48, v25, s[{rPOS}:{rPOS+3}], 0 offen
    buffer_load_ushort v49, v25, s[{rPOS}:{rPOS+3}], 0 offen offset:2
    buffer_load_ushort v50, v25, s[{rPOS}:{rPOS+3}], 0 offen offset:4
    s_cmp_lg_u32 s{sW}, 13
    s_cbranch_scc1 K1_W7
    v_add_u32 v7, 4096, v7
    """)
    for s in range(4): a(f"buffer_load_dwordx4 v[{HB3+4*s}:{HB3+4*s+3}], v7, s[{rH}:{rH+3}], 0 offen offset:{32*s}")
    a(f"""
    s_waitcnt vmcnt(11)
    s_branch K1_G2
    K1_W7:
    """)
    if opt.get('cpf'):
        a(f"""
        s_getpc_b64 s[{rX}:{rX+1}]
        K1_PC:
        s_add_u32 s{rX}, s{rX}, egnn_main_kernel-K1_PC
        s_addc_u32 s{rX+1}, s{rX+1}, 0
        v_lshlrev_b32 v8, 7, v2
        v_add_co_u32 v8, vcc, s{rX}, v8
        v_mov_b32 v9, s{rX+1}
        v_addc_co_u32 v9, vcc, 0, v9, vcc
        global_load_dword v10, v[8:9], off
        v_add_co_u32 v8, vcc, 0x2000, v8
        v_addc_co_u32 v9, vcc, 0, v9, vcc
        v_lshlrev_b32 v12, 7, v2
        v_cmp_gt_i32 vcc, K2_END-egnn_main_kernel-0x2000, v12
        s_mov_b64 exec, vcc
        global_load_dword v11, v[8:9], off
        s_mov_b64 exec, -1
        s_waitcnt vmcnt(9)
        s_branch K1_G2
        """)
    a(f"""
    s_waitcnt vmcnt(7)
    s_branch K1_G2
    K1_PREP:
    s_cmp_ge_u32 s2, 26
    s_cbranch_scc1 K1_PREP2
    """)
    a(f"""
    s_cmp_ge_u32 s2, 10
    s_cbranch_scc1 K1_PWH
    s_lshr_b32 s{sT2}, s2, 1
    s_lshl_b32 s{sT2}, s{sT2}, 4
    s_cmp_ge_u32 s2, 8
    s_cselect_b32 s{sT2}, 129, s{sT2}
    s_and_b32 s{sT3}, s2, 1
    s_lshl_b32 s{sT3}, s{sT3}, 6
    s_lshl_b32 s{sT2}, s{sT2}, 7
    s_add_u32 s{sT2}, s{sT2}, s{sT3}
    v_lshlrev_b32 v17, 10, v6
    v_lshl_add_u32 v17, v5, 1, v17
    v_add_u32 v17, s{sT2}, v17
    s_mov_b32 s{rX}, s{sWE}
    s_mov_b32 s{rX+1}, s{sWE+1}
    s_mov_b32 s{rX+2}, {145*128}
    s_branch K1_PLD
    K1_PWH:
    s_sub_u32 s{sT2}, s2, 10
    s_and_b32 s{sT3}, s{sT2}, 3
    s_lshr_b32 s{sT2}, s{sT2}, 2
    s_lshl_b32 s{sT2}, s{sT2}, 12
    s_lshl_b32 s{sT3}, s{sT3}, 1
    s_add_u32 s{sT2}, s{sT2}, s{sT3}
    v_lshrrev_b32 v17, 4, v2
    v_lshlrev_b32 v17, 10, v17
    v_and_b32 v18, 15, v2
    v_lshl_add_u32 v17, v18, 3, v17
    v_add_u32 v17, s{sT2}, v17
    s_mov_b32 s{rX}, s{sWH}
    s_mov_b32 s{rX+1}, s{sWH+1}
    s_mov_b32 s{rX+2}, {128*128}
    K1_PLD:
    s_mov_b32 s{rX+3}, 0x20000
    """)
    for j in range(8): a(f"buffer_load_ushort v{48+j}, v17, s[{rX}:{rX+3}], 0 offen offset:{128*j}")
    a(f"""
    s_waitcnt vmcnt(12)
    s_branch K1_G2
    K1_PREP2:
    s_cmp_lg_u32 s2, 26
    s_cbranch_scc1 K1_W4
    """)
    srd(a,rX,sWX,None,128)
    a(f"""
    v_lshlrev_b32 v17, 1, v2
    v_add_u32 v17, {128*128}, v17
    buffer_load_ushort v48, v17, s[{rWE}:{rWE+3}], 0 offen
    v_and_b32 v18, 3, v2
    v_bfe_u32 v19, v2, 2, 2
    v_lshl_add_u32 v18, v19, 3, v18
    v_lshl_add_u32 v18, v6, 2, v18
    v_bfe_u32 v19, v2, 4, 1
    v_lshl_add_u32 v18, v19, 5, v18
    v_lshlrev_b32 v18, 1, v18
    buffer_load_ushort v49, v18, s[{rX}:{rX+3}], 0 offen
    K1_W4:
    s_waitcnt vmcnt(4)
    K1_G2:
    """)
    a(f"""
    v_bfe_u32 v26, v2, 2, 2
    v_lshl_add_u32 v26, v6, 3, v26
    v_lshlrev_b32 v26, 7, v26
    v_and_b32 v27, 1, v2
    v_lshl_add_u32 v26, v27, 5, v26
    v_bfe_u32 v27, v2, 4, 1
    v_lshl_add_u32 v26, v27, 4, v26
    v_bfe_u32 v27, v2, 1, 1
    v_lshl_add_u32 v26, v27, 3, v26
    s_sub_u32 s{sT2}, s{sW}, 13
    s_lshl_b32 s{sT2}, s{sT2}, 12
    v_lshl_add_u32 v28, v5, 7, s{sT2}
    v_and_b32 v27, 7, v5
    v_lshlrev_b32 v29, 1, v6
    v_xor_b32 v29, v29, v27
    v_lshl_add_u32 v28, v29, 4, v28
    v_lshl_add_u32 v30, v2, 4, s{sT2}
    v_lshrrev_b32 v31, 3, v2
    v_lshlrev_b32 v31, 4, v31
    v_lshlrev_b32 v27, 4, v2
    v_xor_b32 v31, v31, v27
    s_mov_b32 s{sT3}, {SLW}
    """)
    EARLY=opt.get('k1_early',1)
    if EARLY:
        a("s_barrier")
        stamp(a,opt,1)
    else:
        slot_out_prep(56)
        stamp(a,opt,1)
        a("s_barrier")
        stamp(a,opt,2)
        slot_out("",56)
    for p in range(2):
        for s in range(4):
            for jj in range(2):
                a(f"ds_read_b64_tr_b16 v[{WA+16*p+4*s+2*jj}:{WA+16*p+4*s+2*jj+1}], v26 offset:{W2L+s*2048+jj*512+64*p}")
    def gemm(hb,first):
        for p in range(2):
            if first: a(f"s_waitcnt lgkmcnt({8-8*p})"+((" vmcnt(0)" if EARLY else " vmcnt(1)") if p==0 else ""))
            for s in range(4):
                c = "0" if s==0 else vr(DD+16*p,16)
                a(f"v_mfma_f32_32x32x16_bf16 {vr(DD+16*p,16)}, {vr(WA+16*p+4*s,4)}, {vr(hb+4*s,4)}, {c}")
    def rows_out():
        for p in range(2):
            for i in range(8): a(f"v_pk_mul_f32 {vr(DD+16*p+2*i,2)}, {vr(DD+16*p+2*i,2)}, s[{sL}:{sL+1}]")
            for i in range(8): a(f"v_cvt_pk_bf16_f32 v{DD+16*p+i}, v{DD+16*p+2*i}, v{DD+16*p+2*i+1}")
            for i in range(2):
                if 4*p+i: a(f"v_xor_b32 v29, {16*(4*p+i)}, v28")
                a(f"ds_write_b128 v{29 if 4*p+i else 28}, {vr(DD+16*p+4*i,4)} offset:{BOUT}")
        for i in range(4): a(f"ds_read_b128 {vr(DD+4*i,4)}, v30 offset:{BOUT+1024*i}")
        a(f"v_add_u32 v27, s{sT2}, v31")
        for i in range(4):
            a(f"s_waitcnt lgkmcnt({3-i})\nbuffer_store_dwordx4 {vr(DD+4*i,4)}, v27, s[{rBT}:{rBT+3}], 0 offen offset:{1024*i} {ST}")
    gemm(HB,True)
    srd(a,rY,sWS,f"{WS_P6:#x}",N*6)
    a(f"""
    s_cmp_eq_u32 s{sW}, 15
    s_cbranch_scc1 K1_SIDE_PREP
    v_lshl_or_b32 v52, v49, 16, v48
    v_add_u32 v53, s{sT1}, v24
    v_cmp_gt_u32 vcc, s{sNN}, v24
    v_lshlrev_b32 v54, 2, v53
    v_lshlrev_b32 v53, 1, v53
    v_add_u32 v53, {N*4}, v53
    s_mov_b64 exec, vcc
    buffer_store_dword v52, v54, s[{rY}:{rY+3}], 0 offen {ST}
    buffer_store_short v50, v53, s[{rY}:{rY+3}], 0 offen {ST}
    s_mov_b64 exec, -1
    v_lshlrev_b32 v24, 4, v24
    v_lshlrev_b32 v48, 16, v48
    v_lshlrev_b32 v49, 16, v49
    v_lshlrev_b32 v50, 16, v50
    v_mov_b32 v51, 0
    buffer_store_dwordx4 v[48:51], v24, s[{rP16}:{rP16+3}], 0 offen {ST}
    s_branch K1_SIDE_DONE
    K1_SIDE_PREP:
    s_cmp_gt_u32 s2, 26
    s_cbranch_scc1 K1_SIDE_DONE
    """)
    srd(a,rY,sWS,f"{WS_WT:#x}",WT_SIZE)
    a(f"""
    s_cmp_eq_u32 s2, 26
    s_cbranch_scc1 K1_SIDE_WD
    s_lshr_b32 s{sT2}, s2, 1
    s_cmp_eq_u32 s{sT2}, 4
    s_cbranch_scc1 K1_SIDE_W3
    """)
    for i in range(4): a(f"v_lshl_or_b32 v{56+i}, v{49+2*i}, 16, v{48+2*i}")
    a("s_branch K1_SIDE_ST\nK1_SIDE_W3:")
    for j in range(8): a(f"v_lshlrev_b32 v{48+j}, 16, v{48+j}\nv_mul_f32 v{48+j}, s{sL}, v{48+j}")
    for i in range(4): a(f"v_cvt_pk_bf16_f32 v{56+i}, v{48+2*i}, v{49+2*i}")
    a(f"""
    K1_SIDE_ST:
    s_lshl_b32 s{sT2}, s2, 10
    v_lshl_add_u32 v16, v2, 4, s{sT2}
    buffer_store_dwordx4 v[56:59], v16, s[{rY}:{rY+3}], 0 offen {ST}
    s_branch K1_SIDE_DONE
    K1_SIDE_WD:
    v_lshlrev_b32 v48, 16, v48
    v_mul_f32 v48, s{sL}, v48
    v_cvt_pk_bf16_f32 v50, v48, v48
    v_and_b32 v51, 0xffff0000, v50
    v_sub_f32 v51, v48, v51
    v_cvt_pk_bf16_f32 v50, v48, v51
    v_lshlrev_b32 v49, 16, v49
    v_mul_f32 v49, {LN2_NEG:#x}, v49
    v_lshlrev_b32 v16, 2, v2
    v_add_u32 v16, {WT_WDT}, v16
    buffer_store_dword v50, v16, s[{rY}:{rY+3}], 0 offen {ST}
    buffer_store_dword v49, v16, s[{rY}:{rY+3}], 0 offen offset:{WT_WXT-WT_WDT} {ST}
    K1_SIDE_DONE:
    s_sub_u32 s{sT2}, 15, s{sW}
    s_lshl_b32 s{sT2}, s{sT2}, 12
    """)
    rows_out()
    if EARLY:
        a(f"s_cmp_lg_u32 s{sW}, 13\ns_cbranch_scc1 K1_G3")
        gemm(HB3,False)
        a(f"K1_G3:\ns_mov_b32 s{sT3}, {SLW}")
        slot_out_prep(56)
        a("s_barrier")
        stamp(a,opt,2)
        slot_out("",56,24)
        a(f"s_cmp_lg_u32 s{sW}, 13\ns_cbranch_scc1 K1_FIN\ns_mov_b32 s{sT2}, {3*4096}")
    else:
        a(f"s_cmp_lg_u32 s{sW}, 13\ns_cbranch_scc1 K1_FIN\ns_mov_b32 s{sT2}, {3*4096}")
        gemm(HB3,False)
    rows_out()
    a("K1_FIN:")
    if opt.get('eapf'):
        n=opt['eapf']
        a(f"""
        s_load_dwordx2 s[{rX}:{rX+1}], s[0:1], 16
        s_mul_i32 s{sT2}, s2, {CH*32}
        s_mul_i32 s{sT3}, s{sW}, {n*128}
        s_add_u32 s{sT2}, s{sT2}, s{sT3}
        v_lshl_add_u32 v8, v2, 7, s{sT2}
        s_mov_b32 s{rX+2}, {E*32}
        s_mov_b32 s{rX+3}, 0x20000
        s_mov_b32 exec_lo, {((1<<n)-1)&0xffffffff:#x}
        s_mov_b32 exec_hi, {((1<<n)-1)>>32:#x}
        s_waitcnt lgkmcnt(0)
        buffer_load_dword v9, v8, s[{rX}:{rX+3}], 0 offen
        s_mov_b64 exec, -1
        """)
    stamp(a,opt,5)
    if opt.get('stamp'): a("s_waitcnt vmcnt(0)")
    stamp(a,opt,6)
    stamp(a,opt,7)
    stamp_out(a,opt,0,sWS,sW,32,40)
    a(f"""
    K1_END:
    s_endpgm
    """)
    return a
```

```python
from asmlib import *
from cfg import *
from k1 import srd, wave_scan, stamp, stamp_out, STREG

CNT=0; BASE=1024; MAXC=2048; KEYS=2112; WDL=2304; WXL=2560; OHT=2944; PDT=3072; W3L=4864
LCAP=3712; L0=6912; L1=L0+4*LCAP; L2=L1+4*LCAP; SX=L2+4*LCAP; BST=SX+32768; BSTW=4352
W1L=BST+16*BSTW; K2_LDS=W1L+8192
PT=L0
assert L0%256==0 and L1%256==0 and K2_LDS<=163840 and L1//256<256 and L2<65536 and PT+147*1024<=K2_LDS
D1=0; D2=32; W3=64; AG=72; ID=80; EE=88; T0=96; T1=100; EA=104; OH=108; PS=112; TMP=115
cDMA=116; aTR=117; aSXR=118; aSXW=119; cPD=120; cHH=121; W0E=122; SXA=123; aL4=124; aLE=125; aEA=126; TID=127
sH,sEAP,sOUT,sWS=4,6,8,10
rTAB,rREC,rBT,rEA,rP16,rH,rWT,rOUT,rOUTP=12,16,20,24,28,32,36,40,44
sW,sLayer,sBlo,sBhi,sMaxc,sNT,sT0,sT1,sT2,sT3=48,51,52,53,54,55,56,57,58,59
sNode0,sCnt=58,59
rSLOT=92; s128=96; sG=0; sGs=49; sPad=50
sM0=60; sHI=64; sONE=66; sMASK=68; sFirst=69; sK=70; sQ3=72; sTot=74; sGb=75; sV=76

def mf(d,a_,b,c=None):
    return f"v_mfma_f32_32x32x16_bf16 {vr(d,16)}, {vr(a_,4)}, {vr(b,4)}, {'0' if c is None else vr(c,16)}"
XNS=0
def exp4(p,b,h):
    if XNS: return f"v_mov_b32 v{EE+4*h}, v{D1+16*p+8*b+4*h}"
    return exp4_(p,b,h)
def rcp4(h):
    if XNS: return "s_nop 0"
    return rcp4_(h)
def exp4_(p,b,h): return "\n".join(f"v_exp_f32 v{EE+4*h+i}, v{D1+16*p+8*b+4*h+i}" for i in range(4))
def rcp4_(h): return "\n".join(f"v_rcp_f32 v{EE+4*h+i}, v{EE+4*h+i}" for i in range(4))
def padd(): return "\n".join(f"v_pk_add_f32 {vr(EE+2*i,2)}, {vr(EE+2*i,2)}, s[{sONE}:{sONE+1}]" for i in range(4))
def pmulcvt(p,b):
    y=D1+16*p+8*b
    return "\n".join([f"v_pk_mul_f32 {vr(EE+2*i,2)}, {vr(y+2*i,2)}, {vr(EE+2*i,2)}" for i in range(4)]+
                     [f"v_cvt_pk_bf16_f32 v{y+i}, v{EE+2*i}, v{EE+2*i+1}" for i in range(4)])
def bst_reads(p):
    return "\n".join(f"ds_read_b64_tr_b16 {vr((T0,T1)[s]+2*jj,2)}, v{aTR} offset:{s*2176+jj*256+64*p}" for s in range(2) for jj in range(2))
def sx_reads(n=2):
    return "\n".join(f"ds_read_b64_tr_b16 {vr((T0,T1)[s]+2*jj,2)}, v{aSXR} offset:{s*1024+jj*512}" for s in range(n) for jj in range(2))
def idx_reads():
    return f"ds_read_b128 {vr(OH,4)}, v{aL4}\nds_read_b32 v{W0E}, v{aLE} offset:{L1-L0}\nds_read_b32 v{PS}, v{aLE} offset:{L2-L0}\nds_read_b32 v{PS+2}, v{aLE}"
def issue_loads(opt):
    EP=opt.get('ea_pol','')
    s="\n".join(f"v_mad_u32_u16 v{OH+i}, v{OH+i}, {'0' if opt.get('x_nob') else 's%d'%s128}, v{cDMA}" for i in range(4))
    if opt.get('x_noea'): s+=f"\nv_mov_b32 v{aEA}, v{cHH}\n"
    else: s+=f"\nv_and_or_b32 v{aEA}, v{W0E}, s{sMASK}, v{cHH}\n"
    for i in range(4):
        s+=f"s_mov_b32 m0, s{sM0+i}\n"
        if i==0: s+=f"v_and_b32 v{W0E}, 7, v{W0E}\n"
        s+=f"buffer_load_dwordx4 v{OH+i}, s[{rBT}:{rBT+3}], 0 offen {opt.get('bt_pol','')} lds\n"
    s+=f"buffer_load_dwordx4 {vr(EA,4)}, v{aEA}, s[{rEA}:{rEA+3}], 0 offen {EP}\n"
    return s
def oh_read():
    return f"v_lshl_add_u32 v{TMP}, v{W0E}, 4, v{cPD}\nds_read_b128 {vr(OH,4)}, v{TMP}\nv_add_u32 v{aL4}, 128, v{aL4}\nv_add_u32 v{aLE}, 128, v{aLE}"
def edge():
    return f"""s_mov_b64 exec, s[{sHI}:{sHI+1}]
    v_and_b32 v{PS+1}, 0xffff0000, v{PS}
    v_lshlrev_b32 v{PS}, 16, v{PS}
    v_and_b32 v{PS+2}, 0xffff0000, v{PS+2}
    v_sub_f32 v{OH}, v{OH}, v{PS}
    v_sub_f32 v{OH+1}, v{OH+1}, v{PS+1}
    v_sub_f32 v{OH+2}, v{OH+2}, v{PS+2}
    v_mul_f32 v{PS}, v{OH}, v{OH}
    v_fmac_f32 v{PS}, v{OH+1}, v{OH+1}
    v_fmac_f32 v{PS}, v{OH+2}, v{OH+2}
    v_cvt_pk_bf16_f32 v{OH}, 1.0, v{OH}
    v_cvt_pk_bf16_f32 v{OH+1}, v{OH+1}, v{OH+2}
    v_cvt_pk_bf16_f32 v{OH+2}, v{PS}, v{PS}
    s_mov_b64 exec, -1"""
def sx_zero(): return f"ds_write2_b32 v{SXA}, v{OH+3}, v{OH+3} offset0:0 offset1:1"
def g2(p,s): return mf(D2+16*p, D1+16*p+8*s, (T0,T1)[s], D2+16*p)

def fin_loads():
    return f"""v_mbcnt_lo_u32_b32 v{aL4}, -1, 0
    v_mbcnt_hi_u32_b32 v{aL4}, -1, v{aL4}
    v_bfe_u32 v{aLE}, v{aL4}, 2, 2
    v_and_b32 v{aEA}, 1, v{aL4}
    v_lshl_add_u32 v{aLE}, v{aLE}, 1, v{aEA}
    v_lshrrev_b32 v{aEA}, 4, v{aL4}
    v_lshlrev_b32 v{PS}, 4, v{aEA}
    v_lshl_add_u32 v{PS}, v{aLE}, 7, v{PS}
    v_and_b32 v{aL4}, 15, v{aL4}
    v_lshlrev_b32 v{aL4}, 3, v{aL4}
    v_lshl_add_u32 v{aL4}, v{aEA}, 8, v{aL4}
    buffer_load_dwordx4 {vr(EA,4)}, v{PS}, s[{rH}:{rH+3}], 0 offen
    buffer_load_dwordx4 {vr(PS,4)}, v{PS}, s[{rH}:{rH+3}], 0 offen offset:64
    buffer_load_dwordx2 {vr(aEA,2)}, v{aL4}, s[{rH}:{rH+3}], 0 offen offset:128
    buffer_load_dwordx2 {vr(aL4,2)}, v{aL4}, s[{rH}:{rH+3}], 0 offen"""

def phaseX(a,opt,last,half=False):
    d=D1+16
    a("s_waitcnt lgkmcnt(2)"); a(g2(1,0)); a(exp4(0,0,0))
    a("s_waitcnt lgkmcnt(0)"); a(g2(1,1)); a(exp4(0,0,1))
    a(f"s_mov_b64 exec, s[{sHI}:{sHI+1}]"); a(sx_zero())
    a(f"v_lshl_add_u32 v{SXA}, v{W0E}, 3, v{aSXW}\nds_write_b64 v{SXA}, {vr(OH,2)}\ns_mov_b64 exec, -1")
    a(bst_reads(1)); a(padd())
    a(mf(d,OH,AG+4)); a(rcp4(0)); a(mf(d,EA,W3+4,d))
    if not last: a(idx_reads())
    a(rcp4(1))
    if half:
        a(pmulcvt(0,0))
        a("s_waitcnt lgkmcnt(2)"); a(mf(d,ID,T0,d)); a(fin_loads())
        a("s_waitcnt lgkmcnt(0)"); a(mf(d,ID+4,T1,d))
        a(sx_reads(1))
        return
    a(pmulcvt(0,0))
    a(f"s_waitcnt lgkmcnt({2 if last else 6})"); a(mf(d,ID,T0,d)); a(exp4(0,1,0))
    a(f"s_waitcnt lgkmcnt({0 if last else 4})"); a(mf(d,ID+4,T1,d)); a(exp4(0,1,1))
    if not last:
        a("s_waitcnt lgkmcnt(0)"); a(issue_loads(opt))
    else: a(fin_loads())
    a(padd()); a(rcp4(0))
    if not last: a(oh_read())
    a(sx_reads())
    a(rcp4(1)); a(pmulcvt(0,1))

def phaseY(a,opt,last,half=False):
    d=D1
    SPF=opt.get('spf',0); BPF=opt.get('bpf',0)
    if half:
        a("s_waitcnt lgkmcnt(0)"); a(g2(0,0)); a(exp4(1,0,0)); a(exp4(1,0,1))
        a(padd()); a(rcp4(0)); a(rcp4(1)); a(pmulcvt(1,0))
        a(g2(1,0))
        return
    a("s_waitcnt lgkmcnt(2)"); a(g2(0,0)); a(exp4(1,0,0))
    a("s_waitcnt lgkmcnt(0)"); a(g2(0,1)); a(exp4(1,0,1))
    if not last:
        if SPF: a(f"ds_read_b32 v{TID}, v{aLE} offset:{L1-L0}")
        a("s_waitcnt vmcnt(1)"); a(bst_reads(0)); a(edge())
    a(padd())
    if not last: a("s_waitcnt lgkmcnt(2)"); a(mf(d,ID,T0))
    a(rcp4(0))
    if not last: a("s_waitcnt lgkmcnt(0)"); a(mf(d,ID+4,T1,d))
    if SPF and not last:
        a(f"s_cmp_le_u32 s{sNT}, 2\ns_cbranch_scc1 K2_NOSPF")
        for i in range(SPF): a(f"v_readlane_b32 s{sV+i}, v{TID}, {i}")
        for i in range(SPF): a(f"s_buffer_load_dword s{sTot}, s[{rEA}:{rEA+3}], s{sV+i}")
        a("K2_NOSPF:")
    if BPF and not last:
        for i in range(BPF): a(f"s_buffer_load_dword s{sTot}, s[{rBT}:{rBT+3}], s{sGb} offset:{(i%4)*128+(i//4)*262144}")
        a(f"s_add_u32 s{sGb}, s{sGb}, {(BPF//4)*262144}")
    a(rcp4(1)); a(pmulcvt(1,0))
    if last: a(g2(1,0))
    else: a(mf(d,OH,AG,d))
    a(exp4(1,1,0))
    if not last: a("s_waitcnt vmcnt(0)"); a(mf(d,EA,W3,d))
    a(exp4(1,1,1))
    if not last: a(sx_reads())
    a(padd()); a(rcp4(0)); a(rcp4(1)); a(pmulcvt(1,1))
    if last: a(g2(1,1))

def xfilter(a,n0,opt):
    import re
    pats=opt.get('x_drop')
    if pats: a.l[n0:]=[l for l in a.l[n0:] if not re.search(pats,l)]
def slot_loads(a):
    a(f"""
    v_lshlrev_b32 v91, 4, v{TID}
    buffer_load_dwordx4 v[0:3], v91, s[{rSLOT}:{rSLOT+3}], 0 offen
    v_and_b32 v93, 3, v{TID}
    v_lshrrev_b32 v90, 2, v{TID}
    """)
def ov_prep(a):
    a(f"""
    v_lshrrev_b32 v91, 4, v90
    v_subrev_u32 v91, s2, v91
    v_and_b32 v90, 15, v90
    v_bfe_u32 v94, v91, 1, 3
    v_lshl_add_u32 v90, v90, 3, v94
    v_and_b32 v91, 1, v91
    v_lshl_add_u32 v90, v91, 7, v90
    s_lshl_b32 s{sT0}, s{sLayer}, 5
    v_lshl_add_u32 v91, v93, 1, s{sT0}
    v_mul_u32_u24 v94, {CH}, v90
    v_add_u32 v90, v94, v91
    v_lshlrev_b32 v93, 2, v93
    s_cmp_ge_u32 s{sW}, s{sBlo}
    s_cselect_b32 s{sT0}, -1, 0
    s_cmp_lt_u32 s{sW}, s{sBhi}
    s_cselect_b32 s{sT0}, s{sT0}, 0
    """)
XR=[104+k for k in range(8)]; ZR=[112,113,114,115,122,123,124,125]
RW=[(0,4),(1,5),(2,6),(3,7),(8,9),(10,11),(12,13),(14,15)]
def ov_loads(a,deep):
    global OVN
    OVN+=1
    a(f"""
    v_and_b32 v92, 0xffff, v88
    v_lshrrev_b32 v88, 16, v88
    v_sub_u32 v91, v92, v91
    v_add_lshl_u32 v88, v88, v90, 3
    v_and_b32 v91, s{sT0}, v91
    """)
    for j in range(2,4):
        a(f"v_cmp_lt_i32 s[{sV+4*j}:{sV+4*j+1}], {8*j}, v91\nv_cmp_lt_i32 s[{sV+4*j+2}:{sV+4*j+3}], {8*j+1}, v91")
    if deep:
        for j in range(2):
            a(f"v_cmp_lt_i32 s[{sV+4*j}:{sV+4*j+1}], {8*j}, v91\nv_cmp_lt_i32 s[{sV+4*j+2}:{sV+4*j+3}], {8*j+1}, v91")
        for j in range(2):
            a(f"s_mov_b64 exec, s[{sV+4*j}:{sV+4*j+1}]\nbuffer_load_dwordx4 {vr(16+4*j,4)}, v88, s[{rREC}:{rREC+3}], 0 offen offset:{64*j}")
    for j in range(2,4):
        a(f"s_mov_b64 exec, s[{sV+4*j}:{sV+4*j+1}]\ns_cbranch_execz K2_OV{OVN}\nbuffer_load_dwordx4 {vr(4*j,4)}, v88, s[{rREC}:{rREC+3}], 0 offen offset:{64*j}")
    a(f"K2_OV{OVN}:\ns_mov_b64 exec, -1")
    if not deep:
        a(f"""
        v_sub_u32 v91, v92, v93
        v_and_b32 v91, s{sT0}, v91
        v_lshlrev_b32 v93, 1, v93
        v_lshrrev_b32 v89, v93, v89
        """)
        for k in range(4): a(f"v_cmp_lt_i32 s[{sV+2*k}:{sV+2*k+1}], {k}, v91")
def slot_w1(a):
    for k in range(4):
        a(f"""
        v_lshrrev_b32 v{4+k}, 26, v{k}
        v_bfe_u32 v90, v{k}, 3, 4
        v_lshl_or_b32 v{4+k}, v{4+k}, 4, v90
        v_bfe_u32 v90, v89, {2*k}, 2
        v_lshl_or_b32 v{4+k}, v90, 10, v{4+k}
        v_add_lshl_u32 v{4+k}, v{4+k}, v94, 5
        """)
OVN=0

def gen_k2(opt):
    global XNS
    XNS=opt.get('x_nosilu',0)
    STREG.update(regs=[97,98,99,100,101,3,1,6],tmp=4)
    BAL=opt.get('bal',1); HALF=opt.get('half',1)
    HA=32
    a=Asm()
    a(f"""
    s_cmp_ge_u32 s2, {NBK}
    s_cbranch_scc1 K2_END
    s_load_dwordx2 s[10:11], s[0:1], 80
    s_load_dwordx2 s[4:5], s[0:1], 0
    s_load_dwordx2 s[6:7], s[0:1], 16
    s_load_dwordx2 s[8:9], s[0:1], 64
    v_mov_b32 v{TID}, v0
    v_lshrrev_b32 v1, 6, v0
    v_and_b32 v2, 0x3fc, v0
    v_lshlrev_b32 v2, 1, v2
    v_readfirstlane_b32 s{sW}, v1
    s_lshl_b32 s{sT0}, s2, 11
    s_add_u32 s{sT0}, s{sT0}, {WS_TAB:#x}
    s_mov_b32 s{sLayer}, 0
    s_mov_b32 s{sBlo}, 0
    s_mov_b32 s{sBhi}, 16
    s_mov_b32 s{sFirst}, 1
    s_waitcnt lgkmcnt(0)
    """)
    stamp(a,opt,0)
    srd(a,rTAB,sWS,f"s{sT0}",2048)
    a(f"buffer_load_dwordx2 v[88:89], v2, s[{rTAB}:{rTAB+3}], 0 offen")
    a(f"s_lshl_b32 s{sT0}, s2, 14\ns_add_u32 s{sT0}, s{sT0}, {WS_SLOT:#x}")
    srd(a,rSLOT,sWS,f"s{sT0}",16384)
    a(f"v_lshlrev_b32 v16, 2, v0")
    slot_loads(a)
    PE=opt.get('pe',4)
    srd(a,rP16,sWS,f"{WS_P16:#x}",WS_P6-WS_P16+N*6)
    a(f"""
    s_lshl_b32 s{sT0}, s{sW}, 10
    s_add_u32 m0, s{sT0}, {PT}
    v_add_u32 v21, {WS_P6-WS_P16}, v91
    """)
    for i in range(PE):
        a(f"buffer_load_dwordx4 v21, s[{rP16}:{rP16+3}], 0 offen lds\ns_add_u32 m0, m0, 16384\nv_add_u32 v21, 16384, v21")
    srd(a,rREC,sWS,f"{WS_REC-128:#x}",NBK*CH*8+128)
    ov_prep(a)
    a(f"""
    v_mov_b32 v17, 0
    s_mov_b32 s{sT3}, s{sT0}
    s_cmp_gt_u32 s{sW}, 8
    s_cbranch_scc1 K2_NOZ
    ds_write_b32 v16, v17 offset:{CNT}
    K2_NOZ:
    s_mov_b32 s{sHI}, 0
    s_mov_b32 s{sHI+1}, -1
    s_mov_b32 s{sONE}, 1.0
    s_mov_b32 s{sONE+1}, 1.0
    s_mov_b32 s{sMASK}, 0xffffffe0
    s_mov_b32 s{s128}, 128
    s_mov_b32 s{sQ3}, 0x88888888
    s_mov_b32 s{sQ3+1}, 0x88888888
    s_mul_i32 s{sM0}, s{sW}, {BSTW}
    s_add_u32 s{sM0}, s{sM0}, {BST}
    s_add_u32 s{sM0+1}, s{sM0}, 1088
    s_add_u32 s{sM0+2}, s{sM0}, 2176
    s_add_u32 s{sM0+3}, s{sM0}, 3264
    """)
    srd(a,rWT,sWS,f"{WS_WT:#x}",WT_SIZE)
    srd(a,rBT,sWS,f"{WS_BT:#x}",N*128)
    srd(a,rEA,sEAP,None,E*32)
    srd(a,rH,sH,None,0); srd(a,rOUT,sOUT,None,0); srd(a,rOUTP,sOUT,None,0)
    a(f"""
    v_and_b32 v18, 63, v{TID}
    v_and_b32 v{cDMA}, 7, v18
    v_lshlrev_b32 v{cDMA}, 4, v{cDMA}
    v_lshrrev_b32 v{cHH}, 5, v18
    v_lshlrev_b32 v{cHH}, 4, v{cHH}
    s_cmp_lg_u32 s{sW}, 13
    s_cbranch_scc1 K2_NOOH
    v_bfe_u32 v19, v18, 2, 1
    v_lshlrev_b32 v19, 4, v19
    v_mov_b32 v20, 0x3f80
    v_lshlrev_b32 v19, v19, v20
    v_bfe_u32 v20, v18, 3, 2
    v_and_b32 v22, 3, v18
    v_cmp_eq_u32 vcc, v20, v22
    v_mov_b32 v20, {LN2_NEG:#x}
    v_lshlrev_b32 v22, 2, v18
    v_cndmask_b32 v19, 0, v19, vcc
    s_mov_b32 exec_hi, 0
    ds_write_b32 v22, v19 offset:{OHT}
    ds_write_b32 v22, v20 offset:{WXL+256}
    s_mov_b64 exec, -1
    K2_NOOH:
    v_lshlrev_b32 v19, 4, v{TID}
    v_lshlrev_b32 v18, 4, v18
    s_mov_b32 s{sT0}, s{sT3}
    s_waitcnt lgkmcnt(0)
    s_barrier
    s_waitcnt vmcnt({1+PE})
    """)
    stamp(a,opt,1)
    ov_loads(a,False)
    a(f"""
    s_lshl_b32 s{sT0}, s{sW}, 10
    s_cmp_lt_u32 s{sW}, 8
    s_cbranch_scc1 K2_DM3
    s_cmp_ge_u32 s{sW}, 10
    s_cbranch_scc1 K2_DM1
    s_add_u32 m0, s{sT0}, {W3L-8192}
    s_nop 0
    buffer_load_dwordx4 v19, s[{rWT}:{rWT+3}], 0 offen lds
    s_branch K2_DM3
    K2_DM1:
    s_cmp_ge_u32 s{sW}, 12
    s_cbranch_scc1 K2_DM2
    s_sub_u32 s{sT2}, s{sT0}, {10*1024}
    s_add_u32 m0, s{sT2}, {PDT}
    s_mul_i32 s{sT1}, s2, {NB*16}
    s_add_u32 s{sT1}, s{sT1}, s{sT2}
    v_add_u32 v18, s{sT1}, v18
    s_cmp_eq_u32 s{sW}, 11
    s_cselect_b32 exec_hi, 0xff, -1
    s_mov_b32 s{rP16+2}, {N*16}
    buffer_load_dwordx4 v18, s[{rP16}:{rP16+3}], 0 offen lds
    s_mov_b32 s{rP16+2}, {WS_P6-WS_P16+N*6}
    s_mov_b64 exec, -1
    s_branch K2_DM3
    K2_DM2:
    s_cmp_lg_u32 s{sW}, 12
    s_cbranch_scc1 K2_DM3
    s_mov_b32 m0, {WDL}
    s_mov_b32 s{sT1}, {WT_WDT}
    s_mov_b32 exec_hi, 0
    buffer_load_dwordx4 v18, s[{rWT}:{rWT+3}], s{sT1} offen lds
    s_mov_b64 exec, -1
    K2_DM3:
    s_add_u32 m0, s{sT0}, {PT+16384*PE}
    """)
    for i in range(PE,10):
        if i==9: a(f"s_cmp_ge_u32 s{sW}, 3\ns_cbranch_scc1 K2_DM4")
        a(f"buffer_load_dwordx4 v21, s[{rP16}:{rP16+3}], 0 offen lds")
        if i<9: a(f"s_add_u32 m0, m0, 16384\nv_add_u32 v21, 16384, v21")
    a(f"""
    K2_DM4:
    s_waitcnt vmcnt({9-PE})
    s_branch K2_HAVE
    K2_ROUND:
    s_waitcnt vmcnt(0)
    s_barrier
    v_mbcnt_lo_u32_b32 v2, -1, 0
    v_mbcnt_hi_u32_b32 v2, -1, v2
    s_lshl_b32 s{sT0}, s{sW}, 6
    v_add_u32 v{TID}, s{sT0}, v2
    v_and_b32 v2, 0x3fc, v{TID}
    v_lshlrev_b32 v2, 1, v2
    buffer_load_dwordx2 v[88:89], v2, s[{rTAB}:{rTAB+3}], 0 offen
    v_mov_b32 v17, 0
    v_lshlrev_b32 v16, 2, v{TID}
    s_cmp_ge_u32 s{sW}, 4
    s_cbranch_scc1 K2_NOZ2
    ds_write_b32 v16, v17 offset:{CNT}
    K2_NOZ2:
    """)
    slot_loads(a); ov_prep(a)
    a(f"""
    s_waitcnt vmcnt(0)
    s_cmp_eq_u32 s{sLayer}, 0
    s_cbranch_scc0 K2_DEEP
    """)
    ov_loads(a,False)
    a(f"""
    s_waitcnt lgkmcnt(0)
    s_barrier
    s_waitcnt vmcnt(0)
    s_branch K2_HAVE
    K2_DEEP:
    """)
    ov_loads(a,True)
    a(f"""
    s_waitcnt lgkmcnt(0)
    s_barrier
    s_waitcnt vmcnt(0)
    """)
    for k in range(4): a(f"v_mov_b32 v{k}, v{16+2*k}\nv_mov_b32 v{4+k}, v{17+2*k}")
    a(f"""
    K2_HAVE:
    """)
    stamp(a,opt,2)
    a(f"""
    v_cmp_lt_u32 vcc, 32, v92
    v_mov_b32 v93, {MAXC}
    v_mov_b32 v95, 1
    s_mov_b64 exec, vcc
    s_cbranch_execz K2_NOMAX
    ds_max_u32 v93, v92
    K2_NOMAX:
    """)
    for k in range(8):
        a(f"""
        s_mov_b64 exec, s[{sV+2*k}:{sV+2*k+1}]
        s_cbranch_execz {'K2_ATOM_MID' if k<4 else 'K2_ATOM_DONE'}
        v_lshrrev_b32 v{16+k}, 16, v{RW[k][0]}
        v_and_b32 v{16+k}, 0x3fc, v{16+k}
        ds_add_rtn_u32 v{24+k}, v{16+k}, v95 offset:{CNT}
        """)
        if k==3: a("K2_ATOM_MID:")
    a(f"""
    K2_ATOM_DONE:
    s_mov_b64 exec, -1
    s_cmp_lg_u32 s{sLayer}, 0
    s_cbranch_scc1 K2_NOW1R
    """)
    slot_w1(a)
    a(f"""
    K2_NOW1R:
    v_and_b32 v100, 63, v{TID}
    v_lshlrev_b32 v101, 4, v100
    s_cmp_eq_u32 s{sFirst}, 1
    s_cbranch_scc1 K2_NOGP
    s_mov_b32 s{sT0}, {WS_P6-WS_P16}
    s_mov_b32 s{sT1}, {WS_P6-WS_P16+N*4}
    """)
    for k in range(8):
        a(f"""
        s_mov_b64 exec, s[{sV+2*k}:{sV+2*k+1}]
        v_bfe_u32 v95, v{RW[k][0]}, 7, 15
        v_lshlrev_b32 v96, 2, v95
        v_lshlrev_b32 v95, 1, v95
        buffer_load_dword v{XR[k]}, v96, s[{rP16}:{rP16+3}], s{sT0} offen
        buffer_load_ushort v{ZR[k]}, v95, s[{rP16}:{rP16+3}], s{sT1} offen
        """)
    a(f"""
    s_mov_b64 exec, -1
    K2_NOGP:
    """)
    stamp(a,opt,3,2)
    a(f"""
    s_waitcnt vmcnt(0) lgkmcnt(0)
    s_barrier
    """)
    stamp(a,opt,4,2)
    a(f"""
    ds_read_b128 v[88:91], v101 offset:{CNT}
    ds_read_b32 v102, v93
    s_cmp_lg_u32 s{sFirst}, 1
    s_cbranch_scc1 K2_NOLG
    s_mov_b32 s{sT0}, {PT+N*4}
    """)
    for k in range(8):
        a(f"""
        s_mov_b64 exec, s[{sV+2*k}:{sV+2*k+1}]
        s_cbranch_execz {'K2_LG_MID' if k<4 else 'K2_NOLG'}
        v_bfe_u32 v95, v{RW[k][0]}, 7, 15
        v_lshlrev_b32 v{XR[k]}, 2, v95
        v_lshl_add_u32 v{ZR[k]}, v95, 1, s{sT0}
        {"s_waitcnt lgkmcnt(8)" if k==6 else ""}
        ds_read_b32 v{XR[k]}, v{XR[k]} offset:{PT}
        ds_read_u16 v{ZR[k]}, v{ZR[k]}
        """)
        if k==3: a("K2_LG_MID:")
    a(f"""
    K2_NOLG:
    s_mov_b64 exec, -1
    s_waitcnt lgkmcnt(0)
    v_readfirstlane_b32 s{sMaxc}, v102
    v_add_u32 v89, v88, v89
    v_add_u32 v90, v89, v90
    v_add_u32 v91, v90, v91
    v_add_u32_dpp v92, v91, v91 quad_perm:[1,0,3,2] row_mask:0xf bank_mask:0xf
    v_lshrrev_b32 v102, 2, v100
    v_add_u32_dpp v92, v92, v92 quad_perm:[2,3,0,1] row_mask:0xf bank_mask:0xf
    """)
    if BAL:
        a(f"""
        s_cmp_eq_u32 s{sFirst}, 0
        s_cbranch_scc1 K2_NOKEY
        v_lshl_add_u32 v48, v92, 4, v102
        v_and_b32 v49, 0x3c, v100
        v_and_b32 v50, 3, v100
        v_lshlrev_b32 v50, 4, v50
        ds_write_b32 v49, v48 offset:{KEYS}
        ds_read_b128 v[52:55], v50 offset:{KEYS}
        K2_NOKEY:
        """)
    a(f"""
    v_sub_u32 v93, 0, v92
    v_and_b32 v93, 31, v93
    v_cndmask_b32 v93, 0, v93, s[{sQ3}:{sQ3+1}]
    v_add_u32 v94, v91, v93
    v_mov_b32 v103, v94
    """)
    wave_scan(a,103)
    a(f"""
    v_sub_u32 v96, v103, v94
    v_add_u32 v97, v96, v88
    v_add_u32 v98, v96, v89
    v_add_u32 v99, v96, v90
    ds_write_b128 v101, v[96:99] offset:{BASE}
    v_readlane_b32 s{sTot}, v103, 63
    s_barrier
    s_cmp_lg_u32 s{sFirst}, 1
    s_cbranch_scc1 K2_NOW1D
    s_mov_b32 s{sFirst}, 2
    s_cmp_ge_u32 s{sW}, 8
    s_cbranch_scc1 K2_NOW1E
    s_lshl_b32 s{sT0}, s{sW}, 10
    s_add_u32 m0, s{sT0}, {W1L}
    v_lshlrev_b32 v95, 4, v{TID}
    buffer_load_dwordx4 v95, s[{rWT}:{rWT+3}], 0 offen lds
    K2_NOW1E:
    """)
    if opt.get('vpf'):
        nb=opt.get('vpf')
        a(f"""
        s_lshr_b32 s{sT0}, s2, 3
        s_lshl_b32 s{sT0}, s{sT0}, 4
        s_add_u32 s{sT0}, s{sT0}, s{sW}
        s_lshl_b32 s{sT0}, s{sT0}, 9
        v_and_b32 v95, 3, v100
        v_lshrrev_b32 v102, 2, v100
        v_lshlrev_b32 v102, 18, v102
        v_lshl_add_u32 v95, v95, 7, v102
        v_add_u32 v95, s{sT0}, v95
        s_mov_b32 exec_hi, {((1<<(4*nb))-1)>>32:#x}
        s_mov_b32 exec_lo, {((1<<(4*nb))-1)&0xffffffff:#x}
        buffer_load_dword v84, v95, s[{rBT}:{rBT+3}], 0 offen
        s_mov_b64 exec, -1
        """)
    a(f"""
    K2_NOW1D:
    s_cmp_le_u32 s{sTot}, {LCAP}
    s_cbranch_scc1 K2_FITS
    s_add_u32 s{sBhi}, s{sBlo}, 4
    s_waitcnt lgkmcnt(0)
    s_branch K2_ROUND
    K2_FITS:
    """)
    stamp(a,opt,5,2)
    for k in range(8):
        a(f"""
        s_mov_b64 exec, s[{sV+2*k}:{sV+2*k+1}]
        s_cbranch_execz {'K2_BR_MID' if k<4 else 'K2_BR_DONE'}
        ds_read_b32 v{16+k}, v{16+k} offset:{BASE}
        """)
        if k==3: a("K2_BR_MID:")
    a(f"""
    K2_BR_DONE:
    s_mov_b64 exec, -1
    s_cmp_eq_u32 s{sFirst}, 0
    s_cbranch_scc1 K2_NFG
    """)
    if BAL:
        a(f"""
        s_lshr_b32 s{sT0}, s{sW}, 2
        s_and_b32 s{sT1}, s{sT0}, 1
        s_mul_i32 s{sT1}, s{sT1}, 3
        s_xor_b32 s{sT0}, s{sW}, s{sT1}
        s_waitcnt lgkmcnt(0)
        v_cmp_gt_u32 vcc, v52, v48
        v_cmp_gt_u32 s[{sK}:{sK+1}], v53, v48
        v_addc_co_u32 v49, vcc, 0, 0, vcc
        v_addc_co_u32 v49, s[{sK}:{sK+1}], 0, v49, s[{sK}:{sK+1}]
        v_cmp_gt_u32 vcc, v54, v48
        v_cmp_gt_u32 s[{sK}:{sK+1}], v55, v48
        v_addc_co_u32 v49, vcc, 0, v49, vcc
        v_addc_co_u32 v49, s[{sK}:{sK+1}], 0, v49, s[{sK}:{sK+1}]
        v_add_u32_dpp v49, v49, v49 quad_perm:[1,0,3,2] row_mask:0xf bank_mask:0xf
        v_add_u32_dpp v49, v49, v49 quad_perm:[2,3,0,1] row_mask:0xf bank_mask:0xf
        v_cmp_eq_u32 vcc, s{sT0}, v49
        s_ff1_i32_b64 s{sG}, vcc
        s_lshr_b32 s{sG}, s{sG}, 2
        s_and_b32 s{sG}, s{sG}, 15
        """)
    else:
        a(f"""
        s_lshr_b32 s{sT1}, s{sW}, 3
        s_sub_u32 s{sT2}, s{sW}, s{sT1}
        s_and_b32 s{sT2}, s{sT2}, 7
        s_lshl_b32 s{sT1}, s{sT1}, 3
        s_add_u32 s{sG}, s{sT1}, s{sT2}
        """)
    a(f"""
    s_and_b32 s{sT1}, s{sG}, 7
    s_cmp_eq_u32 s{sT1}, 0
    s_cselect_b32 s{sCnt}, 7, 6
    s_mul_i32 s{sGs}, s{sG}, 49
    s_add_u32 s{sGs}, s{sGs}, 7
    s_lshr_b32 s{sGs}, s{sGs}, 3
    s_mul_i32 s{sNode0}, s2, {NB}
    s_add_u32 s{sNode0}, s{sNode0}, s{sGs}
    s_lshl_b32 s{sGs}, s{sGs}, 4
    s_add_u32 s{sGs}, s{sGs}, {PDT}
    s_sub_i32 s{sT1}, {N}, s{sNode0}
    s_max_i32 s{sT1}, s{sT1}, 0
    s_min_u32 s{sCnt}, s{sCnt}, s{sT1}
    s_min_u32 s{sNode0}, s{sNode0}, {N}
    s_lshl_b32 s{sT0}, s{sNode0}, 7
    s_lshl_b32 s{sT1}, s{sCnt}, 7
    """)
    srd(a,rH,sH,f"s{sT0}",f"s{sT1}")
    def ha_loads():
        a(f"""
        v_and_b32 v49, 3, v100
        v_bfe_u32 v50, v100, 3, 2
        v_lshl_add_u32 v49, v50, 2, v49
        v_lshl_add_u32 v49, v49, 7, v{cHH}
        s_mov_b32 exec_lo, 0xf0f
        s_mov_b32 exec_hi, 0xf0f
        """)
        for s_ in range(4): a(f"buffer_load_dwordx4 {vr(HA+4*s_,4)}, v49, s[{rH}:{rH+3}], 0 offen offset:{32*s_}")
        a("s_mov_b64 exec, -1")
    HLATE=opt.get('halate',0)
    if not HLATE: ha_loads()
    a(f"""
    s_mov_b64 exec, -1
    v_mov_b32 v{cPD}, {OHT}
    v_mov_b32 v49, s{sGs}
    v_cndmask_b32 v{cPD}, v{cPD}, v49, s[{sHI}:{sHI+1}]
    """)
    srd(a,rOUT,sOUT,f"s{sT0}",f"s{sT1}")
    a(f"s_mul_i32 s{sT0}, s{sNode0}, 6\ns_add_u32 s{sT0}, s{sT0}, {N*128}\ns_mul_i32 s{sT1}, s{sCnt}, 6")
    srd(a,rOUTP,sOUT,f"s{sT0}",f"s{sT1}")
    a(f"""
    K2_NFG:
    s_lshl_b32 s{sT0}, s{sG}, 2
    v_readlane_b32 s{sGb}, v96, s{sT0}
    v_readlane_b32 s{sNT}, v92, s{sT0}
    v_mov_b32 v102, 0
    v_mov_b32 v103, 7
    s_add_u32 s{sT1}, s{sGb}, s{sNT}
    s_sub_u32 s{sPad}, 0, s{sNT}
    s_and_b32 s{sPad}, s{sPad}, 31
    v_add_lshl_u32 v101, s{sT1}, v100, 2
    v_cmp_gt_u32 vcc, s{sPad}, v100
    s_mov_b64 exec, vcc
    ds_write2st64_b32 v101, v102, v103 offset0:{L0//256} offset1:{L1//256}
    ds_write_b32 v101, v102 offset:{L2}
    s_waitcnt lgkmcnt(2)
    """)
    for k in range(8):
        a(f"""
        s_mov_b64 exec, s[{sV+2*k}:{sV+2*k+1}]
        s_cbranch_execz {'K2_LW_MID' if k<4 else 'K2_LW_DONE'}
        v_add_lshl_u32 v{16+k}, v{16+k}, v{24+k}, 2
        v_and_or_b32 v{RW[k][1]}, v{RW[k][0]}, 7, v{RW[k][1]}
        v_bfe_u32 v{RW[k][0]}, v{RW[k][0]}, 7, 15
        ds_write_b32 v{16+k}, v{XR[k]} offset:{L2}
        v_lshl_or_b32 v{RW[k][0]}, v{ZR[k]}, 16, v{RW[k][0]}
        ds_write2st64_b32 v{16+k}, v{RW[k][0]}, v{RW[k][1]} offset0:{L0//256} offset1:{L1//256}
        """)
        if k==3: a("K2_LW_MID:")
    a(f"""
    K2_LW_DONE:
    s_mov_b64 exec, -1
    """)
    stamp(a,opt,6,2)
    a(f"""
    s_lshl_b32 s{sT0}, s{sGb}, 2
    s_add_u32 s{sT0}, s{sT0}, {L0}
    v_lshrrev_b32 v101, 3, v100
    v_lshl_add_u32 v{aL4}, v101, 4, s{sT0}
    v_and_b32 v101, 31, v100
    v_lshl_add_u32 v{aLE}, v101, 2, s{sT0}
    s_add_u32 s{sNT}, s{sNT}, 31
    s_lshr_b32 s{sNT}, s{sNT}, 5
    s_waitcnt vmcnt({(0 if HLATE else 4)+(1 if opt.get('vpf') else 0)}) lgkmcnt(0)
    s_barrier
    """)
    stamp(a,opt,3,1)
    stamp(a,opt,7,2)
    if opt.get('prio'): a('s_setprio 3')
    if opt.get('bpf'):
        a(f"""
        s_lshr_b32 s{sGb}, s2, 3
        s_lshl_b32 s{sGb}, s{sGb}, 4
        s_add_u32 s{sGb}, s{sGb}, s{sW}
        s_lshl_b32 s{sGb}, s{sGb}, 9
        s_add_u32 s{sGb}, s{sGb}, {opt.get('bpf0',3)*262144}
        """)
    a(idx_reads())
    if HLATE:
        a(f"s_cmp_eq_u32 s{sFirst}, 0\ns_cbranch_scc1 K2_NOHL")
        ha_loads()
        a("K2_NOHL:")
    a("s_waitcnt lgkmcnt(0)")
    a(issue_loads(opt)); a(oh_read())
    a(f"""
    s_cmp_eq_u32 s{sFirst}, 0
    s_cbranch_scc1 K2_NF2
    s_mov_b32 s{sFirst}, 0
    v_lshlrev_b32 v18, 4, v100
    v_add_u32 v48, {W1L}, v18
    v_lshlrev_b32 v19, 2, v101
    ds_read_b128 {vr(W3,4)}, v18 offset:{W3L}
    ds_read_b128 {vr(W3+4,4)}, v18 offset:{W3L+1024}
    ds_read_b32 v{AG+2}, v19 offset:{WDL}
    ds_read_b32 v{AG+6}, v19 offset:{WDL+128}
    """)
    a(f"""
    v_mov_b32 v16, v100
    v_mov_b32 v20, v101
    v_lshrrev_b32 v21, 5, v16
    v_and_b32 v24, 3, v16
    v_pk_mov_b32 v[28:29], 0, 0
    v_pk_mov_b32 v[30:31], 0, 0
    s_lshl_b32 s{sT0}, s{sW}, 11
    s_add_u32 s{sT0}, s{sT0}, {SX}
    v_add_u32 v18, s{sT0}, v18
    ds_write_b128 v18, v[28:31]
    ds_write_b128 v18, v[28:31] offset:1024
    """)
    WB=(88,92,96,100,52,56,60,88)
    for i in range(7): a(f"ds_read_b128 {vr(WB[i],4)}, v48 offset:{1024*i}")
    cons=f"""v_bfe_u32 v22, v16, 4, 1
    v_bfe_u32 v23, v16, 2, 2
    v_lshl_add_u32 v{aSXW}, v20, 6, s{sT0}
    v_lshl_add_u32 v25, v21, 2, v23
    v_lshl_add_u32 v{aSXR}, v25, 6, s{sT0}
    v_lshl_add_u32 v25, v22, 2, v24
    v_lshl_add_u32 v{aSXR}, v25, 3, v{aSXR}
    v_lshrrev_b32 v25, 1, v23
    v_mul_u32_u24 v{aTR}, 1088, v25
    v_and_b32 v25, 1, v23
    v_lshl_add_u32 v25, v21, 2, v25
    v_lshl_add_u32 v{aTR}, v25, 7, v{aTR}
    v_lshl_add_u32 v{aTR}, v22, 5, v{aTR}
    v_lshl_add_u32 v{aTR}, v24, 3, v{aTR}
    v_add_u32 v{aTR}, s{sM0}, v{aTR}
    v_bfe_u32 v25, v20, 1, 1
    v_bfe_u32 v26, v20, 3, 1
    v_lshl_add_u32 v25, v25, 1, v26
    v_and_b32 v26, 1, v20
    v_lshl_add_u32 v49, v25, 1, v26
    v_xor_b32 v26, v21, v22
    v_lshl_add_u32 v49, v26, 3, v49
    v_bfe_u32 v26, v20, 2, 1
    v_lshlrev_b32 v26, 4, v26
    v_mov_b32 v27, 0x3f80
    v_lshlrev_b32 v50, v26, v27"""
    a(cons)
    idl=[]
    for i in range(0,8,2):
        idl.append(f"v_cmp_eq_u32 vcc, {i}, v49\nv_cmp_eq_u32 s[{sK}:{sK+1}], {i+1}, v49\ns_nop 0\nv_cndmask_b32 v{ID+i}, 0, v50, vcc\nv_cndmask_b32 v{ID+i+1}, 0, v50, s[{sK}:{sK+1}]")
    a("s_waitcnt vmcnt(5)")
    for i in range(8):
        s_,p=i//2,i%2
        a(f"s_waitcnt lgkmcnt({(6,6,5,4,3,2,1,0)[i]})")
        a(mf(D1+16*p, HA+4*s_, WB[i], None if s_==0 else D1+16*p))
        if i==0: a(f"ds_read_b128 {vr(WB[7],4)}, v48 offset:{1024*7}")
        if 1<=i<=4: a(idl[i-1])
    a(f"s_mov_b32 s{sK}, {LOG2E_NEG:#x}\ns_mov_b32 s{sK+1}, {LOG2E_NEG:#x}")
    a(f"s_mov_b64 exec, s[{sHI}:{sHI+1}]")
    for p in range(2):
        for i in (0,1,3): a(f"v_mov_b32 v{AG+4*p+i}, 0")
    a("s_mov_b64 exec, -1")
    a("v_pk_mov_b32 v[88:89], 0, 0\nv_pk_mov_b32 v[90:91], 0, 0")
    a(mf(D2,88,88)); a(mf(D2+16,88,88))
    a("s_mov_b32 exec_hi, 0")
    for p in range(2):
        for i in range(4): a(f"v_pk_mul_f32 {vr(D1+16*p+2*i,2)}, {vr(D1+16*p+2*i,2)}, s[{sK}:{sK+1}]")
    for p in range(2):
        for i in range(4): a(f"v_cvt_pk_bf16_f32 v{AG+4*p+i}, v{D1+16*p+2*i}, v{D1+16*p+2*i+1}")
    a("s_mov_b64 exec, -1\nK2_NF2:")
    a(f"v_mov_b32 v{SXA}, v{aSXW}")
    for i in (0,2,8,10): a(f"v_pk_mov_b32 {vr(D1+16+i,2)}, 0, 0")
    a(f"""
    s_cmp_eq_u32 s{sNT}, 0
    s_cbranch_scc1 K2_EMPTY
    s_waitcnt vmcnt(1)
    """)
    stamp(a,opt,4,1)
    a(bst_reads(0)); a("s_waitcnt lgkmcnt(4)"); a(edge())
    a("s_waitcnt lgkmcnt(2)"); a(mf(D1,ID,T0)); a("s_waitcnt lgkmcnt(0)"); a(mf(D1,ID+4,T1,D1)); a(mf(D1,OH,AG,D1)); a("s_waitcnt vmcnt(0)"); a(mf(D1,EA,W3,D1))
    a(sx_reads())
    a(f"""
    s_nop 3
    s_cmp_eq_u32 s{sNT}, 1
    s_cbranch_scc1 K2_LAST
    .p2align 3
    K2_TILE:
    """)
    n0=len(a.l)
    phaseX(a,opt,False); phaseY(a,opt,False)
    xfilter(a,n0,opt)
    a(f"s_sub_u32 s{sNT}, s{sNT}, 1")
    if opt.get('prio'):
        th=opt.get('prio_th',[5,3,1])
        for i,t in enumerate(th):
            a(f"s_cmp_eq_u32 s{sNT}, {t}\ns_cbranch_scc0 K2_P{i}\ns_setprio {2-i}\nK2_P{i}:")
    a(f"""
    s_cmp_lg_u32 s{sNT}, 1
    s_cbranch_scc1 K2_TILE
    K2_LAST:
    """)
    if HALF:
        a(f"s_cmp_ge_u32 s{sPad}, 16\ns_cbranch_scc1 K2_LASTH")
    n0=len(a.l)
    phaseX(a,opt,True); phaseY(a,opt,True)
    xfilter(a,n0,opt)
    if HALF:
        a("s_branch K2_TAIL\nK2_LASTH:")
        n0=len(a.l)
        phaseX(a,opt,True,True); phaseY(a,opt,True,True)
        xfilter(a,n0,opt)
    a(f"K2_TAIL:\ns_mov_b64 exec, s[{sHI}:{sHI+1}]"); a(sx_zero()); a("s_mov_b64 exec, -1")
    a("s_branch K2_RND_END\nK2_EMPTY:\ns_waitcnt vmcnt(0) lgkmcnt(0)")
    a(fin_loads())
    a(f"""
    K2_RND_END:
    s_waitcnt lgkmcnt(0)
    s_cmp_ge_u32 s{sBhi}, 16
    s_cbranch_scc1 K2_NEXTLAYER
    s_mov_b32 s{sBlo}, s{sBhi}
    s_add_u32 s{sBhi}, s{sBhi}, 4
    s_branch K2_ROUND
    K2_NEXTLAYER:
    s_add_u32 s{sLayer}, s{sLayer}, 1
    s_mov_b32 s{sBlo}, 0
    s_lshl_b32 s{sT0}, s{sLayer}, 5
    s_cmp_lt_u32 s{sT0}, s{sMaxc}
    s_cbranch_scc1 K2_ROUND
    """)
    stamp(a,opt,5,1)
    WH=[64+4*i for i in range(10)]+[0,4,8,116,108,120]
    a(f"""
    v_mbcnt_lo_u32_b32 v31, -1, 0
    v_mbcnt_hi_u32_b32 v31, -1, v31
    v_lshlrev_b32 v28, 4, v31
    """)
    for i in range(16):
        if i%4==0: a(f"s_mov_b32 s{sT0}, {WT_WHT+(i//4)*4096}")
        a(f"buffer_load_dwordx4 {vr(WH[i],4)}, v28, s[{rWT}:{rWT+3}], s{sT0} offen offset:{(i%4)*1024}")
    a(f"""
    v_and_b32 v12, 15, v31
    v_lshrrev_b32 v13, 4, v31
    v_lshrrev_b32 v14, 2, v12
    v_and_b32 v15, 1, v31
    v_lshl_add_u32 v14, v14, 1, v15
    v_lshlrev_b32 v29, 8, v13
    v_lshl_add_u32 v29, v12, 3, v29
    """)
    a(f"""
    v_mul_u32_u24 v30, 144, v14
    v_lshl_add_u32 v30, v13, 4, v30
    v_add_u32 v30, s{sM0}, v30
    v_lshrrev_b32 v13, 5, v31
    v_lshlrev_b32 v28, 7, v13
    v_and_b32 v12, 3, v31
    v_cmp_eq_u32 vcc, 0, v12
    v_mov_b32 v14, 256
    v_cndmask_b32 v28, v28, v14, vcc
    s_mov_b64 s[{sV}:{sV+1}], vcc
    """)
    for p in range(2):
        for q in range(4): a(f"ds_read_b128 {vr(12+4*q,4)}, v28 offset:{WXL+64*p+16*q}")
        a("s_waitcnt lgkmcnt(0)")
        for i in range(8): a(f"v_pk_mul_f32 {vr(D2+16*p+2*i,2)}, {vr(D2+16*p+2*i,2)}, {vr(12+2*i,2)}")
    a(f"""
    v_bfe_u32 v12, v31, 2, 3
    v_mul_u32_u24 v28, 144, v12
    v_lshrrev_b32 v13, 5, v31
    v_lshl_add_u32 v28, v13, 3, v28
    v_add_u32 v28, s{sM0}, v28
    v_and_b32 v14, 3, v31
    v_lshlrev_b32 v15, 4, v12
    v_lshl_add_u32 v15, v14, 2, v15
    s_sub_u32 s{sT1}, s{sGs}, 4
    v_add_u32 v15, s{sT1}, v15
    ds_read_b32 v16, v15
    v_mul_u32_u24 v12, 6, v12
    v_lshl_add_u32 v12, v14, 1, v12
    v_subrev_u32 v12, 2, v12
    s_mov_b64 exec, s[{sV}:{sV+1}]
    """)
    for p in range(2):
        for q in range(4):
            b=D2+16*p+4*q
            a(f"v_cvt_pk_bf16_f32 v{b}, v{b}, v{b+1}\nv_cvt_pk_bf16_f32 v{b+1}, v{b+2}, v{b+3}\nds_write_b64 v28, {vr(b,2)} offset:{64*p+16*q}")
    a(f"s_not_b64 exec, exec")
    st=16
    while st>=2:
        for i in range(0,st,2): a(f"v_pk_add_f32 {vr(D2+i,2)}, {vr(D2+i,2)}, {vr(D2+st+i,2)}")
        st//=2
    a(f"""
    v_add_f32 v32, v32, v33
    s_mov_b64 exec, -1
    v_mov_b32 v33, v32
    v_permlane32_swap_b32 v32, v33
    v_add_f32 v32, v32, v33
    s_waitcnt lgkmcnt(0)
    v_add_f32 v32, v32, v16
    v_cvt_pk_bf16_f32 v32, v32, v32
    s_mov_b32 exec_lo, 0xeeeeeeee
    s_mov_b32 exec_hi, 0
    buffer_store_short v32, v12, s[{rOUTP}:{rOUTP+3}], 0 offen {opt.get('outp_pol','')}
    s_mov_b64 exec, -1
    ds_read_b128 v[36:39], v30
    ds_read_b128 v[40:43], v30 offset:64
    s_waitcnt vmcnt(1)
    """)
    D3=44
    XA=(EA,PS,36,40)
    for s in range(4):
        if s==2: a("s_waitcnt lgkmcnt(0)")
        for q in range(4):
            c="0" if s==0 else vr(D3+4*q,4)
            a(f"v_mfma_f32_16x16x32_bf16 {vr(D3+4*q,4)}, {vr(XA[s],4)}, {vr(WH[4*s+q],4)}, {c}")
    for r in range(2):
        a(f"""
        v_lshlrev_b32 v{12+4*r}, 16, v{124+2*r}
        v_and_b32 v{13+4*r}, 0xffff0000, v{124+2*r}
        v_lshlrev_b32 v{14+4*r}, 16, v{125+2*r}
        v_and_b32 v{15+4*r}, 0xffff0000, v{125+2*r}
        """)
    Z=[(r,q) for r in range(2) for q in range(4)]
    for k,(r,q) in enumerate(Z): a(f"v_mul_f32 v{20+k}, {LOG2E_NEG:#x}, v{D3+4*q+r}")
    for k in range(8): a(f"v_exp_f32 v{20+k}, v{20+k}")
    for k in range(8): a(f"v_add_f32 v{20+k}, 1.0, v{20+k}")
    for k in range(8): a(f"v_rcp_f32 v{20+k}, v{20+k}")
    for k,(r,q) in enumerate(Z): a(f"v_fmac_f32 v{12+k}, v{20+k}, v{D3+4*q+r}")
    for r in range(2):
        a(f"""
        v_cvt_pk_bf16_f32 v{20+2*r}, v{12+4*r}, v{13+4*r}
        v_cvt_pk_bf16_f32 v{21+2*r}, v{14+4*r}, v{15+4*r}
        buffer_store_dwordx2 {vr(20+2*r,2)}, v29, s[{rOUT}:{rOUT+3}], 0 offen offset:{128*r} {opt.get('out_pol','')}
        """)
    stamp(a,opt,6,1)
    if opt.get('stamp'): a("s_waitcnt vmcnt(0)")
    stamp(a,opt,7,1)
    stamp_out(a,opt,1,sWS,sW,32,40)
    a("K2_END:\ns_endpgm")
    return a
```
